```python
import torch

def _softmax(x, axis=-1):
    return torch.softmax(x, dim=axis)
def _gelu(x):
    return torch.nn.functional.gelu(x, approximate="tanh")
def _silu(x):
    return torch.nn.functional.silu(x)
def _sigmoid(x):
    return torch.sigmoid(x)
def _layernorm(x, axis=-1, eps=1e-5):
    m = x.mean(dim=axis, keepdim=True)
    v = x.var(dim=axis, keepdim=True, unbiased=False)
    return (x - m) / torch.sqrt(v + eps)
def _scatter_add(tgt, idx, src, axis=0):
    return tgt.clone().index_add_(axis, idx, src)
def _segment_sum(src, seg, n):
    out = torch.zeros((n,) + src.shape[1:], dtype=src.dtype)
    return out.index_add_(0, seg, src)
def _pad(x, pw):
    flat = tuple(v for pair in reversed(pw) for v in pair)
    return torch.nn.functional.pad(x, flat)

kernel_name = 'gated_mix__ssm_conv_h3__dense_activation_gelu__prompt'

def setup_inputs():

    _w = (lambda a: (lambda t: t.to(torch.bfloat16) if t.is_floating_point() else t)(torch.as_tensor(a)))
    def _A_setup():
        B, S, D = 1, 2048, 640
        ks = 4
        return {
            "q": _w((lambda *s: torch.randn(*s, dtype=torch.bfloat16) * 0.05)(B, S, D)),
            "k": _w((lambda *s: torch.randn(*s, dtype=torch.bfloat16) * 0.2)(B, S, D)),
            "v": _w((lambda *s: torch.randn(*s, dtype=torch.bfloat16) * 0.2)(B, S, D)),
            "shift_k": _w((lambda *s: torch.randn(*s, dtype=torch.bfloat16) * 0.2)(D, ks) * 0.5),
            "ssm_k": _w((lambda *s: torch.randn(*s, dtype=torch.bfloat16) * 0.8)(D, S) * (1.0 / S ** 0.5)),
            "ssm_D": _w((lambda *s: torch.randn(*s, dtype=torch.bfloat16) * 0.2)(D)),
        }
    _A_in = _A_setup()

    def _B_setup():
        B, S, D, F = 1, 2048, 640, 1536
        return {
            "x": _w((lambda *s: torch.randn(*s, dtype=torch.bfloat16) * 0.05)(B, S, D)),
            "w1": _w((lambda *s: torch.randn(*s, dtype=torch.bfloat16) * 3.2)(D, F) * (D ** -0.5)),
            "b1": _w((lambda *s: torch.randn(*s, dtype=torch.bfloat16) * 3.2)(F) * 0.01),
            "w2": _w((lambda *s: torch.randn(*s, dtype=torch.bfloat16) * 0.05)(F, D) * (F ** -0.5)),
            "b2": _w((lambda *s: torch.randn(*s, dtype=torch.bfloat16) * 0.1)(D) * 0.01),
        }
    _B_in = _B_setup()

    return {
        "A_q": _A_in["q"],
        "A_k": _A_in["k"],
        "A_v": _A_in["v"],
        "A_shift_k": _A_in["shift_k"],
        "A_ssm_k": _A_in["ssm_k"],
        "A_ssm_D": _A_in["ssm_D"],
        "B_x": _B_in["x"],
        "B_w1": _B_in["w1"],
        "B_b1": _B_in["b1"],
        "B_w2": _B_in["w2"],
        "B_b2": _B_in["b2"],
        "gate_w": _w((lambda *s: torch.randn(*s, dtype=torch.bfloat16) * 0.05)(640) * 16.0),
    }

def reference(A_q, A_k, A_v, A_shift_k, A_ssm_k, A_ssm_D, B_x, B_w1, B_b1, B_w2, B_b2, gate_w):
    def _A_ref(q, k, v, shift_k, ssm_k, ssm_D):
        B, S, D = q.shape
        ks = shift_k.shape[-1]
        k_pad = _pad(k, ((0, 0), (ks - 1, 0), (0, 0)))
        k_shift = torch.zeros_like(k)
        for t in range(ks):
            k_shift = k_shift + k_pad[:, t:t + S, :] * shift_k[:, ks - 1 - t][None, None, :]
        kv = k_shift * v
        L = 2 * S
        kv_pad = _pad(kv, ((0, 0), (0, S), (0, 0)))
        kf_pad = _pad(ssm_k, ((0, 0), (0, S)))
        kv_f = (lambda x, axes=(-2,-1): torch.fft.rfft2(x.float(), dim=axes))(kv_pad[:, None, :, :], axes=(1, 2))
        kf_f = (lambda x, axes=(-2,-1): torch.fft.rfft2(x.float(), dim=axes))(kf_pad[:, None, :], axes=(1, 2))
        kf_f = (lambda x, *d: x.permute(*d))(kf_f, 1, 2, 0)
        y_f = kv_f * kf_f[None, :, :, :]
        y = (lambda x, s, axes=(-2,-1): torch.fft.irfft2(x, s=s, dim=axes).to(torch.bfloat16))(y_f, (1, L), axes=(1, 2))[:, 0, :S, :]
        y = y + kv * ssm_D[None, None, :]
        return q * y

    def _B_ref(x, w1, b1, w2, b2):
        h = torch.einsum("bsd,df->bsf", x, w1) + b1
        h = _gelu(h)
        return torch.einsum("bsf,fd->bsd", h, w2) + b2

    x = A_q
    g = _sigmoid((x * gate_w).sum(-1, keepdims=True))
    a = _A_ref(x, A_k, A_v, A_shift_k, A_ssm_k, A_ssm_D)
    b = _B_ref(x, B_w1, B_b1, B_w2, B_b2)
    return g * a + (1 - g) * b
```

```python
import re

_REG = re.compile(r"\b([vsa])(\d+)\b|\b([vsa])\[(\d+):(\d+)\]|\b(vcc|m0|exec|scc)\b")

def regs_of(op):
    out = set()
    for m in _REG.finditer(op):
        if m.group(1): out.add((m.group(1), int(m.group(2))))
        elif m.group(3):
            for i in range(int(m.group(4)), int(m.group(5)) + 1): out.add((m.group(3), i))
        else: out.add((m.group(6), 0))
    return out

TRANS = ("v_exp_f32", "v_log_f32", "v_rcp_f32", "v_rsq_f32", "v_sqrt_f32", "v_sin_f32", "v_cos_f32")

def v(i, n=1): return f"v{i}" if n == 1 else f"v[{i}:{i+n-1}]"
def s(i, n=1): return f"s{i}" if n == 1 else f"s[{i}:{i+n-1}]"

class Asm:
    def __init__(self):
        self.lines = []
        self.hist = []
        self.pos = 0
        self.vm = []
        self.nbytes = 0
    def raw(self, t): self.lines.append(t)
    def comment(self, t): self.lines.append("  ; " + t)
    def label(self, name, flush=True):
        self.lines.append(name + ":")
    def nop(self, n):
        while n > 0:
            k = min(n, 16)
            self.lines.append(f"  s_nop {k-1}")
            self.pos += k; n -= k
    def classify(self, op, args):
        mods = ""
        a = list(args)
        kind = None; W = set(); R = set(); extra = {}
        if op.startswith("v_mfma"):
            kind = "mfma"; W = regs_of(a[0]); extra["A"] = regs_of(a[1]) | regs_of(a[2]); extra["C"] = regs_of(a[3]); R = extra["A"] | extra["C"]
        elif op.startswith("v_cmp"):
            kind = "valu"; W = regs_of(a[0]); R = set().union(*[regs_of(x) for x in a[1:]])
            if op.startswith("v_cmpx"): W |= {("exec", 0)}
        elif op.startswith("v_"):
            kind = "valu"; W = regs_of(a[0]); R = set().union(*[regs_of(x) for x in a[1:]]) if len(a) > 1 else set()
            if op in ("v_fmac_f32", "v_pk_fmac_f16", "v_dot2c_f32_bf16"): R |= W
            if op.startswith("v_permlane"): W |= regs_of(a[1]); R |= regs_of(a[0])
            if op.startswith("v_add_co") or op.startswith("v_sub_co") or op.startswith("v_addc_co"): W |= regs_of(a[1])
            if any(op.startswith(t) for t in TRANS): extra["trans"] = True
            if any(("row_" in x or "quad_perm" in x or "wave_" in x) for x in a): extra["dpp"] = True
        elif op.startswith("ds_"):
            kind = "ds"
            if op.startswith("ds_read") or op.startswith("ds_bpermute") or op.startswith("ds_swizzle") or op.startswith("ds_permute") or "_rtn" in op:
                W = regs_of(a[0]); R = set().union(*[regs_of(x) for x in a[1:]])
            else: R = set().union(*[regs_of(x) for x in a])
        elif op.startswith("buffer_") or op.startswith("global_"):
            kind = "vmem"
            allr = set().union(*[regs_of(x) for x in a])
            if "store" in op or ("atomic" in op and not any("sc0" in x for x in a)):
                R = allr
                data = a[0] if op.startswith("buffer_") else a[1]
                if len(regs_of(data)) >= 3: extra["wide"] = regs_of(data)
            elif any(x.strip().endswith("lds") or " lds" in x for x in a) or "load_lds" in op:
                R = allr | {("m0", 0)}; extra["dma"] = True
            else:
                W = regs_of(a[0]); R = set().union(*[regs_of(x) for x in a[1:]])
        elif op.startswith("s_"):
            kind = "salu"
            if op.startswith("s_cmp") or op.startswith("s_cbranch") or op in ("s_branch", "s_barrier", "s_waitcnt", "s_nop", "s_endpgm", "s_sleep", "s_setprio"):
                R = set().union(*[regs_of(x) for x in a]) if a else set()
            else:
                W = regs_of(a[0]); R = set().union(*[regs_of(x) for x in a[1:]]) if len(a) > 1 else set()
                if "saveexec" in op: W |= {("exec", 0)}
        else:
            raise ValueError(op)
        return kind, W, R, extra
    def need(self, op, kind, W, R, extra):
        n = 0
        for (pk, pW, pR, pe, ppos) in self.hist[-24:]:
            d = self.pos - ppos - 1
            req = 0
            pWv = {r for r in pW if r[0] in "va"}
            pWs = {r for r in pW if r[0] in ("s", "vcc")}
            if pk == "valu":
                if kind == "mfma" and pWv & R: req = max(req, 2)
                if pe.get("trans") and kind in ("valu",) and not extra.get("trans") and pWv & R: req = max(req, 1)
                if pe.get("trans") and kind in ("valu", "vmem", "ds") and pWv & R: req = max(req, 1)
                if kind == "valu" and pWs & R: req = max(req, 4 if op.startswith(("v_readlane", "v_writelane")) else 2)
                if kind == "vmem" and pWs & R: req = max(req, 5)
                if kind == "salu" and pWs & R: req = max(req, 1)
                if op.startswith(("v_readfirstlane", "v_readlane")) and pWv & R: req = max(req, 1)
                if (extra.get("dpp") or op.startswith("v_permlane")) and pWv & R: req = max(req, 2)
                if ("exec", 0) in pW and kind in ("valu", "mfma"): req = max(req, 5)
            if pk == "mfma":
                if kind == "mfma":
                    if pWv & extra["A"]: req = max(req, 8)
                    if pWv & extra["C"] and pWv != extra["C"]: req = max(req, 6)
                    if pWv & W and pWv != extra["C"]: req = max(req, 6)
                elif kind in ("valu", "vmem", "ds"):
                    if pWv & (R | W): req = max(req, 8)
                    if kind == "valu" and pe["C"] & W: req = max(req, 3)
            if pk == "salu" and ("m0", 0) in pW and extra.get("dma"): req = max(req, 1)
            if pk == "vmem" and pe.get("wide") and kind == "valu" and pe["wide"] & W: req = max(req, 2)
            if pk == "vmem" and pe.get("wide") and kind != "valu" and pe["wide"] & W: req = max(req, 1)
            n = max(n, req - d)
        return n
    def I(self, op, *args, tag=None):
        kind, W, R, extra = self.classify(op, args)
        n = self.need(op, kind, W, R, extra)
        if n > 0: self.nop(n)
        ops = []; mods = []
        for x in args:
            x = str(x)
            if re.match(r"^(offen|offset|lds|sc0|sc1|nt|off$|row_|quad_perm|bound_ctrl|bank_mask|op_sel|neg_|clamp|idxen|wave_)", x) and x != "off": mods.append(x)
            else: ops.append(x)
        self.lines.append("  " + op + " " + ", ".join(ops) + ((" " + " ".join(mods)) if mods else ""))
        self.hist.append((kind, W, R, extra, self.pos))
        self.pos += 1
        if kind == "vmem": self.vm.append(tag)
    def wait_vm(self, tag=None, n=None, lgkm=None):
        if n is None:
            if tag is None: n = 0
            else:
                idx = max([i for i, t in enumerate(self.vm) if t == tag], default=None)
                if idx is None:
                    n = None
                    import sys; print("note: wait for tag", tag, "needs nothing", file=sys.stderr)
                else: n = len(self.vm) - 1 - idx
        t = []
        if n is not None:
            assert n <= 63, n
            t.append(f"vmcnt({n})"); self.vm = self.vm[len(self.vm) - n:] if n > 0 else []
        if lgkm is not None: t.append(f"lgkmcnt({lgkm})")
        if t:
            self.lines.append("  s_waitcnt " + " ".join(t)); self.hist.append(("salu", set(), set(), {}, self.pos)); self.pos += 1
    def wait_lgkm(self, n=0):
        self.lines.append(f"  s_waitcnt lgkmcnt({n})"); self.hist.append(("salu", set(), set(), {}, self.pos)); self.pos += 1
    def barrier(self): self.I("s_barrier")
    def text(self): return "\n".join(self.lines) + "\n"
```

```python
import sys, struct
from asmlib import Asm, v, s

KNAME = "gated_mix__ssm_conv_h3__dense_activation_gelu__prompt_kernel"
STAMP = "--stamp" in sys.argv

FK, FW, FH, FY = 0x0000, 0x2000, 0x3000, 0x5000
WS_G = 0x10000
WS_KVT = 0x100000
WS_W2F = 0x400000
WS_YT = 0x600000
WS_HF = 0x900000
WS_DBG = 0xF00000
WS_SIZE = 0x1000000
SLOT = 28672
WOFF = 16384
PRE = 114688
KT = PRE
VT = PRE + 17664
XCH = 2 * SLOT
CV = [86016, 107264, 128512, 160512]
HCP = 4160
XR = 4 * HCP
QT = 149760
MISC = 160000
RED = 0
REDW = 21504
REDP = 336
LDS_BYTES = 163840

sWAVE, sXCD, sSLOT, sRB, sC, sR2, sC2 = 3, 4, 5, 6, 7, 8, 9
sT0, sT1, sT2, sT3, sT4, sT5 = 10, 11, 12, 13, 14, 15
pQ, pK, pV, pSK, pH, pD, pBX, pW1, pB1, pW2, pB2, pGW, pOUT, pDBG, pWS = [16 + 2 * i for i in range(15)]
SQ, SW1, SWS, SA, SB, SH, SO = 48, 52, 56, 60, 64, 68, 72
sNONCE = 76
sCW = 77
sSOFFX, sSOFFW, sLSLOT, sCNT = 78, 79, 80, 81
sM0X, sM0W = 82, 83
sCH, sNCH = 84, 85
sEX = 86
sTM = 88
sU0, sU1 = 90, 91
sPOLL = 92

a = Asm()
I = a.I

def f32bits(x): return struct.unpack("<I", struct.pack("<f", x))[0]

def srd(d, p, nbytes):
    I("s_mov_b32", s(d), s(p)); I("s_mov_b32", s(d + 1), s(p + 1))
    I("s_mov_b32", s(d + 2), hex(nbytes)); I("s_mov_b32", s(d + 3), "0x20000")

_stamp_n = [0]
def stamp(idx, vt0=250, vt1=251):
    if not STAMP: return
    I("s_memtime", s(sTM, 2)); a.wait_lgkm(0)
    I("s_lshl_b32", s(sT5), s(2), "3"); I("s_add_u32", s(sT5), s(sT5), s(sWAVE)); I("s_lshl_b32", s(sT5), s(sT5), "7")
    I("s_add_u32", s(sT5), s(sT5), hex(WS_DBG + idx * 4))
    I("v_mov_b32", v(vt0), s(sTM)); I("v_mov_b32", v(vt1), "0")
    I("buffer_store_dword", v(vt0), v(vt1), s(SWS, 4), s(sT5), "offen", tag="stamp")

_lbl = [0]
def newlbl(p):
    _lbl[0] += 1; return f"L_{p}_{_lbl[0]}"

def poll(vtmp, voff, soff_reg, vnonce):
    top = newlbl("poll"); done = newlbl("pdone")
    I("s_mov_b32", s(sPOLL), "0x40000")
    a.label(top)
    I("buffer_load_dword", v(vtmp), v(voff), s(SWS, 4), s(soff_reg), "offen", "sc1")
    a.wait_vm(n=0)
    I("v_cmp_ne_u32", "vcc", v(vtmp), v(vnonce))
    a.nop(1)
    I("s_cbranch_vccz", done)
    I("s_sleep", "1")
    I("s_sub_u32", s(sPOLL), s(sPOLL), "1")
    I("s_cmp_lg_u32", s(sPOLL), "0")
    I("s_cbranch_scc1", top)
    a.label(done)

def publish(vtmp_off, soff_reg, vnonce):
    a.wait_vm(n=0)
    I("v_mov_b32", v(vtmp_off), "0")
    I("s_mov_b64", "exec", "1")
    I("buffer_store_dword", v(vnonce), v(vtmp_off), s(SWS, 4), s(soff_reg), "offen", "sc1", tag="flag")
    I("s_mov_b64", "exec", "-1")

def unpack(dlo, src):
    I("v_lshlrev_b32", v(dlo), "16", v(src)); I("v_and_b32", v(dlo + 1), "0xffff0000", v(src))

def rnd_pair(p, t):
    I("v_cvt_pk_bf16_f32", v(t), v(p), v(p + 1)); unpack(p, t)

hdr = open("cdna_kernels/" + KNAME[:-7] + ".s.ref").read().split("; Override")[0]
a.raw(hdr.rstrip())
a.raw(f"; @launch grid=(256,1,1) block=(512,1,1) lds={LDS_BYTES}")
a.raw('.amdgcn_target "amdgcn-amd-amdhsa--gfx950"\n.text')
a.raw(f".globl {KNAME}\n.p2align 8\n.type {KNAME},@function\n{KNAME}:")
I("s_cmp_ge_u32", "s2", "256"); I("s_cbranch_scc1", "L_end")
I("s_load_dwordx16", s(16, 16), "s[0:1]", "0")
I("s_load_dwordx8", s(32, 8), "s[0:1]", "64")
I("s_load_dwordx4", s(40, 4), "s[0:1]", "96")
I("s_load_dwordx2", s(44, 2), "s[0:1]", "112")
vLANE = 1
I("v_and_b32", v(vLANE), "63", "v0")
I("v_lshrrev_b32", "v2", "6", "v0")
I("v_readfirstlane_b32", s(sWAVE), "v2")
I("s_and_b32", s(sXCD), "s2", "7"); I("s_lshr_b32", s(sSLOT), "s2", "3")
I("s_lshr_b32", s(sT0), s(sXCD), "1"); I("s_and_b32", s(sT1), s(sXCD), "1")
I("s_lshl_b32", s(sRB), s(sT0), "2"); I("s_lshr_b32", s(sT2), s(sSLOT), "3"); I("s_add_u32", s(sRB), s(sRB), s(sT2))
I("s_lshl_b32", s(sC), s(sT1), "3"); I("s_and_b32", s(sT2), s(sSLOT), "7"); I("s_add_u32", s(sC), s(sC), s(sT2))
I("s_lshl_b32", s(sR2), s(sT0), "3"); I("s_lshr_b32", s(sT2), s(sSLOT), "2"); I("s_add_u32", s(sR2), s(sR2), s(sT2))
I("s_lshl_b32", s(sC2), s(sT1), "2"); I("s_and_b32", s(sT2), s(sSLOT), "3"); I("s_add_u32", s(sC2), s(sC2), s(sT2))
I("s_and_b32", s(sCW), s(sWAVE), "3")
vN, vKG = 2, 3
I("v_and_b32", v(vN), "15", v(vLANE)); I("v_lshrrev_b32", v(vKG), "4", v(vLANE))
vL16 = 4
I("v_lshlrev_b32", v(vL16), "4", v(vLANE))
a.wait_lgkm(0)
srd(SWS, pWS, WS_SIZE)
srd(SQ, pQ, 2621440)
stamp(0)
I("s_cmp_ge_u32", s(sWAVE), "4"); I("s_cbranch_scc1", "L_C")

LOG2E = 1.4426950408889634
C0 = -2.0 * LOG2E * 0.7978845608028654
C1 = C0 * 0.044715

def gelu_block(src, bias, out, tmp, cst):
    c0, c1, one = cst, cst + 2, cst + 4
    I("v_mov_b32", v(c0), hex(f32bits(C0))); I("v_mov_b32", v(c0 + 1), hex(f32bits(C0)))
    I("v_mov_b32", v(c1), hex(f32bits(C1))); I("v_mov_b32", v(c1 + 1), hex(f32bits(C1)))
    I("v_mov_b32", v(one), "1.0"); I("v_mov_b32", v(one + 1), "1.0")
    for ft in range(6):
        P = [(src + ft * 4 + 2 * h, bias + ft * 2 + h, tmp + 6 * h, out + ft * 2 + h) for h in range(2)]
        steps = []
        def both(fn):
            for (x, b, t, o) in P: fn(x, b, t, o)
        both(lambda x, b, t, o: I("v_cvt_pk_bf16_f32", v(t + 4), v(x), v(x + 1)))
        both(lambda x, b, t, o: unpack(x, t + 4))
        both(lambda x, b, t, o: unpack(t, b))
        both(lambda x, b, t, o: I("v_pk_add_f32", v(x, 2), v(x, 2), v(t, 2)))
        both(lambda x, b, t, o: I("v_cvt_pk_bf16_f32", v(t + 4), v(x), v(x + 1)))
        both(lambda x, b, t, o: unpack(x, t + 4))
        both(lambda x, b, t, o: I("v_pk_mul_f32", v(t, 2), v(x, 2), v(x, 2)))
        both(lambda x, b, t, o: I("v_pk_fma_f32", v(t, 2), v(t, 2), v(c1, 2), v(c0, 2)))
        both(lambda x, b, t, o: I("v_pk_mul_f32", v(t, 2), v(t, 2), v(x, 2)))
        both(lambda x, b, t, o: (I("v_exp_f32", v(t), v(t)), I("v_exp_f32", v(t + 1), v(t + 1))))
        both(lambda x, b, t, o: I("v_pk_add_f32", v(t, 2), v(t, 2), v(one, 2)))
        both(lambda x, b, t, o: (I("v_rcp_f32", v(t), v(t)), I("v_rcp_f32", v(t + 1), v(t + 1))))
        both(lambda x, b, t, o: I("v_pk_mul_f32", v(t, 2), v(t, 2), v(x, 2)))
        both(lambda x, b, t, o: I("v_cvt_pk_bf16_f32", v(o), v(t), v(t + 1)))

def load_bias1(bias, vtmp):
    I("v_lshlrev_b32", v(vtmp), "3", v(vKG))
    I("s_mul_i32", s(sT0), s(sC), "192")
    I("s_add_u32", s(sT2), s(pB1), s(sT0)); I("s_addc_u32", s(sT3), s(pB1 + 1), "0")
    for ft in range(6):
        I("global_load_dwordx2", v(bias + 2 * ft, 2), v(vtmp), s(sT2, 2), f"offset:{32*ft}", tag="bias1")

def store_h(out, rt, vnonce, vtmp):
    I("s_lshl_b32", s(sT0), s(sRB), "1"); I("s_lshr_b32", s(sT1), s(sCW), "1"); I("s_add_u32", s(sT0), s(sT0), s(sT1))
    I("s_and_b32", s(sT1), s(sCW), "1"); I("s_lshl_b32", s(sT1), s(sT1), "1"); I("s_add_u32", s(sT1), s(sT1), str(rt))
    I("s_mul_i32", s(sT2), s(sT0), "48"); I("s_mul_i32", s(sT3), s(sC), "3"); I("s_add_u32", s(sT2), s(sT2), s(sT3))
    I("s_lshl_b32", s(sT2), s(sT2), "2"); I("s_add_u32", s(sT2), s(sT2), s(sT1)); I("s_lshl_b32", s(sT2), s(sT2), "10")
    I("s_add_u32", s(sT2), s(sT2), hex(WS_HF))
    for up in range(3):
        I("buffer_store_dwordx4", v(out + 4 * up, 4), v(vL16), s(SWS, 4), s(sT2), "offen", "sc1", tag="hst")
        if up < 2: I("s_add_u32", s(sT2), s(sT2), "4096")
    I("s_lshl_b32", s(sT0), s(sT0), "8"); I("s_lshl_b32", s(sT3), s(sC), "2"); I("s_add_u32", s(sT3), s(sT3), s(sT1))
    I("s_lshl_b32", s(sT3), s(sT3), "2"); I("s_add_u32", s(sT0), s(sT0), s(sT3)); I("s_add_u32", s(sT0), s(sT0), hex(FH))
    publish(vtmp, sT0, vnonce)

ACC = 64
XS = 112
WSR = 128
vXA0, vXA1, vWE, vWO = 8, 9, 10, 11
vCX0, vCX1, vCWE, vCWO = 12, 13, 14, 15
vBIAS = 176
vNONCE = 5
load_bias1(vBIAS, 6)
I("s_lshl_b32", s(sT0), s(sCW), "5")
I("v_add_u32", "v6", s(sT0), v(vN)); I("v_lshlrev_b32", "v6", "7", "v6")
I("v_lshrrev_b32", "v7", "1", v(vN)); I("v_xor_b32", "v7", "v7", v(vKG)); I("v_lshlrev_b32", "v7", "4", "v7")
I("v_add_u32", v(vXA0), "v6", "v7"); I("v_xor_b32", v(vXA1), "64", v(vXA0))
I("v_bfe_u32", "v6", v(vLANE), "2", "2"); I("v_lshl_add_u32", "v6", v(vKG), "3", "v6")
I("v_mul_u32_u24", "v6", "192", "v6")
I("v_and_b32", "v7", "3", v(vLANE)); I("v_lshl_add_u32", "v6", "v7", "3", "v6")
I("v_add_u32", "v6", hex(WOFF), "v6")
I("v_and_b32", "v7", "1", v(vKG)); I("v_lshlrev_b32", "v7", "5", "v7")
I("v_add_u32", v(vWE), "v6", "v7"); I("v_sub_u32", v(vWO), "v6", "v7")
for i in range(48): I("v_mov_b32", v(ACC + i), "0")
for i in range(8): I("v_mov_b32", v(XS + 8 + i), "0")
for i in range(24): I("v_mov_b32", v(WSR + 24 + i), "0")
I("s_mov_b32", s(sLSLOT), "0"); I("s_mov_b32", s(sCNT), "10")
for c_, l_ in ((vCX0, vXA0), (vCX1, vXA1), (vCWE, vWE), (vCWO, vWO)): I("v_mov_b32", v(c_), v(l_))

def g1_reads(st, ks):
    r = []
    for rt in range(2):
        r.append(("ds_read_b128", v(XS + (st * 2 + rt) * 4, 4), v(vCX1 if ks else vCX0), f"offset:{rt*2048}"))
    for ft in range(6):
        for hh in range(2):
            r.append(("ds_read_b64_tr_b16", v(WSR + (st * 6 + ft) * 4 + 2 * hh, 2), v(vCWO if ft & 1 else vCWE),
                      f"offset:{32*ft + ks*6144 + hh*768}"))
    return r
def g1_mfmas(st):
    m = []
    for ft in range(6):
        for rt in range(2):
            d = v(ACC + (rt * 6 + ft) * 4, 4)
            m.append(("v_mfma_f32_16x16x32_bf16", d, v(WSR + (st * 6 + ft) * 4, 4), v(XS + (st * 2 + rt) * 4, 4), d))
    return m
def interleave(r, m):
    n = max(len(r), len(m))
    for i in range(n):
        if i < len(r): I(*r[i])
        if i < len(m): I(*m[i])

a.nop(2)
a.label("L_g1")
a.barrier()
interleave(g1_reads(0, 0), g1_mfmas(1))
a.wait_lgkm(0)
interleave(g1_reads(1, 1), g1_mfmas(0))
I("s_add_u32", s(sLSLOT), s(sLSLOT), str(SLOT))
I("s_cmp_eq_u32", s(sLSLOT), str(4 * SLOT)); I("s_cselect_b32", s(sLSLOT), "0", s(sLSLOT))
I("s_sub_u32", s(sCNT), s(sCNT), "1")
a.wait_lgkm(0)
for c_, l_ in ((vCX0, vXA0), (vCX1, vXA1), (vCWE, vWE), (vCWO, vWO)): I("v_add_u32", v(c_), s(sLSLOT), v(l_))
I("s_cmp_lg_u32", s(sCNT), "0"); I("s_cbranch_scc1", "L_g1")
m = g1_mfmas(1)
for x in m[1::2]: I(*x)
for x in m[0::2]: I(*x)
stamp(1)
I("s_mul_i32", s(sT0), s(sCW), "6144"); I("s_add_u32", s(sT0), s(sT0), str(XCH))
I("v_add_u32", "v6", s(sT0), v(vL16))
for ft in range(6):
    I("ds_write_b128", "v6", v(ACC + (6 + ft) * 4, 4), f"offset:{ft*1024}")
I("v_mov_b32", "v7", str(MISC))
I("ds_read_b32", v(vNONCE), "v7")
a.wait_lgkm(0)
a.barrier()
a.wait_vm(tag="bias1")
gelu_block(ACC, vBIAS, 200, 188, 16)
store_h(200, 0, vNONCE, 6)
a.barrier()
stamp(2)

AC2 = 16
ST = 96
for i in range(80): I("v_mov_b32", v(AC2 + i), "0")
I("v_min_u32", "v6", "47", v(vLANE)); I("v_lshlrev_b32", "v6", "2", "v6")
I("s_lshl_b32", s(sT0), s(sC2), "8"); I("s_add_u32", s(sT0), s(sT0), hex(FW))
poll(7, 6, sT0, vNONCE)
I("v_lshlrev_b32", "v6", "2", v(vLANE))
I("s_lshl_b32", s(sT0), s(sR2), "8"); I("s_add_u32", s(sT0), s(sT0), hex(FH))
poll(7, 6, sT0, vNONCE)
stamp(3)
I("s_mul_i32", s(sU0), s(sR2), "48"); I("s_add_u32", s(sU0), s(sU0), s(sCW)); I("s_lshl_b32", s(sU0), s(sU0), "12")
I("s_add_u32", s(sU0), s(sU0), hex(WS_HF))
I("s_mul_i32", s(sU1), s(sC2), "48"); I("s_add_u32", s(sU1), s(sU1), s(sCW)); I("s_mul_i32", s(sU1), s(sU1), "5120")
I("s_add_u32", s(sU1), s(sU1), hex(WS_W2F))
vL16b = 6
I("v_add_u32", v(vL16b), "4096", v(vL16))
def g2_loads(st):
    b = ST + st * 36
    for rt in range(4):
        I("buffer_load_dwordx4", v(b + rt * 4, 4), v(vL16), s(SWS, 4), s(sU0), "offen", f"offset:{rt*1024}", "sc1", tag="g2")
    for ct in range(5):
        if ct < 4: I("buffer_load_dwordx4", v(b + 16 + ct * 4, 4), v(vL16), s(SWS, 4), s(sU1), "offen", f"offset:{ct*1024}", "sc1", tag="g2")
        else: I("buffer_load_dwordx4", v(b + 16 + ct * 4, 4), v(vL16b), s(SWS, 4), s(sU1), "offen", "sc1", tag="g2")
    I("s_add_u32", s(sU0), s(sU0), str(4 * 4096)); I("s_add_u32", s(sU1), s(sU1), str(4 * 5120))
def g2_mfmas(st):
    b = ST + st * 36
    for ct in range(5):
        for rt in range(4):
            d = v(AC2 + (rt * 5 + ct) * 4, 4)
            I("v_mfma_f32_16x16x32_bf16", d, v(b + 16 + ct * 4, 4), v(b + rt * 4, 4), d)
for st in range(3): g2_loads(st)
I("s_mov_b32", s(sCNT), "3")
a.label("L_g2")
for st in range(4):
    if st == 1:
        I("s_cmp_eq_u32", s(sCNT), "1")
        I("s_cselect_b32", s(sU0), "0x7f000000", s(sU0)); I("s_cselect_b32", s(sU1), "0x7f000000", s(sU1))
    g2_loads((st + 3) % 4)
    a.wait_vm(n=27)
    g2_mfmas(st)
I("s_sub_u32", s(sCNT), s(sCNT), "1"); I("s_cmp_lg_u32", s(sCNT), "0"); I("s_cbranch_scc1", "L_g2")
a.wait_vm(n=0)
stamp(4)
I("v_mul_u32_u24", "v6", str(REDP), v(vN)); I("v_lshl_add_u32", "v6", v(vKG), "4", "v6")
I("s_mul_i32", s(sT0), s(sCW), str(REDW)); I("v_add_u32", "v6", s(sT0), "v6")
a.nop(8)
for rt in range(4):
    for ct in range(5):
        I("ds_write_b128", "v6", v(AC2 + (rt * 5 + ct) * 4, 4), f"offset:{RED + rt*16*REDP + ct*64}")
I("s_branch", "L_final")

a.label("L_C")
a.vm = []
srd(SW1, pW1, 640 * 3072)
vDX = 8
vDW = 12
I("v_lshrrev_b32", "v6", "3", v(vLANE))
I("v_and_b32", "v7", "7", v(vLANE))
I("s_lshl_b32", s(sT0), s(sRB), "7"); I("s_lshl_b32", s(sT1), s(sCW), "5"); I("s_add_u32", s(sT0), s(sT0), s(sT1))
for jj in range(4):
    I("v_add_u32", "v16", str(8 * jj), "v6")
    I("v_bfe_u32", "v17", "v16", "1", "3"); I("v_xor_b32", "v17", "v17", "v7")
    I("v_add_u32", "v16", s(sT0), "v16"); I("v_mul_u32_u24", "v16", "1280", "v16")
    I("v_lshl_add_u32", "v16", "v17", "4", "v16")
    I("v_subrev_u32", v(vDX + jj), str(1024 * jj), "v16")
for i in range(3):
    I("v_add_u32", "v16", str(64 * i), v(vLANE))
    I("v_mul_u32_u24", "v17", "5462", "v16"); I("v_lshrrev_b32", "v17", "16", "v17")
    I("v_mul_u32_u24", "v18", "12", "v17"); I("v_sub_u32", "v18", "v16", "v18")
    I("v_bfe_u32", "v19", "v17", "3", "1"); I("v_lshlrev_b32", "v19", "1", "v19"); I("v_xor_b32", "v18", "v18", "v19")
    I("v_mul_u32_u24", "v17", "3072", "v17"); I("v_lshl_add_u32", "v17", "v18", "4", "v17")
    I("v_subrev_u32", v(vDW + i), str(1024 * i), "v17")
I("s_mov_b32", s(sSOFFX), "0")
I("s_mul_i32", s(sSOFFW), s(sCW), str(16 * 3072)); I("s_mul_i32", s(sT0), s(sC), "192"); I("s_add_u32", s(sSOFFW), s(sSOFFW), s(sT0))
I("s_lshl_b32", s(sM0X), s(sCW), "12")
I("s_mul_i32", s(sM0W), s(sCW), "3072"); I("s_add_u32", s(sM0W), s(sM0W), str(WOFF))

def dma_stage(st):
    sl = (st % 4) * SLOT
    I("s_add_u32", "m0", s(sM0X), str(sl))
    for jj in range(4):
        I("buffer_load_dwordx4", v(vDX + jj), s(SQ, 4), s(sSOFFX), "offen", f"offset:{1024*jj}", "lds", tag=f"st{st}")
    I("s_add_u32", "m0", s(sM0W), str(sl))
    for i in range(3):
        I("buffer_load_dwordx4", v(vDW + i), s(SW1, 4), s(sSOFFW), "offen", f"offset:{1024*i}", "lds", tag=f"st{st}")
    I("s_add_u32", s(sSOFFX), s(sSOFFX), "128"); I("s_add_u32", s(sSOFFW), s(sSOFFW), str(64 * 3072))

def stage_barrier(st):
    a.wait_vm(tag=f"st{st}")
    a.barrier()
    if 1 <= st <= 6: dma_stage(st + 3)

dma_stage(0)
vNC = 5
I("s_cmp_lg_u32", "s2", "0"); I("s_cbranch_scc1", "L_nonce_skip")
I("s_cmp_lg_u32", s(sCW), "0"); I("s_cbranch_scc1", "L_nonce_skip")
I("s_memrealtime", s(sTM, 2)); a.wait_lgkm(0)
I("s_mul_i32", s(sT0), s(sTM), "0x9E3779B1"); I("s_xor_b32", s(sT0), s(sT0), s(sTM + 1)); I("s_or_b32", s(sT0), s(sT0), "1")
I("v_mov_b32", "v16", s(sT0)); I("v_mov_b32", "v17", "0")
a.lines.append("  global_store_dword v17, v16, s[42:43] sc1")
a.label("L_nonce_skip")

I("s_cmp_ge_u32", s(sSLOT), "20"); I("s_cbranch_scc1", "L_CW")

vG = 20
def g_loads():
    I("s_lshl_b32", s(sT0), s(sRB), "1"); I("s_lshr_b32", s(sT1), s(sCW), "1"); I("s_add_u32", s(sT0), s(sT0), s(sT1))
    I("s_lshl_b32", s(sT0), s(sT0), "6"); I("s_lshl_b32", s(sT1), s(sC), "2"); I("s_add_u32", s(sT0), s(sT0), s(sT1))
    I("s_and_b32", s(sT1), s(sCW), "1"); I("s_lshl_b32", s(sT1), s(sT1), "1"); I("s_add_u32", s(sT0), s(sT0), s(sT1))
    I("v_lshrrev_b32", v(vG), "5", v(vLANE)); I("v_add_u32", v(vG), s(sT0), v(vG))
    I("v_and_b32", v(vG + 1), "31", v(vLANE)); I("v_lshlrev_b32", v(vG + 1), "3", v(vG + 1))
    I("v_mul_u32_u24", v(vG + 2), "1280", v(vG)); I("v_add_u32", v(vG + 2), v(vG + 2), v(vG + 1))
    for i in range(5):
        I("global_load_dwordx2", v(vG + 4 + 2 * i, 2), v(vG + 2), s(pQ, 2), f"offset:{256*i}", tag="g")
        I("global_load_dwordx2", v(vG + 14 + 2 * i, 2), v(vG + 1), s(pGW, 2), f"offset:{256*i}", tag="g")
def g_compute():
    a.wait_vm(tag="g")
    acc, x, w, t = vG + 24, vG + 26, vG + 28, vG + 30
    I("v_mov_b32", v(acc), "0"); I("v_mov_b32", v(acc + 1), "0")
    for i in range(10):
        unpack(x, vG + 4 + i); unpack(w, vG + 14 + i)
        I("v_pk_mul_f32", v(x, 2), v(x, 2), v(w, 2))
        rnd_pair(x, t)
        I("v_pk_add_f32", v(acc, 2), v(acc, 2), v(x, 2))
    I("v_add_f32", v(acc), v(acc), v(acc + 1))
    for off in (0x041F, 0x081F, 0x101F, 0x201F, 0x401F):
        I("ds_swizzle_b32", v(t), v(acc), f"offset:{off}"); a.wait_lgkm(0)
        I("v_add_f32", v(acc), v(acc), v(t))
    I("v_cvt_pk_bf16_f32", v(t), v(acc), v(acc)); I("v_lshlrev_b32", v(acc), "16", v(t))
    I("v_mul_f32", v(acc), hex(f32bits(-LOG2E)), v(acc))
    I("v_exp_f32", v(acc), v(acc)); I("v_add_f32", v(acc), "1.0", v(acc)); I("v_rcp_f32", v(acc), v(acc))
    I("v_cvt_pk_bf16_f32", v(t), v(acc), v(acc)); I("v_lshlrev_b32", v(acc), "16", v(t))
    I("v_lshlrev_b32", v(t), "2", v(vG))
    I("s_mov_b32", s(sT0), hex(WS_G))
    I("s_mov_b32", s(sEX), "1"); I("s_mov_b32", s(sEX + 1), "1"); I("s_mov_b64", "exec", s(sEX, 2))
    I("buffer_store_dword", v(acc), v(t), s(SWS, 4), s(sT0), "offen", "sc1", tag="gst")
    I("s_mov_b64", "exec", "-1")

def qt_dma():
    I("s_lshl_b32", s(sT2), s(sR2), "6"); I("s_mul_i32", s(sT2), s(sT2), "1280"); I("s_mul_i32", s(sT3), s(sC2), "160")
    I("s_add_u32", s(sT2), s(sT2), s(sT3))
    for i in range(3):
        I("s_add_u32", s(sT0), s(sCW), str(4 * i)); I("s_min_u32", s(sT0), s(sT0), "9")
        I("s_lshl_b32", s(sT1), s(sT0), "6")
        I("v_add_u32", "v16", s(sT1), v(vLANE))
        I("v_mul_u32_u24", "v17", "6554", "v16"); I("v_lshrrev_b32", "v17", "16", "v17")
        I("v_mul_u32_u24", "v18", "10", "v17"); I("v_sub_u32", "v18", "v16", "v18")
        I("v_mul_u32_u24", "v17", "1280", "v17"); I("v_lshl_add_u32", "v17", "v18", "4", "v17")
        I("s_lshl_b32", s(sT0), s(sT0), "10"); I("s_add_u32", "m0", s(sT0), str(QT))
        I("buffer_load_dwordx4", "v17", s(SQ, 4), s(sT2), "offen", "lds", tag="qt")

def nonce_get():
    skip = newlbl("ncs"); top = newlbl("nct"); done = newlbl("ncd")
    I("s_cmp_lg_u32", s(sCW), "0"); I("s_cbranch_scc1", skip)
    I("s_mov_b32", s(sPOLL), "0x40000")
    I("v_mov_b32", "v17", "0")
    a.label(top)
    a.lines.append("  global_load_dword v16, v17, s[42:43] sc1")
    a.lines.append("  s_waitcnt vmcnt(0)")
    I("v_cmp_eq_u32", "vcc", "0", "v16"); a.nop(1)
    I("s_cbranch_vccz", done)
    I("s_sleep", "1"); I("s_sub_u32", s(sPOLL), s(sPOLL), "1"); I("s_cmp_lg_u32", s(sPOLL), "0"); I("s_cbranch_scc1", top)
    a.label(done)
    I("v_mov_b32", "v17", str(MISC)); I("ds_write_b32", "v17", "v16"); a.wait_lgkm(0)
    a.label(skip)

vHC = 128
def chan_setup():
    I("s_lshr_b32", s(sT0), "s2", "1"); I("s_mul_i32", s(sCH), s(sT0), "5")
    I("s_and_b32", s(sT0), "s2", "1"); I("s_mul_i32", s(sT1), s(sT0), "3"); I("s_add_u32", s(sCH), s(sCH), s(sT1))
    I("s_sub_u32", s(sNCH), "3", s(sT0))
    I("s_add_u32", s(sCH), s(sCH), s(sCW))
    I("s_min_u32", s(sCH), s(sCH), "639")
def h_loads():
    srd(SH, pH, 640 * 4096)
    I("s_lshl_b32", s(sT0), s(sCH), "12")
    for blk in range(4):
        I("buffer_load_dwordx4", v(vHC + (0 * 4 + blk) * 4, 4), v(vL16), s(SH, 4), s(sT0), "offen", f"offset:{1024*blk}", tag="h")
        I("buffer_load_dwordx4", v(vHC + (2 * 4 + blk) * 4, 4), v(vL16), s(SH, 4), s(sT0), "offen", f"offset:{1024*blk+4}", tag="h")
        I("buffer_load_dwordx4", v(vHC + (3 * 4 + blk) * 4, 4), v(vL16), s(SH, 4), s(sT0), "offen", f"offset:{1024*blk+8}", tag="h")
def h_shift():
    a.wait_vm(tag="h")
    for blk in range(4):
        for k in range(4):
            r0, r1, r2_, r3 = [vHC + (c * 4 + blk) * 4 + k for c in range(4)]
            I("v_alignbit_b32", v(r1), v(r2_), v(r0), "16")
            I("v_alignbit_b32", v(r3), v(r3), v(r2_), "16")

srd(SA, pK, 2621440); srd(SB, pV, 2621440)
sTT, sCB = sU0, sU1
I("s_mul_i32", s(sT0), s(sXCD), "20"); I("s_add_u32", s(sT0), s(sT0), s(sSLOT))
I("s_mul_i32", s(sTT), s(sT0), "52429"); I("s_lshr_b32", s(sTT), s(sTT), "18")
I("s_mul_i32", s(sT1), s(sTT), "5"); I("s_sub_u32", s(sCB), s(sT0), s(sT1))
I("v_mul_u32_u24", "v16", "1280", v(vKG)); I("v_lshl_add_u32", "v16", v(vN), "4", "v16")
I("s_mul_i32", s(sT0), s(sTT), str(64 * 1280)); I("s_lshl_b32", s(sT1), s(sCB), "8"); I("s_add_u32", s(sT0), s(sT0), s(sT1))
I("v_add_u32", "v16", s(sT0), "v16")
I("v_subrev_u32", "v17", str(4 * 1280), "v16")
I("s_mov_b32", "m0", str(KT))
I("buffer_load_dwordx4", "v17", s(SA, 4), "0", "offen", "lds", tag="kv")
for i in range(4):
    I("s_lshl_b32", s(sT0), s(sCW), "2"); I("s_add_u32", s(sT0), s(sT0), str(i))
    I("s_mul_i32", s(sT1), s(sT0), str(4 * 1280))
    I("s_add_u32", s(sT2), s(sT0), "2"); I("s_lshr_b32", s(sT2), s(sT2), "1"); I("s_lshl_b32", s(sT2), s(sT2), "4")
    I("s_lshl_b32", s(sT3), s(sT0), "10"); I("s_add_u32", s(sT2), s(sT2), s(sT3)); I("s_add_u32", "m0", s(sT2), str(KT + 1024))
    I("buffer_load_dwordx4", "v16", s(SA, 4), s(sT1), "offen", "lds", tag="kv")
    I("s_lshr_b32", s(sT2), s(sT0), "1"); I("s_lshl_b32", s(sT2), s(sT2), "4"); I("s_add_u32", s(sT2), s(sT2), s(sT3))
    I("s_add_u32", "m0", s(sT2), str(VT))
    I("buffer_load_dwordx4", "v16", s(SB, 4), s(sT1), "offen", "lds", tag="kv")
vSKR = 64
I("v_lshrrev_b32", "v16", "3", v(vLANE)); I("v_lshlrev_b32", "v16", "4", "v16")
I("s_lshl_b32", s(sT0), s(sCB), "10"); I("s_lshl_b32", s(sT1), s(sCW), "8"); I("s_add_u32", s(sT0), s(sT0), s(sT1))
I("v_add_u32", "v16", s(sT0), "v16")
for rho in range(2):
    I("global_load_dwordx4", v(vSKR + 4 * rho, 4), "v16", s(pSK, 2), f"offset:{128*rho}", tag="sk")
g_loads()
dma_stage(1); dma_stage(2); dma_stage(3)
qt_dma()
chan_setup()

def kv_round(rho, mid):
    KR, VR = 72, 84
    KU = 96
    S = 118
    P, Q, T, VU = 192, 194, 196, 198
    OUT = 200
    ad = 16
    I("v_and_b32", v(ad), "7", v(vLANE)); I("v_mul_u32_u24", v(ad), "2064", v(ad))
    I("v_lshrrev_b32", v(ad + 1), "3", v(vLANE)); I("v_lshl_add_u32", v(ad), v(ad + 1), "2", v(ad))
    I("s_lshl_b32", s(sT0), s(sCW), "6"); I("s_add_u32", s(sT0), s(sT0), str(32 * rho + KT)); I("v_add_u32", v(ad), s(sT0), v(ad))
    for i in range(11):
        I("ds_read_b32", v(KR + i), v(ad), f"offset:{(1+i)*256 + ((5+i)>>3)*16}")
    for i in range(8):
        I("ds_read_b32", v(VR + i), v(ad), f"offset:{VT-KT + i*256}")
    r = vSKR + 4 * rho
    for j in range(4):
        for ch in range(2):
            src = r + 2 * ch + (j >> 1)
            if j & 1: I("v_and_b32", v(S + 2 * j + ch), "0xffff0000", v(src))
            else: I("v_lshlrev_b32", v(S + 2 * j + ch), "16", v(src))
    a.wait_lgkm(0)
    for i in range(11): unpack(KU + 2 * i, KR + i)
    for t in range(8):
        I("v_pk_mul_f32", v(P, 2), v(KU + 2 * (t + 0), 2), v(S + 6, 2)); rnd_pair(P, T)
        for j in (2, 1, 0):
            I("v_pk_mul_f32", v(Q, 2), v(KU + 2 * (t + 3 - j), 2), v(S + 2 * j, 2)); rnd_pair(Q, T)
            I("v_pk_add_f32", v(P, 2), v(P, 2), v(Q, 2)); rnd_pair(P, T)
        unpack(VU, VR + t)
        I("v_pk_mul_f32", v(P, 2), v(P, 2), v(VU, 2))
        I("v_cvt_pk_bf16_f32", v(OUT + t), v(P), v(P + 1))
        if t == 3: mid()
    I("s_mov_b32", s(sT0), "0x05040100"); I("s_mov_b32", s(sT1), "0x07060302")
    for ch in range(2):
        for j in range(4):
            I("v_perm_b32", v(OUT + 8 + 4 * ch + j), v(OUT + 6 - 2 * j), v(OUT + 7 - 2 * j), s(sT0 + ch))
    I("v_lshrrev_b32", v(ad), "3", v(vLANE)); I("v_lshlrev_b32", v(ad), "13", v(ad))
    I("v_and_b32", v(ad + 1), "7", v(vLANE)); I("v_lshlrev_b32", v(ad + 1), "4", v(ad + 1))
    I("v_sub_u32", v(ad), v(ad), v(ad + 1)); I("v_add_u32", v(ad), "112", v(ad))
    I("v_add_u32", v(ad + 1), "4096", v(ad))
    I("s_lshl_b32", s(sT0), s(sCB), "7"); I("s_lshl_b32", s(sT1), s(sCW), "5"); I("s_add_u32", s(sT0), s(sT0), s(sT1))
    I("s_add_u32", s(sT0), s(sT0), str(16 * rho)); I("s_lshl_b32", s(sT0), s(sT0), "12")
    I("s_lshl_b32", s(sT1), s(sTT), "7"); I("s_sub_u32", s(sT0), s(sT0), s(sT1)); I("s_add_u32", s(sT0), s(sT0), hex(WS_KVT + 4080 - 112))
    I("buffer_store_dwordx4", v(OUT + 8, 4), v(ad), s(SWS, 4), s(sT0), "offen", "sc1", tag="kvst")
    I("buffer_store_dwordx4", v(OUT + 12, 4), v(ad + 1), s(SWS, 4), s(sT0), "offen", "sc1", tag="kvst")

def first_barrier():
    idx = max(i for i, t in enumerate(a.vm) if t == "st0"); n = len(a.vm) - 1 - idx
    a.wait_vm(n=n)
    a.barrier()

first_barrier()
nonce_get()
a.vm = a.vm
g_compute()
stage_barrier(1)
I("v_mov_b32", "v17", str(MISC)); I("ds_read_b32", v(vNC), "v17")
a.wait_vm(tag="sk")
kv_round(0, lambda: stage_barrier(2))
stage_barrier(3)
kv_round(1, lambda: stage_barrier(4))
a.wait_vm(tag="kvst")
I("s_lshl_b32", s(sT0), s(sCB), "2"); I("s_add_u32", s(sT0), s(sT0), s(sCW)); I("s_lshl_b32", s(sT0), s(sT0), "8")
I("s_lshl_b32", s(sT1), s(sTT), "2"); I("s_add_u32", s(sT0), s(sT0), s(sT1)); I("s_add_u32", s(sT0), s(sT0), hex(FK))
I("v_mov_b32", "v16", "0"); I("s_mov_b64", "exec", "1")
I("buffer_store_dword", v(vNC), "v16", s(SWS, 4), s(sT0), "offen", "sc1", tag="flag")
I("s_mov_b64", "exec", "-1")
stamp(5)
stage_barrier(5)
h_loads()
stage_barrier(6)
vmK = list(a.vm)
I("s_branch", "L_Cjoin")

a.label("L_CW")
a.vm = ["st0"] * 7
srd(SA, pW2, 1536 * 1280)
sUU, sC2W = sU0, sU1
I("s_mul_i32", s(sT0), s(sXCD), "12"); I("s_add_u32", s(sT0), s(sT0), s(sSLOT)); I("s_sub_u32", s(sT0), s(sT0), "20")
I("s_lshr_b32", s(sUU), s(sT0), "1"); I("s_and_b32", s(sT0), s(sT0), "1"); I("s_lshl_b32", s(sT0), s(sT0), "2")
I("s_add_u32", s(sC2W), s(sT0), s(sCW))
I("s_mul_i32", s(sT2), s(sUU), str(32 * 1280)); I("s_mul_i32", s(sT3), s(sC2W), "160"); I("s_add_u32", s(sT2), s(sT2), s(sT3))
I("s_mul_i32", s(sT4), s(sCW), "5120"); I("s_add_u32", s(sT4), s(sT4), str(PRE))
for i in range(5):
    I("v_add_u32", "v16", str(64 * i), v(vLANE))
    I("v_mul_u32_u24", "v17", "6554", "v16"); I("v_lshrrev_b32", "v17", "16", "v17")
    I("v_mul_u32_u24", "v18", "10", "v17"); I("v_sub_u32", "v18", "v16", "v18")
    I("v_mul_u32_u24", "v17", "1280", "v17"); I("v_lshl_add_u32", "v17", "v18", "4", "v17")
    I("s_add_u32", "m0", s(sT4), str(1024 * i))
    I("buffer_load_dwordx4", "v17", s(SA, 4), s(sT2), "offen", "lds", tag="w2")
g_loads()
dma_stage(1); dma_stage(2); dma_stage(3)
qt_dma()
chan_setup()
first_barrier()
nonce_get()
g_compute()
stage_barrier(1)
I("v_mov_b32", "v17", str(MISC)); I("ds_read_b32", v(vNC), "v17")
I("v_lshrrev_b32", "v16", "2", v(vLANE)); I("v_mul_u32_u24", "v16", "160", "v16")
I("v_and_b32", "v17", "3", v(vLANE)); I("v_lshl_add_u32", "v16", "v17", "3", "v16")
I("s_mul_i32", s(sT4), s(sCW), "5120"); I("s_add_u32", s(sT4), s(sT4), str(PRE)); I("v_add_u32", "v16", s(sT4), "v16")
for ct in range(5):
    for hh in range(2):
        I("ds_read_b64_tr_b16", v(64 + 4 * ct + 2 * hh, 2), "v16", f"offset:{32*ct + hh*16*160}")
a.wait_lgkm(0)
I("s_mul_i32", s(sT0), s(sC2W), "48"); I("s_add_u32", s(sT0), s(sT0), s(sUU)); I("s_mul_i32", s(sT0), s(sT0), "5120")
I("s_add_u32", s(sT0), s(sT0), hex(WS_W2F)); I("s_add_u32", s(sT1), s(sT0), "4096")
for ct in range(5):
    if ct < 4: I("buffer_store_dwordx4", v(64 + 4 * ct, 4), v(vL16), s(SWS, 4), s(sT0), "offen", f"offset:{1024*ct}", "sc1", tag="w2st")
    else: I("buffer_store_dwordx4", v(64 + 4 * ct, 4), v(vL16), s(SWS, 4), s(sT1), "offen", "sc1", tag="w2st")
stage_barrier(2)
a.wait_vm(tag="w2st")
I("s_lshl_b32", s(sT0), s(sC2W), "8"); I("s_lshl_b32", s(sT1), s(sUU), "2"); I("s_add_u32", s(sT0), s(sT0), s(sT1))
I("s_add_u32", s(sT0), s(sT0), hex(FW))
I("v_mov_b32", "v16", "0"); I("s_mov_b64", "exec", "1")
I("buffer_store_dword", v(vNC), "v16", s(SWS, 4), s(sT0), "offen", "sc1", tag="flag")
I("s_mov_b64", "exec", "-1")
stamp(5)
stage_barrier(3); stage_barrier(4); stage_barrier(5)
h_loads()
stage_barrier(6)
assert a.vm[-26:] == vmK[-26:], (a.vm, vmK)
a.vm = a.vm[-26:]

a.label("L_Cjoin")
a.wait_vm(n=26); a.barrier()
load_bias1(vBIAS + 40, 16)
stage_barrier(8)
h_shift()
stage_barrier(9)
I("s_cmp_ge_u32", s(sCW), s(sNCH)); I("s_cbranch_scc1", "L_nohw")
sCVB = sSOFFX
I("s_mul_i32", s(sCVB), s(sCW), str(CV[1] - CV[0])); I("s_add_u32", s(sCVB), s(sCVB), str(CV[0]))
I("v_add_u32", "v16", s(sCVB), v(vL16))
for c in range(4):
    for blk in range(4):
        I("ds_write_b128", "v16", v(vHC + (c * 4 + blk) * 4, 4), f"offset:{c*HCP + 32 + 1024*blk}")
for i in range(4): I("v_mov_b32", v(20 + i), "0")
I("s_mov_b64", "exec", "0x3fffffff")
I("ds_write_b128", "v16", v(20, 4), f"offset:{XR + 4096}")
I("s_mov_b64", "exec", "3")
for c in range(4): I("ds_write_b128", "v16", v(20, 4), f"offset:{c*HCP}")
I("s_mov_b64", "exec", "1")
I("v_lshlrev_b32", "v24", "16", v(vHC))
I("ds_write_b32", "v16", "v24", f"offset:{1*HCP + 28}")
I("ds_write_b32", "v16", v(vHC), f"offset:{2*HCP + 28}")
I("ds_write_b32", "v16", "v24", f"offset:{3*HCP + 24}")
I("ds_write_b32", "v16", v(vHC + 16), f"offset:{3*HCP + 28}")
I("s_mov_b64", "exec", "-1")
a.label("L_nohw")
a.wait_lgkm(0)
a.barrier()
I("s_mul_i32", s(sT0), s(sCW), "6144"); I("s_add_u32", s(sT0), s(sT0), str(XCH))
I("v_add_u32", "v6", s(sT0), v(vL16))
for ft in range(6): I("ds_read_b128", v(ACC + ft * 4, 4), "v6", f"offset:{ft*1024}")
a.wait_vm(tag="bias1", lgkm=0)
gelu_block(ACC, vBIAS + 40, 200, 188, 16)
store_h(200, 1, vNC, 6)
a.barrier()
stamp(2)

I("s_cmp_ge_u32", s(sCW), s(sNCH)); I("s_cbranch_scc1", "L_noconv")
I("v_and_b32", "v6", "31", v(vLANE)); I("v_lshlrev_b32", "v6", "2", "v6")
I("s_lshr_b32", s(sT0), s(sCH), "5"); I("s_lshl_b32", s(sT0), s(sT0), "8"); I("s_add_u32", s(sT0), s(sT0), hex(FK))
poll(7, 6, sT0, vNC)
I("s_lshl_b32", s(sT0), s(sCH), "12"); I("s_add_u32", s(sT0), s(sT0), hex(WS_KVT))
for blk in range(4):
    I("buffer_load_dwordx4", v(64 + 4 * blk, 4), v(vL16), s(SWS, 4), s(sT0), "offen", f"offset:{1024*blk}", "sc1", tag="xr")
I("s_lshl_b32", s(sT0), s(sCH), "1"); I("v_mov_b32", "v6", s(sT0))
I("global_load_ushort", "v7", "v6", s(pD, 2), tag="D")
YA = 16
for i in range(32): I("v_mov_b32", v(YA + i), "0")
vAA, vBA = 8, 9
I("v_lshl_add_u32", "v10", v(vKG), "3", v(vN)); I("v_add_u32", "v10", "1", "v10")
I("v_and_b32", "v11", "3", "v10"); I("v_sub_u32", "v10", "v10", "v11"); I("v_lshlrev_b32", "v10", "1", "v10")
I("v_mul_u32_u24", "v11", str(HCP), "v11"); I("v_add3_u32", v(vAA), "v10", "v11", s(sCVB))
I("v_lshlrev_b32", "v10", "5", v(vN)); I("v_lshlrev_b32", "v11", "4", v(vKG)); I("v_sub_u32", "v10", "v11", "v10")
I("v_add_u32", "v10", str(XR + 480), "v10"); I("v_add_u32", v(vBA), s(sCVB), "v10")
I("v_add_u32", "v10", s(sCVB), v(vL16))
a.wait_vm(tag="xr")
for blk in range(4): I("ds_write_b128", "v10", v(64 + 4 * blk, 4), f"offset:{XR + 1024*blk}")
a.wait_lgkm(0)
stamp(3)
FA = [64, 128]; FB = [96, 160]
def cv_reads(st, extra):
    r = []
    for x in range(8):
        r.append(("ds_read_b64", v(FA[st] + 4 * x, 2), v(vAA), f"offset:{512*x + extra}"))
        r.append(("ds_read_b64", v(FA[st] + 4 * x + 2, 2), v(vAA), f"offset:{512*x + extra + 8}"))
        r.append(("ds_read_b128", v(FB[st] + 4 * x, 4), v(vBA), f"offset:{3584 - 512*x + extra}"))
    return r
def cv_mfmas(st):
    m = []
    for pa in range(8):
        for qa in range(8 - pa):
            d = v(YA + 4 * (pa + qa), 4)
            m.append(("v_mfma_f32_16x16x32_bf16", d, v(FA[st] + 4 * pa, 4), v(FB[st] + 4 * qa, 4), d))
    return m
for x in cv_reads(0, 0): I(*x)
I("s_mov_b32", s(sCNT), "4")
a.wait_lgkm(0)
a.label("L_cv")
interleave(cv_reads(1, 64), cv_mfmas(0))
a.wait_lgkm(0)
interleave(cv_reads(0, 128), cv_mfmas(1))
I("v_add_u32", v(vAA), "128", v(vAA)); I("v_add_u32", v(vBA), "128", v(vBA))
I("s_sub_u32", s(sCNT), s(sCNT), "1"); I("s_cmp_lg_u32", s(sCNT), "0")
a.wait_lgkm(0)
I("s_cbranch_scc1", "L_cv")
stamp(4)
I("v_lshlrev_b32", "v10", "5", v(vN)); I("v_lshl_add_u32", "v10", v(vKG), "3", "v10")
I("v_sub_u32", "v11", str(XR + 4088 - 3584), "v10"); I("v_add_u32", "v11", s(sCVB), "v11")
I("v_add_u32", "v10", s(sCVB), "v10")
for a_ in range(8): I("ds_read_b64", v(64 + 2 * a_, 2), "v11", f"offset:{3584 - 512*a_}")
a.wait_vm(tag="D", lgkm=0)
I("v_lshlrev_b32", "v12", "16", "v7"); I("v_mov_b32", "v13", "v12")
for a_ in range(8):
    e = 64 + 2 * a_; y = YA + 4 * a_
    K0, K1, T = 96, 98, 100
    I("v_and_b32", v(K0), "0xffff0000", v(e + 1)); I("v_lshlrev_b32", v(K0 + 1), "16", v(e + 1))
    I("v_and_b32", v(K1), "0xffff0000", v(e)); I("v_lshlrev_b32", v(K1 + 1), "16", v(e))
    I("v_pk_mul_f32", v(K0, 2), v(K0, 2), "v[12:13]"); I("v_pk_mul_f32", v(K1, 2), v(K1, 2), "v[12:13]")
    rnd_pair(K0, T); rnd_pair(K1, T); rnd_pair(y, T); rnd_pair(y + 2, T)
    I("v_pk_add_f32", v(y, 2), v(y, 2), v(K0, 2)); I("v_pk_add_f32", v(y + 2, 2), v(y + 2, 2), v(K1, 2))
    I("v_cvt_pk_bf16_f32", v(e), v(y), v(y + 1)); I("v_cvt_pk_bf16_f32", v(e + 1), v(y + 2), v(y + 3))
    I("ds_write_b64", "v10", v(e, 2), f"offset:{512*a_}")
a.wait_lgkm(0)
I("v_add_u32", "v10", s(sCVB), v(vL16))
for blk in range(4): I("ds_read_b128", v(96 + 4 * blk, 4), "v10", f"offset:{1024*blk}")
I("s_lshl_b32", s(sT0), s(sCH), "12"); I("s_add_u32", s(sT0), s(sT0), hex(WS_YT))
a.wait_lgkm(0)
for blk in range(4):
    I("buffer_store_dwordx4", v(96 + 4 * blk, 4), v(vL16), s(SWS, 4), s(sT0), "offen", f"offset:{1024*blk}", "sc1", tag="yst")
I("s_mul_i32", s(sT0), s(sCH), "52429"); I("s_lshr_b32", s(sT0), s(sT0), "20")
I("s_mul_i32", s(sT1), s(sT0), "20"); I("s_sub_u32", s(sT1), s(sCH), s(sT1))
I("s_lshl_b32", s(sT0), s(sT0), "7"); I("s_lshl_b32", s(sT1), s(sT1), "2"); I("s_add_u32", s(sT0), s(sT0), s(sT1))
I("s_add_u32", s(sT0), s(sT0), hex(FY))
publish(6, sT0, vNC)
a.label("L_noconv")
stamp(6)

I("s_mul_i32", s(sCVB), s(sCW), str(CV[1] - CV[0])); I("s_add_u32", s(sCVB), s(sCVB), str(CV[0]))
I("s_cmp_eq_u32", s(sCW), "3"); I("s_cselect_b32", s(sCVB), str(CV[3]), s(sCVB))
I("v_lshlrev_b32", "v6", "2", v(vLANE))
I("s_lshl_b32", s(sT0), s(sR2), "8"); I("s_add_u32", s(sT0), s(sT0), hex(FH))
poll(7, 6, sT0, vNC)
I("s_lshl_b32", s(sT0), s(sR2), "8"); I("s_add_u32", s(sT0), s(sT0), hex(WS_G))
I("buffer_load_dword", "v16", "v6", s(SWS, 4), s(sT0), "offen", "sc1", tag="gl")
I("v_min_u32", "v6", "19", v(vLANE)); I("v_lshlrev_b32", "v6", "2", "v6")
I("s_lshl_b32", s(sT0), s(sC2), "2"); I("s_add_u32", s(sT0), s(sT0), s(sCW)); I("s_lshl_b32", s(sT1), s(sT0), "7")
I("s_add_u32", s(sT1), s(sT1), hex(FY))
poll(7, 6, sT1, vNC)
I("v_lshlrev_b32", "v6", "2", v(vLANE)); I("ds_write_b32", "v6", "v16", f"offset:{MISC + 64 - 131072}" if False else "offset:0") if False else None
I("v_lshlrev_b32", "v6", "2", v(vLANE)); I("v_add_u32", "v6", str(MISC + 64), "v6"); I("ds_write_b32", "v6", "v16")
I("s_mul_i32", s(sT0), s(sT0), str(20 * 4096)); I("s_lshl_b32", s(sT1), s(sR2), "7"); I("s_add_u32", s(sT0), s(sT0), s(sT1))
I("s_add_u32", s(sT0), s(sT0), hex(WS_YT))
I("v_lshlrev_b32", "v6", "12", v(vKG)); I("v_lshl_add_u32", "v6", v(vN), "3", "v6")
for i in range(5):
    I("buffer_load_dwordx2", v(64 + 2 * i, 2), "v6", s(SWS, 4), s(sT0), "offen", "sc1", tag="yl")
    if i < 4: I("s_add_u32", s(sT0), s(sT0), str(4 * 4096))
I("v_lshlrev_b32", "v6", "7", v(vKG)); I("v_lshl_add_u32", "v6", v(vN), "3", "v6"); I("v_add_u32", "v6", s(sCVB), "v6")
a.wait_vm(tag="yl")
for i in range(5): I("ds_write_b64", "v6", v(64 + 2 * i, 2), f"offset:{512*i}")
I("v_bfe_u32", "v7", v(vLANE), "2", "2"); I("v_lshlrev_b32", "v7", "7", "v7")
I("v_lshl_add_u32", "v7", v(vKG), "5", "v7"); I("v_and_b32", "v8", "3", v(vLANE)); I("v_lshl_add_u32", "v7", "v8", "3", "v7")
I("v_add_u32", "v7", s(sCVB), "v7")
I("v_mul_u32_u24", "v8", "160", v(vLANE)); I("s_mul_i32", s(sT0), s(sCW), "40"); I("s_add_u32", s(sT0), s(sT0), str(QT))
I("v_add_u32", "v8", s(sT0), "v8")
a.wait_lgkm(0)
for i in range(5):
    I("ds_read_b64_tr_b16", v(64 + 2 * i, 2), "v7", f"offset:{512*i}")
    I("ds_read_b64", v(80 + 2 * i, 2), "v8", f"offset:{8*i}")
I("v_mov_b32", "v17", "v16")
a.wait_lgkm(0)
for i in range(5):
    for h in range(2):
        Y, Qq, T = 96, 98, 100
        unpack(Y, 64 + 2 * i + h); unpack(Qq, 80 + 2 * i + h)
        I("v_pk_mul_f32", v(Y, 2), v(Y, 2), v(Qq, 2)); rnd_pair(Y, T)
        I("v_pk_mul_f32", v(Y, 2), v(Y, 2), "v[16:17]")
        I("v_cvt_pk_bf16_f32", v(80 + 2 * i + h), v(Y), v(Y + 1))
    I("ds_write_b64", "v8", v(80 + 2 * i, 2), f"offset:{8*i}")
stamp(7)

a.label("L_final")
a.vm = []
srd(SO, pOUT, 2621440)
I("s_mul_i32", s(sT0), s(sC2), "160"); I("s_add_u32", s(sT2), s(pB2), s(sT0)); I("s_addc_u32", s(sT3), s(pB2 + 1), "0")
I("s_lshl_b32", s(sT1), s(sR2), "6"); I("s_mul_i32", s(sT1), s(sT1), "1280"); I("s_add_u32", s(sT4), s(sT1), s(sT0))
def fin_setup(idreg, b):
    I("v_mul_u32_u24", v(b), "6554", v(idreg)); I("v_lshrrev_b32", v(b), "16", v(b))
    I("v_mul_u32_u24", v(b + 1), "10", v(b)); I("v_sub_u32", v(b + 1), v(idreg), v(b + 1))
    I("v_lshlrev_b32", v(b + 5), "4", v(b + 1))
    I("global_load_dwordx4", v(b + 8, 4), v(b + 5), s(sT2, 2), tag="b2")
    I("v_mul_u32_u24", v(b + 2), str(REDP), v(b)); I("v_lshl_add_u32", v(b + 2), v(b + 1), "5", v(b + 2))
    I("v_mul_u32_u24", v(b + 3), "160", v(b)); I("v_add3_u32", v(b + 3), v(b + 3), v(b + 5), s(sT5))
    I("v_lshlrev_b32", v(b + 4), "2", v(b)); I("v_add_u32", v(b + 4), str(MISC + 64), v(b + 4))
    I("v_mul_u32_u24", v(b + 6), "1280", v(b)); I("v_add_u32", v(b + 5), v(b + 5), v(b + 6))
def fin_item(b):
    P = 128
    for w in range(4):
        if w * REDW + 16 < 65536:
            I("ds_read_b128", v(P + 8 * w, 4), v(b + 2), f"offset:{RED + w*REDW}")
            I("ds_read_b128", v(P + 8 * w + 4, 4), v(b + 2), f"offset:{RED + w*REDW + 16}")
    I("ds_read_b128", v(P + 32, 4), v(b + 3))
    I("ds_read_b32", v(P + 36), v(b + 4))
    a.wait_vm(n=0, lgkm=0)
    G1, T, B, GA = P + 38, P + 40, P + 42, P + 44
    I("v_sub_f32", v(G1), "1.0", v(P + 36)); I("v_cvt_pk_bf16_f32", v(T), v(G1), v(G1)); unpack(G1, T)
    for j in range(4):
        x = P + 2 * j
        I("v_pk_add_f32", v(x, 2), v(x, 2), v(x + 8, 2)); I("v_pk_add_f32", v(x + 16, 2), v(x + 16, 2), v(x + 24, 2))
        I("v_pk_add_f32", v(x, 2), v(x, 2), v(x + 16, 2)); rnd_pair(x, T)
        unpack(B, b + 8 + j); I("v_pk_add_f32", v(x, 2), v(x, 2), v(B, 2)); rnd_pair(x, T)
        I("v_pk_mul_f32", v(x, 2), v(x, 2), v(G1, 2)); rnd_pair(x, T)
        unpack(GA, P + 32 + j); I("v_pk_add_f32", v(x, 2), v(x, 2), v(GA, 2))
        I("v_cvt_pk_bf16_f32", v(P + 48 + j), v(x), v(x + 1))
    I("buffer_store_dwordx4", v(P + 48, 4), v(b + 5), s(SO, 4), s(sT4), "offen", tag="out")
I("s_mov_b32", s(sT5), str(QT))
fin_setup(0, 96)
I("v_add_u32", "v120", "512", "v0"); I("v_min_u32", "v120", "639", "v120")
fin_setup(120, 108)
a.wait_lgkm(0)
a.barrier()
fin_item(96)
I("s_cmp_ge_u32", s(sWAVE), "2"); I("s_cbranch_scc1", "L_fin_done")
fin_item(108)
a.label("L_fin_done")
stamp(8)
a.label("L_end")
I("s_endpgm")
a.raw(f""".section .rodata,"a"
.p2align 6
.amdhsa_kernel {KNAME}
  .amdhsa_next_free_vgpr 256
  .amdhsa_next_free_sgpr 96
  .amdhsa_accum_offset 256
  .amdhsa_group_segment_fixed_size 0
  .amdhsa_kernarg_size 120
  .amdhsa_user_sgpr_count 2
  .amdhsa_user_sgpr_kernarg_segment_ptr 1
  .amdhsa_system_sgpr_workgroup_id_x 1
  .amdhsa_float_denorm_mode_32 3
.end_amdhsa_kernel
""")
out = [x for x in sys.argv[1:] if not x.startswith("--")]
open(out[0] if out else "k.s", "w").write(a.text())
```

```python
import sys, struct
from asmlib import Asm, v, s

KNAME = "gated_mix__ssm_conv_h3__dense_activation_gelu__prompt_kernel"
STAMP = "--stamp" in sys.argv

FK, FW, FH, FY = 0x0000, 0x2000, 0x3000, 0x5000
WS_G = 0x10000
WS_KVT = 0x100000
WS_W2F = 0x400000
WS_YT = 0x600000
WS_HF = 0x900000
WS_DBG = 0xF00000
WS_SIZE = 0x1000000
SLOT = 28672
WOFF = 16384
PRE = 114688
KT = PRE
VT = PRE + 17664
XCH = 2 * SLOT
CV = [86016, 107264, 128512, 160512]
HCP = 4160
XR = 4 * HCP
QT = 149760
MISC = 160000
RED = 0
REDW = 21504
REDP = 336
LDS_BYTES = 163840

sWAVE, sXCD, sSLOT, sRB, sC, sR2, sC2 = 3, 4, 5, 6, 7, 8, 9
sT0, sT1, sT2, sT3, sT4, sT5 = 10, 11, 12, 13, 14, 15
pQ, pK, pV, pSK, pH, pD, pBX, pW1, pB1, pW2, pB2, pGW, pOUT, pDBG, pWS = [16 + 2 * i for i in range(15)]
SQ, SW1, SWS, SA, SB, SH, SO = 48, 52, 56, 60, 64, 68, 72
sNONCE = 76
sCW = 77
sSOFFX, sSOFFW, sLSLOT, sCNT = 78, 79, 80, 81
sM0X, sM0W = 82, 83
sCH, sNCH = 84, 85
sEX = 86
sTM = 88
sU0, sU1 = 90, 91
sPOLL = 92

a = Asm()
I = a.I

def f32bits(x): return struct.unpack("<I", struct.pack("<f", x))[0]

def srd(d, p, nbytes):
    I("s_mov_b32", s(d), s(p)); I("s_mov_b32", s(d + 1), s(p + 1))
    I("s_mov_b32", s(d + 2), hex(nbytes)); I("s_mov_b32", s(d + 3), "0x20000")

vSTAMP = 255
def stamp(idx, real=False):
    if not STAMP: return
    I("s_memrealtime" if real else "s_memtime", s(sTM, 2)); a.wait_lgkm(0)
    I("v_writelane_b32", v(vSTAMP), s(sTM), str(idx))
def stamp_flush():
    if not STAMP: return
    stamp(62, real=True)
    I("s_lshl_b32", s(sT5), s(2), "3"); I("s_add_u32", s(sT5), s(sT5), s(sWAVE)); I("s_lshl_b32", s(sT5), s(sT5), "8")
    I("s_add_u32", s(sT5), s(sT5), hex(WS_DBG))
    I("v_lshlrev_b32", "v254", "2", v(1))
    I("buffer_store_dword", v(vSTAMP), "v254", s(SWS, 4), s(sT5), "offen", tag="stamp")

_lbl = [0]
def newlbl(p):
    _lbl[0] += 1; return f"L_{p}_{_lbl[0]}"

def poll(vtmp, voff, soff_reg, vnonce):
    top = newlbl("poll"); done = newlbl("pdone")
    I("s_mov_b32", s(sPOLL), "0x40000")
    a.label(top)
    I("buffer_load_dword", v(vtmp), v(voff), s(SWS, 4), s(soff_reg), "offen", "sc1")
    a.wait_vm(n=0)
    I("v_cmp_ne_u32", "vcc", v(vtmp), v(vnonce))
    a.nop(1)
    I("s_cbranch_vccz", done)
    I("s_sleep", "1")
    I("s_sub_u32", s(sPOLL), s(sPOLL), "1")
    I("s_cmp_lg_u32", s(sPOLL), "0")
    I("s_cbranch_scc1", top)
    a.label(done)

def publish(vtmp_off, soff_reg, vnonce):
    a.wait_vm(n=0)
    I("v_mov_b32", v(vtmp_off), "0")
    I("s_mov_b64", "exec", "1")
    I("buffer_store_dword", v(vnonce), v(vtmp_off), s(SWS, 4), s(soff_reg), "offen", "sc1", tag="flag")
    I("s_mov_b64", "exec", "-1")

def unpack(dlo, src):
    I("v_lshlrev_b32", v(dlo), "16", v(src)); I("v_and_b32", v(dlo + 1), "0xffff0000", v(src))

def rnd_pair(p, t):
    pass

hdr = open("cdna_kernels/" + KNAME[:-7] + ".s.ref").read().split("; Override")[0]
a.raw(hdr.rstrip())
a.raw(f"; @launch grid=(256,1,1) block=(512,1,1) lds={LDS_BYTES}")
a.raw('.amdgcn_target "amdgcn-amd-amdhsa--gfx950"\n.text')
a.raw(f".globl {KNAME}\n.p2align 8\n.type {KNAME},@function\n{KNAME}:")
I("s_cmp_ge_u32", "s2", "256"); I("s_cbranch_scc1", "L_end")
I("s_load_dwordx16", s(16, 16), "s[0:1]", "0")
I("s_load_dwordx8", s(32, 8), "s[0:1]", "64")
I("s_load_dwordx4", s(40, 4), "s[0:1]", "96")
I("s_load_dwordx2", s(44, 2), "s[0:1]", "112")
vLANE = 1
I("v_and_b32", v(vLANE), "63", "v0")
I("v_lshrrev_b32", "v2", "6", "v0")
I("v_readfirstlane_b32", s(sWAVE), "v2")
I("s_and_b32", s(sXCD), "s2", "7"); I("s_lshr_b32", s(sSLOT), "s2", "3")
I("s_lshr_b32", s(sT0), s(sXCD), "1"); I("s_and_b32", s(sT1), s(sXCD), "1")
I("s_lshl_b32", s(sRB), s(sT0), "2"); I("s_lshr_b32", s(sT2), s(sSLOT), "3"); I("s_add_u32", s(sRB), s(sRB), s(sT2))
I("s_lshl_b32", s(sC), s(sT1), "3"); I("s_and_b32", s(sT2), s(sSLOT), "7"); I("s_add_u32", s(sC), s(sC), s(sT2))
I("s_lshl_b32", s(sR2), s(sT0), "3"); I("s_lshr_b32", s(sT2), s(sSLOT), "2"); I("s_add_u32", s(sR2), s(sR2), s(sT2))
I("s_lshl_b32", s(sC2), s(sT1), "2"); I("s_and_b32", s(sT2), s(sSLOT), "3"); I("s_add_u32", s(sC2), s(sC2), s(sT2))
I("s_and_b32", s(sCW), s(sWAVE), "3")
vN, vKG = 2, 3
I("v_and_b32", v(vN), "15", v(vLANE)); I("v_lshrrev_b32", v(vKG), "4", v(vLANE))
vL16 = 4
I("v_lshlrev_b32", v(vL16), "4", v(vLANE))
a.wait_lgkm(0)
srd(SWS, pWS, WS_SIZE)
srd(SQ, pQ, 2621440)
if STAMP: I("v_mov_b32", v(vSTAMP), "0")
stamp(63, real=True)
stamp(0)
I("s_cmp_ge_u32", s(sWAVE), "4"); I("s_cbranch_scc1", "L_C")

LOG2E = 1.4426950408889634
C0 = -2.0 * LOG2E * 0.7978845608028654
C1 = C0 * 0.044715

def gelu_block(src, bias, out, tmp, cst):
    c0, c1, one = cst, cst + 2, cst + 4
    I("v_mov_b32", v(c0), hex(f32bits(C0))); I("v_mov_b32", v(c0 + 1), hex(f32bits(C0)))
    I("v_mov_b32", v(c1), hex(f32bits(C1))); I("v_mov_b32", v(c1 + 1), hex(f32bits(C1)))
    I("v_mov_b32", v(one), "1.0"); I("v_mov_b32", v(one + 1), "1.0")
    for ft in range(6):
        P = [(src + ft * 4 + 2 * h, bias + ft * 2 + h, tmp + 6 * h, out + ft * 2 + h) for h in range(2)]
        steps = []
        def both(fn):
            for (x, b, t, o) in P: fn(x, b, t, o)
        both(lambda x, b, t, o: unpack(t, b))
        both(lambda x, b, t, o: I("v_pk_add_f32", v(x, 2), v(x, 2), v(t, 2)))
        both(lambda x, b, t, o: I("v_pk_mul_f32", v(t, 2), v(x, 2), v(x, 2)))
        both(lambda x, b, t, o: I("v_pk_fma_f32", v(t, 2), v(t, 2), v(c1, 2), v(c0, 2)))
        both(lambda x, b, t, o: I("v_pk_mul_f32", v(t, 2), v(t, 2), v(x, 2)))
        both(lambda x, b, t, o: (I("v_exp_f32", v(t), v(t)), I("v_exp_f32", v(t + 1), v(t + 1))))
        both(lambda x, b, t, o: I("v_pk_add_f32", v(t, 2), v(t, 2), v(one, 2)))
        both(lambda x, b, t, o: (I("v_rcp_f32", v(t), v(t)), I("v_rcp_f32", v(t + 1), v(t + 1))))
        both(lambda x, b, t, o: I("v_pk_mul_f32", v(t, 2), v(t, 2), v(x, 2)))
        both(lambda x, b, t, o: I("v_cvt_pk_bf16_f32", v(o), v(t), v(t + 1)))

def load_bias1(bias, vtmp):
    I("v_lshlrev_b32", v(vtmp), "3", v(vKG))
    I("s_mul_i32", s(sT0), s(sC), "192")
    I("s_add_u32", s(sT2), s(pB1), s(sT0)); I("s_addc_u32", s(sT3), s(pB1 + 1), "0")
    for ft in range(6):
        I("global_load_dwordx2", v(bias + 2 * ft, 2), v(vtmp), s(sT2, 2), f"offset:{32*ft}", tag="bias1")

def store_h(out, rt, vnonce, vtmp):
    I("s_lshl_b32", s(sT0), s(sRB), "1"); I("s_lshr_b32", s(sT1), s(sCW), "1"); I("s_add_u32", s(sT0), s(sT0), s(sT1))
    I("s_and_b32", s(sT1), s(sCW), "1"); I("s_lshl_b32", s(sT1), s(sT1), "1"); I("s_add_u32", s(sT1), s(sT1), str(rt))
    I("s_mul_i32", s(sT2), s(sT0), "48"); I("s_mul_i32", s(sT3), s(sC), "3"); I("s_add_u32", s(sT2), s(sT2), s(sT3))
    I("s_lshl_b32", s(sT2), s(sT2), "2"); I("s_add_u32", s(sT2), s(sT2), s(sT1)); I("s_lshl_b32", s(sT2), s(sT2), "10")
    I("s_add_u32", s(sT2), s(sT2), hex(WS_HF))
    for up in range(3):
        I("buffer_store_dwordx4", v(out + 4 * up, 4), v(vL16), s(SWS, 4), s(sT2), "offen", "sc1", tag="hst")
        if up < 2: I("s_add_u32", s(sT2), s(sT2), "4096")
    I("s_lshl_b32", s(sT0), s(sT0), "8"); I("s_lshl_b32", s(sT3), s(sC), "2"); I("s_add_u32", s(sT3), s(sT3), s(sT1))
    I("s_lshl_b32", s(sT3), s(sT3), "2"); I("s_add_u32", s(sT0), s(sT0), s(sT3)); I("s_add_u32", s(sT0), s(sT0), hex(FH))
    publish(vtmp, sT0, vnonce)

ACC = 64
XS = 112
WSR = 128
vXA0, vXA1, vWE, vWO = 8, 9, 10, 11
vCX0, vCX1, vCWE, vCWO = 12, 13, 14, 15
vBIAS = 176
vNONCE = 5
load_bias1(vBIAS, 6)
I("s_lshl_b32", s(sT0), s(sCW), "5")
I("v_add_u32", "v6", s(sT0), v(vN)); I("v_lshlrev_b32", "v6", "7", "v6")
I("v_lshrrev_b32", "v7", "1", v(vN)); I("v_xor_b32", "v7", "v7", v(vKG)); I("v_lshlrev_b32", "v7", "4", "v7")
I("v_add_u32", v(vXA0), "v6", "v7"); I("v_xor_b32", v(vXA1), "64", v(vXA0))
I("v_bfe_u32", "v6", v(vLANE), "2", "2"); I("v_lshl_add_u32", "v6", v(vKG), "3", "v6")
I("v_mul_u32_u24", "v6", "192", "v6")
I("v_and_b32", "v7", "3", v(vLANE)); I("v_lshl_add_u32", "v6", "v7", "3", "v6")
I("v_add_u32", "v6", hex(WOFF), "v6")
I("v_and_b32", "v7", "1", v(vKG)); I("v_lshlrev_b32", "v7", "5", "v7")
I("v_add_u32", v(vWE), "v6", "v7"); I("v_sub_u32", v(vWO), "v6", "v7")
for i in range(48): I("v_mov_b32", v(ACC + i), "0")
for i in range(8): I("v_mov_b32", v(XS + 8 + i), "0")
for i in range(24): I("v_mov_b32", v(WSR + 24 + i), "0")
I("s_mov_b32", s(sLSLOT), "0"); I("s_mov_b32", s(sCNT), "10")
for c_, l_ in ((vCX0, vXA0), (vCX1, vXA1), (vCWE, vWE), (vCWO, vWO)): I("v_mov_b32", v(c_), v(l_))

def g1_reads(st, ks):
    r = []
    for rt in range(2):
        r.append(("ds_read_b128", v(XS + (st * 2 + rt) * 4, 4), v(vCX1 if ks else vCX0), f"offset:{rt*2048}"))
    for ft in range(6):
        for hh in range(2):
            r.append(("ds_read_b64_tr_b16", v(WSR + (st * 6 + ft) * 4 + 2 * hh, 2), v(vCWO if ft & 1 else vCWE),
                      f"offset:{32*ft + ks*6144 + hh*768}"))
    return r
def g1_mfmas(st):
    m = []
    for ft in range(6):
        for rt in range(2):
            d = v(ACC + (rt * 6 + ft) * 4, 4)
            m.append(("v_mfma_f32_16x16x32_bf16", d, v(WSR + (st * 6 + ft) * 4, 4), v(XS + (st * 2 + rt) * 4, 4), d))
    return m
def interleave(r, m):
    n = max(len(r), len(m))
    for i in range(n):
        if i < len(r): I(*r[i])
        if i < len(m): I(*m[i])

a.nop(2)
a.label("L_g1")
a.barrier()
if STAMP:
    I("s_sub_u32", "m0", "30", s(sCNT)); stamp("m0")
interleave(g1_reads(0, 0), g1_mfmas(1))
a.wait_lgkm(0)
interleave(g1_reads(1, 1), g1_mfmas(0))
I("s_add_u32", s(sLSLOT), s(sLSLOT), str(SLOT))
I("s_cmp_eq_u32", s(sLSLOT), str(4 * SLOT)); I("s_cselect_b32", s(sLSLOT), "0", s(sLSLOT))
I("s_sub_u32", s(sCNT), s(sCNT), "1")
a.wait_lgkm(0)
for c_, l_ in ((vCX0, vXA0), (vCX1, vXA1), (vCWE, vWE), (vCWO, vWO)): I("v_add_u32", v(c_), s(sLSLOT), v(l_))
I("s_cmp_lg_u32", s(sCNT), "0"); I("s_cbranch_scc1", "L_g1")
m = g1_mfmas(1)
for x in m[1::2]: I(*x)
for x in m[0::2]: I(*x)
stamp(1)
I("s_mul_i32", s(sT0), s(sCW), "6144"); I("s_add_u32", s(sT0), s(sT0), str(XCH))
I("v_add_u32", "v6", s(sT0), v(vL16))
for ft in range(6):
    I("ds_write_b128", "v6", v(ACC + (6 + ft) * 4, 4), f"offset:{ft*1024}")
I("v_mov_b32", "v7", str(MISC))
I("ds_read_b32", v(vNONCE), "v7")
a.wait_lgkm(0)
a.barrier()
a.wait_vm(tag="bias1")
gelu_block(ACC, vBIAS, 200, 188, 16)
store_h(200, 0, vNONCE, 6)
a.barrier()
stamp(2)

AC2 = 16
ST = 96
for i in range(80): I("v_mov_b32", v(AC2 + i), "0")
I("v_min_u32", "v6", "47", v(vLANE)); I("v_lshlrev_b32", "v6", "2", "v6")
I("s_lshl_b32", s(sT0), s(sC2), "8"); I("s_add_u32", s(sT0), s(sT0), hex(FW))
poll(7, 6, sT0, vNONCE)
I("v_lshlrev_b32", "v6", "2", v(vLANE))
I("s_lshl_b32", s(sT0), s(sR2), "8"); I("s_add_u32", s(sT0), s(sT0), hex(FH))
poll(7, 6, sT0, vNONCE)
stamp(3)
I("s_mul_i32", s(sU0), s(sR2), "48"); I("s_add_u32", s(sU0), s(sU0), s(sCW)); I("s_lshl_b32", s(sU0), s(sU0), "12")
I("s_add_u32", s(sU0), s(sU0), hex(WS_HF))
I("s_mul_i32", s(sU1), s(sC2), "48"); I("s_add_u32", s(sU1), s(sU1), s(sCW)); I("s_mul_i32", s(sU1), s(sU1), "5120")
I("s_add_u32", s(sU1), s(sU1), hex(WS_W2F))
vL16b = 6
I("v_add_u32", v(vL16b), "4096", v(vL16))
def g2_loads(st):
    b = ST + st * 36
    for rt in range(4):
        I("buffer_load_dwordx4", v(b + rt * 4, 4), v(vL16), s(SWS, 4), s(sU0), "offen", f"offset:{rt*1024}", "sc1", tag="g2")
    for ct in range(5):
        if ct < 4: I("buffer_load_dwordx4", v(b + 16 + ct * 4, 4), v(vL16), s(SWS, 4), s(sU1), "offen", f"offset:{ct*1024}", "sc1", tag="g2")
        else: I("buffer_load_dwordx4", v(b + 16 + ct * 4, 4), v(vL16b), s(SWS, 4), s(sU1), "offen", "sc1", tag="g2")
    I("s_add_u32", s(sU0), s(sU0), str(4 * 4096)); I("s_add_u32", s(sU1), s(sU1), str(4 * 5120))
def g2_mfmas(st):
    b = ST + st * 36
    for ct in range(5):
        for rt in range(4):
            d = v(AC2 + (rt * 5 + ct) * 4, 4)
            I("v_mfma_f32_16x16x32_bf16", d, v(b + 16 + ct * 4, 4), v(b + rt * 4, 4), d)
for st in range(3): g2_loads(st)
I("s_mov_b32", s(sCNT), "3")
a.label("L_g2")
for st in range(4):
    if st == 1:
        I("s_cmp_eq_u32", s(sCNT), "1")
        I("s_cselect_b32", s(sU0), "0x7f000000", s(sU0)); I("s_cselect_b32", s(sU1), "0x7f000000", s(sU1))
    g2_loads((st + 3) % 4)
    a.wait_vm(n=27)
    g2_mfmas(st)
I("s_sub_u32", s(sCNT), s(sCNT), "1"); I("s_cmp_lg_u32", s(sCNT), "0"); I("s_cbranch_scc1", "L_g2")
a.wait_vm(n=0)
stamp(4)
I("v_mul_u32_u24", "v6", str(REDP), v(vN)); I("v_lshl_add_u32", "v6", v(vKG), "4", "v6")
I("s_mul_i32", s(sT0), s(sCW), str(REDW)); I("v_add_u32", "v6", s(sT0), "v6")
a.nop(8)
for rt in range(4):
    for ct in range(5):
        I("ds_write_b128", "v6", v(AC2 + (rt * 5 + ct) * 4, 4), f"offset:{RED + rt*16*REDP + ct*64}")
I("s_branch", "L_final")

a.label("L_C")
a.vm = []
srd(SW1, pW1, 640 * 3072)
vDX = 8
vDW = 12
I("v_lshrrev_b32", "v6", "3", v(vLANE))
I("v_and_b32", "v7", "7", v(vLANE))
I("s_lshl_b32", s(sT0), s(sRB), "7"); I("s_lshl_b32", s(sT1), s(sCW), "5"); I("s_add_u32", s(sT0), s(sT0), s(sT1))
for jj in range(4):
    I("v_add_u32", "v16", str(8 * jj), "v6")
    I("v_bfe_u32", "v17", "v16", "1", "3"); I("v_xor_b32", "v17", "v17", "v7")
    I("v_add_u32", "v16", s(sT0), "v16"); I("v_mul_u32_u24", "v16", "1280", "v16")
    I("v_lshl_add_u32", "v16", "v17", "4", "v16")
    I("v_subrev_u32", v(vDX + jj), str(1024 * jj), "v16")
for i in range(3):
    I("v_add_u32", "v16", str(64 * i), v(vLANE))
    I("v_mul_u32_u24", "v17", "5462", "v16"); I("v_lshrrev_b32", "v17", "16", "v17")
    I("v_mul_u32_u24", "v18", "12", "v17"); I("v_sub_u32", "v18", "v16", "v18")
    I("v_bfe_u32", "v19", "v17", "3", "1"); I("v_lshlrev_b32", "v19", "1", "v19"); I("v_xor_b32", "v18", "v18", "v19")
    I("v_mul_u32_u24", "v17", "3072", "v17"); I("v_lshl_add_u32", "v17", "v18", "4", "v17")
    I("v_subrev_u32", v(vDW + i), str(1024 * i), "v17")
I("s_mov_b32", s(sSOFFX), "0")
I("s_mul_i32", s(sSOFFW), s(sCW), str(16 * 3072)); I("s_mul_i32", s(sT0), s(sC), "192"); I("s_add_u32", s(sSOFFW), s(sSOFFW), s(sT0))
I("s_lshl_b32", s(sM0X), s(sCW), "12")
I("s_mul_i32", s(sM0W), s(sCW), "3072"); I("s_add_u32", s(sM0W), s(sM0W), str(WOFF))

def dma_stage(st):
    sl = (st % 4) * SLOT
    I("s_add_u32", "m0", s(sM0X), str(sl))
    for jj in range(4):
        I("buffer_load_dwordx4", v(vDX + jj), s(SQ, 4), s(sSOFFX), "offen", f"offset:{1024*jj}", "lds", tag=f"st{st}")
    I("s_add_u32", "m0", s(sM0W), str(sl))
    for i in range(3):
        I("buffer_load_dwordx4", v(vDW + i), s(SW1, 4), s(sSOFFW), "offen", f"offset:{1024*i}", "lds", tag=f"st{st}")
    I("s_add_u32", s(sSOFFX), s(sSOFFX), "128"); I("s_add_u32", s(sSOFFW), s(sSOFFW), str(64 * 3072))

def stage_barrier(st):
    stamp(32 + 2 * st)
    a.wait_vm(tag=f"st{st}")
    stamp(33 + 2 * st)
    a.barrier()
    stamp(20 + st)
    if 1 <= st <= 6: dma_stage(st + 3)

dma_stage(0)
vNC = 5
I("s_cmp_lg_u32", "s2", "0"); I("s_cbranch_scc1", "L_nonce_skip")
I("s_cmp_lg_u32", s(sCW), "0"); I("s_cbranch_scc1", "L_nonce_skip")
I("s_memrealtime", s(sTM, 2)); a.wait_lgkm(0)
I("s_mul_i32", s(sT0), s(sTM), "0x9E3779B1"); I("s_xor_b32", s(sT0), s(sT0), s(sTM + 1)); I("s_or_b32", s(sT0), s(sT0), "1")
I("v_mov_b32", "v16", s(sT0)); I("v_mov_b32", "v17", "0")
a.lines.append("  global_store_dword v17, v16, s[42:43] sc1")
a.label("L_nonce_skip")

I("s_cmp_ge_u32", s(sSLOT), "20"); I("s_cbranch_scc1", "L_CW")

vG = 20
def g_loads():
    I("s_lshl_b32", s(sT0), s(sRB), "1"); I("s_lshr_b32", s(sT1), s(sCW), "1"); I("s_add_u32", s(sT0), s(sT0), s(sT1))
    I("s_lshl_b32", s(sT0), s(sT0), "6"); I("s_lshl_b32", s(sT1), s(sC), "2"); I("s_add_u32", s(sT0), s(sT0), s(sT1))
    I("s_and_b32", s(sT1), s(sCW), "1"); I("s_lshl_b32", s(sT1), s(sT1), "1"); I("s_add_u32", s(sT0), s(sT0), s(sT1))
    I("v_lshrrev_b32", v(vG), "5", v(vLANE)); I("v_add_u32", v(vG), s(sT0), v(vG))
    I("v_and_b32", v(vG + 1), "31", v(vLANE)); I("v_lshlrev_b32", v(vG + 1), "3", v(vG + 1))
    I("v_mul_u32_u24", v(vG + 2), "1280", v(vG)); I("v_add_u32", v(vG + 2), v(vG + 2), v(vG + 1))
    for i in range(5):
        I("global_load_dwordx2", v(vG + 4 + 2 * i, 2), v(vG + 2), s(pQ, 2), f"offset:{256*i}", tag="g")
        I("global_load_dwordx2", v(vG + 14 + 2 * i, 2), v(vG + 1), s(pGW, 2), f"offset:{256*i}", tag="g")
def g_compute():
    a.wait_vm(tag="g")
    acc, x, w, t = vG + 24, vG + 26, vG + 28, vG + 30
    I("v_mov_b32", v(acc), "0"); I("v_mov_b32", v(acc + 1), "0")
    for i in range(10):
        unpack(x, vG + 4 + i); unpack(w, vG + 14 + i)
        I("v_pk_mul_f32", v(x, 2), v(x, 2), v(w, 2))
        rnd_pair(x, t)
        I("v_pk_add_f32", v(acc, 2), v(acc, 2), v(x, 2))
    I("v_add_f32", v(acc), v(acc), v(acc + 1))
    for off in (0x041F, 0x081F, 0x101F, 0x201F, 0x401F):
        I("ds_swizzle_b32", v(t), v(acc), f"offset:{off}"); a.wait_lgkm(0)
        I("v_add_f32", v(acc), v(acc), v(t))
    I("v_cvt_pk_bf16_f32", v(t), v(acc), v(acc)); I("v_lshlrev_b32", v(acc), "16", v(t))
    I("v_mul_f32", v(acc), hex(f32bits(-LOG2E)), v(acc))
    I("v_exp_f32", v(acc), v(acc)); I("v_add_f32", v(acc), "1.0", v(acc)); I("v_rcp_f32", v(acc), v(acc))
    I("v_cvt_pk_bf16_f32", v(t), v(acc), v(acc)); I("v_lshlrev_b32", v(acc), "16", v(t))
    I("v_lshlrev_b32", v(t), "2", v(vG))
    I("s_mov_b32", s(sT0), hex(WS_G))
    I("s_mov_b32", s(sEX), "1"); I("s_mov_b32", s(sEX + 1), "1"); I("s_mov_b64", "exec", s(sEX, 2))
    I("buffer_store_dword", v(acc), v(t), s(SWS, 4), s(sT0), "offen", "sc1", tag="gst")
    I("s_mov_b64", "exec", "-1")

def qt_dma():
    I("s_lshl_b32", s(sT2), s(sR2), "6"); I("s_mul_i32", s(sT2), s(sT2), "1280"); I("s_mul_i32", s(sT3), s(sC2), "160")
    I("s_add_u32", s(sT2), s(sT2), s(sT3))
    for i in range(3):
        I("s_add_u32", s(sT0), s(sCW), str(4 * i)); I("s_min_u32", s(sT0), s(sT0), "9")
        I("s_lshl_b32", s(sT1), s(sT0), "6")
        I("v_add_u32", "v16", s(sT1), v(vLANE))
        I("v_mul_u32_u24", "v17", "6554", "v16"); I("v_lshrrev_b32", "v17", "16", "v17")
        I("v_mul_u32_u24", "v18", "10", "v17"); I("v_sub_u32", "v18", "v16", "v18")
        I("v_mul_u32_u24", "v17", "1280", "v17"); I("v_lshl_add_u32", "v17", "v18", "4", "v17")
        I("s_lshl_b32", s(sT0), s(sT0), "10"); I("s_add_u32", "m0", s(sT0), str(QT))
        I("buffer_load_dwordx4", "v17", s(SQ, 4), s(sT2), "offen", "lds", tag="qt")

def nonce_get():
    skip = newlbl("ncs"); top = newlbl("nct"); done = newlbl("ncd")
    I("s_cmp_lg_u32", s(sCW), "0"); I("s_cbranch_scc1", skip)
    I("s_mov_b32", s(sPOLL), "0x40000")
    I("v_mov_b32", "v17", "0")
    a.label(top)
    a.lines.append("  global_load_dword v16, v17, s[42:43] sc1")
    a.lines.append("  s_waitcnt vmcnt(0)")
    I("v_cmp_eq_u32", "vcc", "0", "v16"); a.nop(1)
    I("s_cbranch_vccz", done)
    I("s_sleep", "1"); I("s_sub_u32", s(sPOLL), s(sPOLL), "1"); I("s_cmp_lg_u32", s(sPOLL), "0"); I("s_cbranch_scc1", top)
    a.label(done)
    I("v_mov_b32", "v17", str(MISC)); I("ds_write_b32", "v17", "v16"); a.wait_lgkm(0)
    a.label(skip)

vHC = 128
def chan_setup():
    I("s_lshr_b32", s(sT0), "s2", "1"); I("s_mul_i32", s(sCH), s(sT0), "5")
    I("s_and_b32", s(sT0), "s2", "1"); I("s_mul_i32", s(sT1), s(sT0), "3"); I("s_add_u32", s(sCH), s(sCH), s(sT1))
    I("s_sub_u32", s(sNCH), "3", s(sT0))
    I("s_add_u32", s(sCH), s(sCH), s(sCW))
    I("s_min_u32", s(sCH), s(sCH), "639")
def h_loads():
    srd(SH, pH, 640 * 4096)
    I("s_lshl_b32", s(sT0), s(sCH), "12")
    for blk in range(4):
        I("buffer_load_dwordx4", v(vHC + (0 * 4 + blk) * 4, 4), v(vL16), s(SH, 4), s(sT0), "offen", f"offset:{1024*blk}", tag="h")
        I("buffer_load_dwordx4", v(vHC + (2 * 4 + blk) * 4, 4), v(vL16), s(SH, 4), s(sT0), "offen", f"offset:{1024*blk+4}", tag="h")
        I("buffer_load_dwordx4", v(vHC + (3 * 4 + blk) * 4, 4), v(vL16), s(SH, 4), s(sT0), "offen", f"offset:{1024*blk+8}", tag="h")
def h_shift():
    a.wait_vm(tag="h")
    for blk in range(4):
        for k in range(4):
            r0, r1, r2_, r3 = [vHC + (c * 4 + blk) * 4 + k for c in range(4)]
            I("v_alignbit_b32", v(r1), v(r2_), v(r0), "16")
            I("v_alignbit_b32", v(r3), v(r3), v(r2_), "16")

srd(SA, pK, 2621440); srd(SB, pV, 2621440)
sTT, sCB = sU0, sU1
I("s_mul_i32", s(sT0), s(sXCD), "20"); I("s_add_u32", s(sT0), s(sT0), s(sSLOT))
I("s_mul_i32", s(sTT), s(sT0), "52429"); I("s_lshr_b32", s(sTT), s(sTT), "18")
I("s_mul_i32", s(sT1), s(sTT), "5"); I("s_sub_u32", s(sCB), s(sT0), s(sT1))
I("v_mul_u32_u24", "v16", "1280", v(vKG)); I("v_lshl_add_u32", "v16", v(vN), "4", "v16")
I("s_mul_i32", s(sT0), s(sTT), str(64 * 1280)); I("s_lshl_b32", s(sT1), s(sCB), "8"); I("s_add_u32", s(sT0), s(sT0), s(sT1))
I("v_add_u32", "v16", s(sT0), "v16")
I("v_subrev_u32", "v17", str(4 * 1280), "v16")
I("s_mov_b32", "m0", str(KT))
I("buffer_load_dwordx4", "v17", s(SA, 4), "0", "offen", "lds", tag="kv")
for i in range(4):
    I("s_lshl_b32", s(sT0), s(sCW), "2"); I("s_add_u32", s(sT0), s(sT0), str(i))
    I("s_mul_i32", s(sT1), s(sT0), str(4 * 1280))
    I("s_add_u32", s(sT2), s(sT0), "2"); I("s_lshr_b32", s(sT2), s(sT2), "1"); I("s_lshl_b32", s(sT2), s(sT2), "4")
    I("s_lshl_b32", s(sT3), s(sT0), "10"); I("s_add_u32", s(sT2), s(sT2), s(sT3)); I("s_add_u32", "m0", s(sT2), str(KT + 1024))
    I("buffer_load_dwordx4", "v16", s(SA, 4), s(sT1), "offen", "lds", tag="kv")
    I("s_lshr_b32", s(sT2), s(sT0), "1"); I("s_lshl_b32", s(sT2), s(sT2), "4"); I("s_add_u32", s(sT2), s(sT2), s(sT3))
    I("s_add_u32", "m0", s(sT2), str(VT))
    I("buffer_load_dwordx4", "v16", s(SB, 4), s(sT1), "offen", "lds", tag="kv")
vSKR = 64
I("v_lshrrev_b32", "v16", "3", v(vLANE)); I("v_lshlrev_b32", "v16", "4", "v16")
I("s_lshl_b32", s(sT0), s(sCB), "10"); I("s_lshl_b32", s(sT1), s(sCW), "8"); I("s_add_u32", s(sT0), s(sT0), s(sT1))
I("v_add_u32", "v16", s(sT0), "v16")
for rho in range(2):
    I("global_load_dwordx4", v(vSKR + 4 * rho, 4), "v16", s(pSK, 2), f"offset:{128*rho}", tag="sk")
g_loads()
dma_stage(1); dma_stage(2); dma_stage(3)
qt_dma()
chan_setup()

def kv_round(rho, mid):
    KR, VR = 72, 84
    KU = 96
    S = 118
    P, Q, T, VU = 192, 194, 196, 198
    OUT = 200
    ad = 16
    I("v_and_b32", v(ad), "7", v(vLANE)); I("v_mul_u32_u24", v(ad), "2064", v(ad))
    I("v_lshrrev_b32", v(ad + 1), "3", v(vLANE)); I("v_lshl_add_u32", v(ad), v(ad + 1), "2", v(ad))
    I("s_lshl_b32", s(sT0), s(sCW), "6"); I("s_add_u32", s(sT0), s(sT0), str(32 * rho + KT)); I("v_add_u32", v(ad), s(sT0), v(ad))
    for i in range(11):
        I("ds_read_b32", v(KR + i), v(ad), f"offset:{(1+i)*256 + ((5+i)>>3)*16}")
    for i in range(8):
        I("ds_read_b32", v(VR + i), v(ad), f"offset:{VT-KT + i*256}")
    r = vSKR + 4 * rho
    for j in range(4):
        for ch in range(2):
            src = r + 2 * ch + (j >> 1)
            if j & 1: I("v_and_b32", v(S + 2 * j + ch), "0xffff0000", v(src))
            else: I("v_lshlrev_b32", v(S + 2 * j + ch), "16", v(src))
    a.wait_lgkm(0)
    for i in range(11): unpack(KU + 2 * i, KR + i)
    for t in range(8):
        I("v_pk_mul_f32", v(P, 2), v(KU + 2 * (t + 0), 2), v(S + 6, 2)); rnd_pair(P, T)
        for j in (2, 1, 0):
            I("v_pk_mul_f32", v(Q, 2), v(KU + 2 * (t + 3 - j), 2), v(S + 2 * j, 2)); rnd_pair(Q, T)
            I("v_pk_add_f32", v(P, 2), v(P, 2), v(Q, 2)); rnd_pair(P, T)
        unpack(VU, VR + t)
        I("v_pk_mul_f32", v(P, 2), v(P, 2), v(VU, 2))
        I("v_cvt_pk_bf16_f32", v(OUT + t), v(P), v(P + 1))
        if t == 3: mid()
    I("s_mov_b32", s(sT0), "0x05040100"); I("s_mov_b32", s(sT1), "0x07060302")
    for ch in range(2):
        for j in range(4):
            I("v_perm_b32", v(OUT + 8 + 4 * ch + j), v(OUT + 6 - 2 * j), v(OUT + 7 - 2 * j), s(sT0 + ch))
    I("v_lshrrev_b32", v(ad), "3", v(vLANE)); I("v_lshlrev_b32", v(ad), "13", v(ad))
    I("v_and_b32", v(ad + 1), "7", v(vLANE)); I("v_lshlrev_b32", v(ad + 1), "4", v(ad + 1))
    I("v_sub_u32", v(ad), v(ad), v(ad + 1)); I("v_add_u32", v(ad), "112", v(ad))
    I("v_add_u32", v(ad + 1), "4096", v(ad))
    I("s_lshl_b32", s(sT0), s(sCB), "7"); I("s_lshl_b32", s(sT1), s(sCW), "5"); I("s_add_u32", s(sT0), s(sT0), s(sT1))
    I("s_add_u32", s(sT0), s(sT0), str(16 * rho)); I("s_lshl_b32", s(sT0), s(sT0), "12")
    I("s_lshl_b32", s(sT1), s(sTT), "7"); I("s_sub_u32", s(sT0), s(sT0), s(sT1)); I("s_add_u32", s(sT0), s(sT0), hex(WS_KVT + 4080 - 112))
    I("buffer_store_dwordx4", v(OUT + 8, 4), v(ad), s(SWS, 4), s(sT0), "offen", "sc1", tag="kvst")
    I("buffer_store_dwordx4", v(OUT + 12, 4), v(ad + 1), s(SWS, 4), s(sT0), "offen", "sc1", tag="kvst")

def first_barrier():
    idx = max(i for i, t in enumerate(a.vm) if t == "st0"); n = len(a.vm) - 1 - idx
    a.wait_vm(n=n)
    a.barrier()

first_barrier()
nonce_get()
a.vm = a.vm
g_compute()
stage_barrier(1)
I("v_mov_b32", "v17", str(MISC)); I("ds_read_b32", v(vNC), "v17")
a.wait_vm(tag="sk")
kv_round(0, lambda: stage_barrier(2))
stage_barrier(3)
kv_round(1, lambda: stage_barrier(4))
a.wait_vm(tag="kvst")
I("s_lshl_b32", s(sT0), s(sCB), "2"); I("s_add_u32", s(sT0), s(sT0), s(sCW)); I("s_lshl_b32", s(sT0), s(sT0), "8")
I("s_lshl_b32", s(sT1), s(sTT), "2"); I("s_add_u32", s(sT0), s(sT0), s(sT1)); I("s_add_u32", s(sT0), s(sT0), hex(FK))
I("v_mov_b32", "v16", "0"); I("s_mov_b64", "exec", "1")
I("buffer_store_dword", v(vNC), "v16", s(SWS, 4), s(sT0), "offen", "sc1", tag="flag")
I("s_mov_b64", "exec", "-1")
stamp(5)
stage_barrier(5)
h_loads()
stage_barrier(6)
vmK = list(a.vm)
I("s_branch", "L_Cjoin")

a.label("L_CW")
a.vm = ["st0"] * 7
srd(SA, pW2, 1536 * 1280)
sUU, sC2W = sU0, sU1
I("s_mul_i32", s(sT0), s(sXCD), "12"); I("s_add_u32", s(sT0), s(sT0), s(sSLOT)); I("s_sub_u32", s(sT0), s(sT0), "20")
I("s_lshr_b32", s(sUU), s(sT0), "1"); I("s_and_b32", s(sT0), s(sT0), "1"); I("s_lshl_b32", s(sT0), s(sT0), "2")
I("s_add_u32", s(sC2W), s(sT0), s(sCW))
I("s_mul_i32", s(sT2), s(sUU), str(32 * 1280)); I("s_mul_i32", s(sT3), s(sC2W), "160"); I("s_add_u32", s(sT2), s(sT2), s(sT3))
I("s_mul_i32", s(sT4), s(sCW), "5120"); I("s_add_u32", s(sT4), s(sT4), str(PRE))
for i in range(5):
    I("v_add_u32", "v16", str(64 * i), v(vLANE))
    I("v_mul_u32_u24", "v17", "6554", "v16"); I("v_lshrrev_b32", "v17", "16", "v17")
    I("v_mul_u32_u24", "v18", "10", "v17"); I("v_sub_u32", "v18", "v16", "v18")
    I("v_mul_u32_u24", "v17", "1280", "v17"); I("v_lshl_add_u32", "v17", "v18", "4", "v17")
    I("s_add_u32", "m0", s(sT4), str(1024 * i))
    I("buffer_load_dwordx4", "v17", s(SA, 4), s(sT2), "offen", "lds", tag="w2")
g_loads()
dma_stage(1); dma_stage(2); dma_stage(3)
qt_dma()
chan_setup()
first_barrier()
nonce_get()
g_compute()
stage_barrier(1)
I("v_mov_b32", "v17", str(MISC)); I("ds_read_b32", v(vNC), "v17")
I("v_lshrrev_b32", "v16", "2", v(vLANE)); I("v_mul_u32_u24", "v16", "160", "v16")
I("v_and_b32", "v17", "3", v(vLANE)); I("v_lshl_add_u32", "v16", "v17", "3", "v16")
I("s_mul_i32", s(sT4), s(sCW), "5120"); I("s_add_u32", s(sT4), s(sT4), str(PRE)); I("v_add_u32", "v16", s(sT4), "v16")
for ct in range(5):
    for hh in range(2):
        I("ds_read_b64_tr_b16", v(64 + 4 * ct + 2 * hh, 2), "v16", f"offset:{32*ct + hh*16*160}")
a.wait_lgkm(0)
I("s_mul_i32", s(sT0), s(sC2W), "48"); I("s_add_u32", s(sT0), s(sT0), s(sUU)); I("s_mul_i32", s(sT0), s(sT0), "5120")
I("s_add_u32", s(sT0), s(sT0), hex(WS_W2F)); I("s_add_u32", s(sT1), s(sT0), "4096")
for ct in range(5):
    if ct < 4: I("buffer_store_dwordx4", v(64 + 4 * ct, 4), v(vL16), s(SWS, 4), s(sT0), "offen", f"offset:{1024*ct}", "sc1", tag="w2st")
    else: I("buffer_store_dwordx4", v(64 + 4 * ct, 4), v(vL16), s(SWS, 4), s(sT1), "offen", "sc1", tag="w2st")
stage_barrier(2)
a.wait_vm(tag="w2st")
I("s_lshl_b32", s(sT0), s(sC2W), "8"); I("s_lshl_b32", s(sT1), s(sUU), "2"); I("s_add_u32", s(sT0), s(sT0), s(sT1))
I("s_add_u32", s(sT0), s(sT0), hex(FW))
I("v_mov_b32", "v16", "0"); I("s_mov_b64", "exec", "1")
I("buffer_store_dword", v(vNC), "v16", s(SWS, 4), s(sT0), "offen", "sc1", tag="flag")
I("s_mov_b64", "exec", "-1")
stamp(5)
stage_barrier(3); stage_barrier(4); stage_barrier(5)
h_loads()
stage_barrier(6)
assert a.vm[-26:] == vmK[-26:], (a.vm, vmK)
a.vm = a.vm[-26:]

a.label("L_Cjoin")
a.wait_vm(n=26); a.barrier()
load_bias1(vBIAS + 40, 16)
stage_barrier(8)
h_shift()
stage_barrier(9)
I("s_cmp_ge_u32", s(sCW), s(sNCH)); I("s_cbranch_scc1", "L_nohw")
sCVB = sSOFFX
I("s_mul_i32", s(sCVB), s(sCW), str(CV[1] - CV[0])); I("s_add_u32", s(sCVB), s(sCVB), str(CV[0]))
I("v_add_u32", "v16", s(sCVB), v(vL16))
for c in range(4):
    for blk in range(4):
        I("ds_write_b128", "v16", v(vHC + (c * 4 + blk) * 4, 4), f"offset:{c*HCP + 32 + 1024*blk}")
for i in range(4): I("v_mov_b32", v(20 + i), "0")
I("s_mov_b64", "exec", "0x3fffffff")
I("ds_write_b128", "v16", v(20, 4), f"offset:{XR + 4096}")
I("s_mov_b64", "exec", "3")
for c in range(4): I("ds_write_b128", "v16", v(20, 4), f"offset:{c*HCP}")
I("s_mov_b64", "exec", "1")
I("v_lshlrev_b32", "v24", "16", v(vHC))
I("ds_write_b32", "v16", "v24", f"offset:{1*HCP + 28}")
I("ds_write_b32", "v16", v(vHC), f"offset:{2*HCP + 28}")
I("ds_write_b32", "v16", "v24", f"offset:{3*HCP + 24}")
I("ds_write_b32", "v16", v(vHC + 16), f"offset:{3*HCP + 28}")
I("s_mov_b64", "exec", "-1")
a.label("L_nohw")
a.wait_lgkm(0)
a.barrier()
I("s_mul_i32", s(sT0), s(sCW), "6144"); I("s_add_u32", s(sT0), s(sT0), str(XCH))
I("v_add_u32", "v6", s(sT0), v(vL16))
for ft in range(6): I("ds_read_b128", v(ACC + ft * 4, 4), "v6", f"offset:{ft*1024}")
a.wait_vm(tag="bias1", lgkm=0)
gelu_block(ACC, vBIAS + 40, 200, 188, 16)
store_h(200, 1, vNC, 6)
a.barrier()
stamp(2)

I("s_cmp_ge_u32", s(sCW), s(sNCH)); I("s_cbranch_scc1", "L_noconv")
I("v_and_b32", "v6", "31", v(vLANE)); I("v_lshlrev_b32", "v6", "2", "v6")
I("s_lshr_b32", s(sT0), s(sCH), "5"); I("s_lshl_b32", s(sT0), s(sT0), "8"); I("s_add_u32", s(sT0), s(sT0), hex(FK))
poll(7, 6, sT0, vNC)
I("s_lshl_b32", s(sT0), s(sCH), "12"); I("s_add_u32", s(sT0), s(sT0), hex(WS_KVT))
for blk in range(4):
    I("buffer_load_dwordx4", v(64 + 4 * blk, 4), v(vL16), s(SWS, 4), s(sT0), "offen", f"offset:{1024*blk}", "sc1", tag="xr")
I("s_lshl_b32", s(sT0), s(sCH), "1"); I("v_mov_b32", "v6", s(sT0))
I("global_load_ushort", "v7", "v6", s(pD, 2), tag="D")
YA = 16
for i in range(32): I("v_mov_b32", v(YA + i), "0")
vAA, vBA = 8, 9
I("v_lshl_add_u32", "v10", v(vKG), "3", v(vN)); I("v_add_u32", "v10", "1", "v10")
I("v_and_b32", "v11", "3", "v10"); I("v_sub_u32", "v10", "v10", "v11"); I("v_lshlrev_b32", "v10", "1", "v10")
I("v_mul_u32_u24", "v11", str(HCP), "v11"); I("v_add3_u32", v(vAA), "v10", "v11", s(sCVB))
I("v_lshlrev_b32", "v10", "5", v(vN)); I("v_lshlrev_b32", "v11", "4", v(vKG)); I("v_sub_u32", "v10", "v11", "v10")
I("v_add_u32", "v10", str(XR + 480), "v10"); I("v_add_u32", v(vBA), s(sCVB), "v10")
I("v_add_u32", "v10", s(sCVB), v(vL16))
a.wait_vm(tag="xr")
for blk in range(4): I("ds_write_b128", "v10", v(64 + 4 * blk, 4), f"offset:{XR + 1024*blk}")
a.wait_lgkm(0)
stamp(3)
FA = [64, 128]; FB = [96, 160]
def cv_reads(st, extra):
    r = []
    for x in range(8):
        r.append(("ds_read_b64", v(FA[st] + 4 * x, 2), v(vAA), f"offset:{512*x + extra}"))
        r.append(("ds_read_b64", v(FA[st] + 4 * x + 2, 2), v(vAA), f"offset:{512*x + extra + 8}"))
        r.append(("ds_read_b128", v(FB[st] + 4 * x, 4), v(vBA), f"offset:{3584 - 512*x + extra}"))
    return r
def cv_mfmas(st):
    m = []
    for pa in range(8):
        for qa in range(8 - pa):
            d = v(YA + 4 * (pa + qa), 4)
            m.append(("v_mfma_f32_16x16x32_bf16", d, v(FA[st] + 4 * pa, 4), v(FB[st] + 4 * qa, 4), d))
    return m
for x in cv_reads(0, 0): I(*x)
I("s_mov_b32", s(sCNT), "4")
a.wait_lgkm(0)
a.label("L_cv")
interleave(cv_reads(1, 64), cv_mfmas(0))
a.wait_lgkm(0)
interleave(cv_reads(0, 128), cv_mfmas(1))
I("v_add_u32", v(vAA), "128", v(vAA)); I("v_add_u32", v(vBA), "128", v(vBA))
I("s_sub_u32", s(sCNT), s(sCNT), "1"); I("s_cmp_lg_u32", s(sCNT), "0")
a.wait_lgkm(0)
I("s_cbranch_scc1", "L_cv")
stamp(4)
I("v_lshlrev_b32", "v10", "5", v(vN)); I("v_lshl_add_u32", "v10", v(vKG), "3", "v10")
I("v_sub_u32", "v11", str(XR + 4088 - 3584), "v10"); I("v_add_u32", "v11", s(sCVB), "v11")
I("v_add_u32", "v10", s(sCVB), "v10")
for a_ in range(8): I("ds_read_b64", v(64 + 2 * a_, 2), "v11", f"offset:{3584 - 512*a_}")
a.wait_vm(tag="D", lgkm=0)
I("v_lshlrev_b32", "v12", "16", "v7"); I("v_mov_b32", "v13", "v12")
for a_ in range(8):
    e = 64 + 2 * a_; y = YA + 4 * a_
    K0, K1, T = 96, 98, 100
    I("v_and_b32", v(K0), "0xffff0000", v(e + 1)); I("v_lshlrev_b32", v(K0 + 1), "16", v(e + 1))
    I("v_and_b32", v(K1), "0xffff0000", v(e)); I("v_lshlrev_b32", v(K1 + 1), "16", v(e))
    I("v_pk_mul_f32", v(K0, 2), v(K0, 2), "v[12:13]"); I("v_pk_mul_f32", v(K1, 2), v(K1, 2), "v[12:13]")
    rnd_pair(K0, T); rnd_pair(K1, T); rnd_pair(y, T); rnd_pair(y + 2, T)
    I("v_pk_add_f32", v(y, 2), v(y, 2), v(K0, 2)); I("v_pk_add_f32", v(y + 2, 2), v(y + 2, 2), v(K1, 2))
    I("v_cvt_pk_bf16_f32", v(e), v(y), v(y + 1)); I("v_cvt_pk_bf16_f32", v(e + 1), v(y + 2), v(y + 3))
    I("ds_write_b64", "v10", v(e, 2), f"offset:{512*a_}")
a.wait_lgkm(0)
I("v_add_u32", "v10", s(sCVB), v(vL16))
for blk in range(4): I("ds_read_b128", v(96 + 4 * blk, 4), "v10", f"offset:{1024*blk}")
I("s_lshl_b32", s(sT0), s(sCH), "12"); I("s_add_u32", s(sT0), s(sT0), hex(WS_YT))
a.wait_lgkm(0)
for blk in range(4):
    I("buffer_store_dwordx4", v(96 + 4 * blk, 4), v(vL16), s(SWS, 4), s(sT0), "offen", f"offset:{1024*blk}", "sc1", tag="yst")
I("s_mul_i32", s(sT0), s(sCH), "52429"); I("s_lshr_b32", s(sT0), s(sT0), "20")
I("s_mul_i32", s(sT1), s(sT0), "20"); I("s_sub_u32", s(sT1), s(sCH), s(sT1))
I("s_lshl_b32", s(sT0), s(sT0), "7"); I("s_lshl_b32", s(sT1), s(sT1), "2"); I("s_add_u32", s(sT0), s(sT0), s(sT1))
I("s_add_u32", s(sT0), s(sT0), hex(FY))
publish(6, sT0, vNC)
a.label("L_noconv")
stamp(6)

I("s_mul_i32", s(sCVB), s(sCW), str(CV[1] - CV[0])); I("s_add_u32", s(sCVB), s(sCVB), str(CV[0]))
I("s_cmp_eq_u32", s(sCW), "3"); I("s_cselect_b32", s(sCVB), str(CV[3]), s(sCVB))
I("v_lshlrev_b32", "v6", "2", v(vLANE))
I("s_lshl_b32", s(sT0), s(sR2), "8"); I("s_add_u32", s(sT0), s(sT0), hex(FH))
poll(7, 6, sT0, vNC)
I("s_lshl_b32", s(sT0), s(sR2), "8"); I("s_add_u32", s(sT0), s(sT0), hex(WS_G))
I("buffer_load_dword", "v16", "v6", s(SWS, 4), s(sT0), "offen", "sc1", tag="gl")
I("v_min_u32", "v6", "19", v(vLANE)); I("v_lshlrev_b32", "v6", "2", "v6")
I("s_lshl_b32", s(sT0), s(sC2), "2"); I("s_add_u32", s(sT0), s(sT0), s(sCW)); I("s_lshl_b32", s(sT1), s(sT0), "7")
I("s_add_u32", s(sT1), s(sT1), hex(FY))
poll(7, 6, sT1, vNC)
I("v_lshlrev_b32", "v6", "2", v(vLANE)); I("ds_write_b32", "v6", "v16", f"offset:{MISC + 64 - 131072}" if False else "offset:0") if False else None
I("v_lshlrev_b32", "v6", "2", v(vLANE)); I("v_add_u32", "v6", str(MISC + 64), "v6"); I("ds_write_b32", "v6", "v16")
I("s_mul_i32", s(sT0), s(sT0), str(20 * 4096)); I("s_lshl_b32", s(sT1), s(sR2), "7"); I("s_add_u32", s(sT0), s(sT0), s(sT1))
I("s_add_u32", s(sT0), s(sT0), hex(WS_YT))
I("v_lshlrev_b32", "v6", "12", v(vKG)); I("v_lshl_add_u32", "v6", v(vN), "3", "v6")
for i in range(5):
    I("buffer_load_dwordx2", v(64 + 2 * i, 2), "v6", s(SWS, 4), s(sT0), "offen", "sc1", tag="yl")
    if i < 4: I("s_add_u32", s(sT0), s(sT0), str(4 * 4096))
I("v_lshlrev_b32", "v6", "7", v(vKG)); I("v_lshl_add_u32", "v6", v(vN), "3", "v6"); I("v_add_u32", "v6", s(sCVB), "v6")
a.wait_vm(tag="yl")
for i in range(5): I("ds_write_b64", "v6", v(64 + 2 * i, 2), f"offset:{512*i}")
I("v_bfe_u32", "v7", v(vLANE), "2", "2"); I("v_lshlrev_b32", "v7", "7", "v7")
I("v_lshl_add_u32", "v7", v(vKG), "5", "v7"); I("v_and_b32", "v8", "3", v(vLANE)); I("v_lshl_add_u32", "v7", "v8", "3", "v7")
I("v_add_u32", "v7", s(sCVB), "v7")
I("v_mul_u32_u24", "v8", "160", v(vLANE)); I("s_mul_i32", s(sT0), s(sCW), "40"); I("s_add_u32", s(sT0), s(sT0), str(QT))
I("v_add_u32", "v8", s(sT0), "v8")
a.wait_lgkm(0)
for i in range(5):
    I("ds_read_b64_tr_b16", v(64 + 2 * i, 2), "v7", f"offset:{512*i}")
    I("ds_read_b64", v(80 + 2 * i, 2), "v8", f"offset:{8*i}")
I("v_mov_b32", "v17", "v16")
a.wait_lgkm(0)
for i in range(5):
    for h in range(2):
        Y, Qq, T = 96, 98, 100
        unpack(Y, 64 + 2 * i + h); unpack(Qq, 80 + 2 * i + h)
        I("v_pk_mul_f32", v(Y, 2), v(Y, 2), v(Qq, 2)); rnd_pair(Y, T)
        I("v_pk_mul_f32", v(Y, 2), v(Y, 2), "v[16:17]")
        I("v_cvt_pk_bf16_f32", v(80 + 2 * i + h), v(Y), v(Y + 1))
    I("ds_write_b64", "v8", v(80 + 2 * i, 2), f"offset:{8*i}")
stamp(7)

a.label("L_final")
a.vm = []
srd(SO, pOUT, 2621440)
I("s_mul_i32", s(sT0), s(sC2), "160"); I("s_add_u32", s(sT2), s(pB2), s(sT0)); I("s_addc_u32", s(sT3), s(pB2 + 1), "0")
I("s_lshl_b32", s(sT1), s(sR2), "6"); I("s_mul_i32", s(sT1), s(sT1), "1280"); I("s_add_u32", s(sT4), s(sT1), s(sT0))
def fin_setup(idreg, b):
    I("v_mul_u32_u24", v(b), "6554", v(idreg)); I("v_lshrrev_b32", v(b), "16", v(b))
    I("v_mul_u32_u24", v(b + 1), "10", v(b)); I("v_sub_u32", v(b + 1), v(idreg), v(b + 1))
    I("v_lshlrev_b32", v(b + 5), "4", v(b + 1))
    I("global_load_dwordx4", v(b + 8, 4), v(b + 5), s(sT2, 2), tag="b2")
    I("v_mul_u32_u24", v(b + 2), str(REDP), v(b)); I("v_lshl_add_u32", v(b + 2), v(b + 1), "5", v(b + 2))
    I("v_mul_u32_u24", v(b + 3), "160", v(b)); I("v_add3_u32", v(b + 3), v(b + 3), v(b + 5), s(sT5))
    I("v_lshlrev_b32", v(b + 4), "2", v(b)); I("v_add_u32", v(b + 4), str(MISC + 64), v(b + 4))
    I("v_mul_u32_u24", v(b + 6), "1280", v(b)); I("v_add_u32", v(b + 5), v(b + 5), v(b + 6))
def fin_item(b):
    P = 128
    for w in range(4):
        if w * REDW + 16 < 65536:
            I("ds_read_b128", v(P + 8 * w, 4), v(b + 2), f"offset:{RED + w*REDW}")
            I("ds_read_b128", v(P + 8 * w + 4, 4), v(b + 2), f"offset:{RED + w*REDW + 16}")
    I("ds_read_b128", v(P + 32, 4), v(b + 3))
    I("ds_read_b32", v(P + 36), v(b + 4))
    a.wait_vm(n=0, lgkm=0)
    G1, T, B, GA = P + 38, P + 40, P + 42, P + 44
    I("v_sub_f32", v(G1), "1.0", v(P + 36)); I("v_cvt_pk_bf16_f32", v(T), v(G1), v(G1)); unpack(G1, T)
    for j in range(4):
        x = P + 2 * j
        I("v_pk_add_f32", v(x, 2), v(x, 2), v(x + 8, 2)); I("v_pk_add_f32", v(x + 16, 2), v(x + 16, 2), v(x + 24, 2))
        I("v_pk_add_f32", v(x, 2), v(x, 2), v(x + 16, 2)); rnd_pair(x, T)
        unpack(B, b + 8 + j); I("v_pk_add_f32", v(x, 2), v(x, 2), v(B, 2)); rnd_pair(x, T)
        I("v_pk_mul_f32", v(x, 2), v(x, 2), v(G1, 2)); rnd_pair(x, T)
        unpack(GA, P + 32 + j); I("v_pk_add_f32", v(x, 2), v(x, 2), v(GA, 2))
        I("v_cvt_pk_bf16_f32", v(P + 48 + j), v(x), v(x + 1))
    I("buffer_store_dwordx4", v(P + 48, 4), v(b + 5), s(SO, 4), s(sT4), "offen", tag="out")
I("s_mov_b32", s(sT5), str(QT))
fin_setup(0, 96)
I("v_add_u32", "v120", "512", "v0"); I("v_min_u32", "v120", "639", "v120")
fin_setup(120, 108)
a.wait_lgkm(0)
a.barrier()
fin_item(96)
I("s_cmp_ge_u32", s(sWAVE), "2"); I("s_cbranch_scc1", "L_fin_done")
fin_item(108)
a.label("L_fin_done")
stamp(8)
stamp_flush()
a.label("L_end")
I("s_endpgm")
a.raw(f""".section .rodata,"a"
.p2align 6
.amdhsa_kernel {KNAME}
  .amdhsa_next_free_vgpr 256
  .amdhsa_next_free_sgpr 96
  .amdhsa_accum_offset 256
  .amdhsa_group_segment_fixed_size 0
  .amdhsa_kernarg_size 120
  .amdhsa_user_sgpr_count 2
  .amdhsa_user_sgpr_kernarg_segment_ptr 1
  .amdhsa_system_sgpr_workgroup_id_x 1
  .amdhsa_float_denorm_mode_32 3
.end_amdhsa_kernel
""")
out = [x for x in sys.argv[1:] if not x.startswith("--")]
open(out[0] if out else "k.s", "w").write(a.text())
```

```python
import sys, struct
from asmlib import Asm, v, s

KNAME = "gated_mix__ssm_conv_h3__dense_activation_gelu__prompt_kernel"
STAMP = "--stamp" in sys.argv
def knob(name, default):
    for x in sys.argv:
        if x.startswith(f"--{name}="): return int(x.split("=")[1])
    return default
SLEEPX = knob("sleepx", 1)
NOPOLL = knob("nopoll", 0)
NOWORK = knob("nowork", 0)

FK, FW, FH, FY = 0x0000, 0x2000, 0x3000, 0x5000
WS_G = 0x10000
WS_KVT = 0x100000
WS_W2F = 0x400000
WS_YT = 0x600000
WS_HF = 0x900000
WS_DBG = 0xF00000
WS_SIZE = 0x1000000
SLOT = 28672
WOFF = 16384
PRE = 114688
KT = PRE
VT = PRE + 17664
HCP = 4160
XR = 4 * HCP
CVSZ = 21248
MISC = 157184
M_NONCE, M_PF, M_TD, M_TK, M_DN, M_R, M_G = MISC, MISC + 4, MISC + 8, MISC + 16, MISC + 32, MISC + 64, MISC + 256
PRIV = [86016, 157696, 114688, 114688 + CVSZ]
GYO = 2560
RED = 0
REDW = 21504
REDP = 336
LDS_BYTES = 163840
NPF = 4
NSLOT = 4
LDEPTH = knob("ld", 3)
NSET = knob("nset", 3)
PFDEPTH = knob("pfd", 30)

sWAVE, sXCD, sSLOT, sRB, sC, sR2, sC2 = 3, 4, 5, 6, 7, 8, 9
sT0, sT1, sT2, sT3, sT4, sT5 = 10, 11, 12, 13, 14, 15
pQ, pK, pV, pSK, pH, pD, pBX, pW1, pB1, pW2, pB2, pGW, pOUT, pDBG, pWS = [16 + 2 * i for i in range(15)]
SQ, SW1, SWS, SA, SB, SH, SO = 48, 52, 56, 60, 64, 68, 72
sWBASE = 76
sCW = 77
sSOFFX, sSOFFW, sLSLOT, sCNT = 78, 79, 80, 81
sM0X, sM0W = 82, 83
sCH, sCVB = 84, 85
sEX = 86
sTM = 88
sU0, sU1 = 90, 91
sPOLL = 92
sFLAG = 93
sPC = 94
sSTG = 96
sWK = 97

a = Asm()
I = a.I

def f32bits(x): return struct.unpack("<I", struct.pack("<f", x))[0]

def srd(d, p, nbytes):
    I("s_mov_b32", s(d), s(p)); I("s_mov_b32", s(d + 1), s(p + 1))
    I("s_mov_b32", s(d + 2), hex(nbytes)); I("s_mov_b32", s(d + 3), "0x20000")

vSTAMP = 255
def stamp(idx, real=False):
    if not STAMP: return
    I("s_memrealtime" if real else "s_memtime", s(sTM, 2)); a.wait_lgkm(0)
    I("v_writelane_b32", v(vSTAMP), s(sTM), str(idx))
def stamp_flush():
    if not STAMP: return
    stamp(62, real=True)
    I("s_lshl_b32", s(sT5), s(2), "3"); I("s_add_u32", s(sT5), s(sT5), s(sWAVE)); I("s_lshl_b32", s(sT5), s(sT5), "8")
    I("s_add_u32", s(sT5), s(sT5), hex(WS_DBG))
    I("v_lshlrev_b32", "v254", "2", v(1))
    I("buffer_store_dword", v(vSTAMP), "v254", s(SWS, 4), s(sT5), "offen", tag="stamp")

_lbl = [0]
def newlbl(p):
    _lbl[0] += 1; return f"L_{p}_{_lbl[0]}"

def poll(vtmp, voff, soff_reg, vnonce, wide=False, sleep=4):
    top = newlbl("poll"); done = newlbl("pdone")
    I("s_mov_b32", s(sPOLL), "1" if NOPOLL else "0x40000")
    a.label(top)
    if wide: I("buffer_load_dwordx2", v(vtmp, 2), v(voff), s(SWS, 4), s(soff_reg), "offen", "sc1")
    else: I("buffer_load_dword", v(vtmp), v(voff), s(SWS, 4), s(soff_reg), "offen", "sc1")
    a.wait_vm(n=0)
    I("v_cmp_ne_u32", "vcc", v(vtmp + (1 if wide else 0)), v(vnonce))
    a.nop(1)
    I("s_cbranch_vccz", done)
    I("s_sleep", str(min(127, sleep * SLEEPX)))
    I("s_sub_u32", s(sPOLL), s(sPOLL), "1")
    I("s_cmp_lg_u32", s(sPOLL), "0")
    I("s_cbranch_scc1", top)
    a.label(done)

def lds_wait(vtmp, vaddr, off, cmp_op, ref, sleep=1):
    top = newlbl("lw"); done = newlbl("lwd")
    I("s_mov_b32", s(sPOLL), "0x400000")
    a.label(top)
    I("ds_read_b32", v(vtmp), v(vaddr), f"offset:{off}"); a.wait_lgkm(0)
    I(cmp_op, "vcc", ref, v(vtmp)); a.nop(1)
    I("s_cbranch_vccz", done)
    if sleep: I("s_sleep", str(sleep))
    I("s_sub_u32", s(sPOLL), s(sPOLL), "1"); I("s_cmp_lg_u32", s(sPOLL), "0"); I("s_cbranch_scc1", top)
    a.label(done)

def flag_store(voff, soff_reg, vnonce, nlanes=1, zero=True):
    if zero: I("v_mov_b32", v(voff), "0")
    I("s_mov_b64", "exec", str((1 << nlanes) - 1))
    I("buffer_store_dword", v(vnonce), v(voff), s(SWS, 4), s(soff_reg), "offen", "sc1", tag="flag")
    I("s_mov_b64", "exec", "-1")

def unpack(dlo, src):
    I("v_lshlrev_b32", v(dlo), "16", v(src)); I("v_and_b32", v(dlo + 1), "0xffff0000", v(src))

def interleave(r, m):
    n = max(len(r), len(m))
    for i in range(n):
        if i < len(r): I(*r[i])
        if i < len(m): I(*m[i])
def frontload(r, m, k=3):
    ri = 0
    for x in m:
        I(*x)
        for _ in range(k):
            if ri < len(r): I(*r[ri]); ri += 1
    while ri < len(r): I(*r[ri]); ri += 1
def rot2(dst):
    I("s_and_b32", s(dst), s(sC2), "3"); I("s_lshl_b32", s(dst), s(dst), "1"); I("s_add_u32", s(dst), s(dst), s(sR2))
    I("s_and_b32", s(dst), s(dst), "7"); I("s_mul_i32", s(dst), s(dst), "3"); I("s_lshr_b32", s(dst), s(dst), "1")

LOG2E = 1.4426950408889634
C0 = -2.0 * LOG2E * 0.7978845608028654
C1 = C0 * 0.044715

hdr = open("cdna_kernels/" + KNAME[:-7] + ".s.ref").read().split("; Override")[0]
a.raw(hdr.rstrip())
a.raw(f"; @launch grid=(256,1,1) block=(512,1,1) lds={LDS_BYTES}")
a.raw('.amdgcn_target "amdgcn-amd-amdhsa--gfx950"\n.text')
a.raw(f".globl {KNAME}\n.p2align 8\n.type {KNAME},@function\n{KNAME}:")
I("s_cmp_ge_u32", "s2", "256"); I("s_cbranch_scc1", "L_end")
I("s_load_dwordx16", s(16, 16), "s[0:1]", "0")
I("s_load_dwordx8", s(32, 8), "s[0:1]", "64")
I("s_load_dwordx4", s(40, 4), "s[0:1]", "96")
I("s_load_dwordx2", s(44, 2), "s[0:1]", "112")
I("s_getpc_b64", s(sPC, 2))
vLANE = 1
I("v_and_b32", v(vLANE), "63", "v0")
I("v_lshrrev_b32", "v2", "6", "v0")
I("v_readfirstlane_b32", s(sWAVE), "v2")
I("s_and_b32", s(sXCD), "s2", "7"); I("s_lshr_b32", s(sSLOT), "s2", "3")
I("s_lshr_b32", s(sT0), s(sXCD), "1"); I("s_and_b32", s(sT1), s(sXCD), "1")
I("s_lshl_b32", s(sRB), s(sT0), "2"); I("s_lshr_b32", s(sT2), s(sSLOT), "3"); I("s_add_u32", s(sRB), s(sRB), s(sT2))
I("s_lshl_b32", s(sC), s(sT1), "3"); I("s_and_b32", s(sT2), s(sSLOT), "7"); I("s_add_u32", s(sC), s(sC), s(sT2))
I("s_lshl_b32", s(sR2), s(sT0), "3"); I("s_lshr_b32", s(sT2), s(sSLOT), "2"); I("s_add_u32", s(sR2), s(sR2), s(sT2))
I("s_lshl_b32", s(sC2), s(sT1), "2"); I("s_and_b32", s(sT2), s(sSLOT), "3"); I("s_add_u32", s(sC2), s(sC2), s(sT2))
I("s_and_b32", s(sCW), s(sWAVE), "3"); I("s_and_b32", s(sWK), s(sWAVE), "1")
vN, vKG = 2, 3
I("v_and_b32", v(vN), "15", v(vLANE)); I("v_lshrrev_b32", v(vKG), "4", v(vLANE))
vL16 = 4
I("v_lshlrev_b32", v(vL16), "4", v(vLANE))
vNC = 5
if STAMP: I("v_mov_b32", v(vSTAMP), "0")
I("s_cmp_lt_u32", s(sWAVE), "4"); I("s_cbranch_scc1", "L_G")
I("s_cmp_ge_u32", s(sWAVE), "6"); I("s_cbranch_scc1", "L_W")

vDW = 12
for i in range(3):
    I("v_add_u32", "v16", str(64 * i), v(vLANE))
    I("v_mul_u32_u24", "v17", "5462", "v16"); I("v_lshrrev_b32", "v17", "16", "v17")
    I("v_mul_u32_u24", "v18", "12", "v17"); I("v_sub_u32", "v18", "v16", "v18")
    I("v_bfe_u32", "v19", "v17", "3", "1"); I("v_lshlrev_b32", "v19", "1", "v19"); I("v_xor_b32", "v18", "v18", "v19")
    I("v_mul_u32_u24", "v17", "3072", "v17"); I("v_lshl_add_u32", "v17", "v18", "4", "v17")
    I("v_subrev_u32", v(vDW + i), str(1024 * i), "v17")
sKST = sU0
I("s_and_b32", s(sT1), s(sRB), "3"); I("s_lshl_b32", s(sT1), s(sT1), "1"); I("s_add_u32", s(sT1), s(sT1), s(sC)); I("s_and_b32", s(sKST), s(sT1), "7")
I("s_mul_i32", s(sWBASE), s(sC), "192"); I("s_mul_i32", s(sT0), s(sWK), str(32 * 3072)); I("s_add_u32", s(sWBASE), s(sWBASE), s(sT0))
I("s_mov_b32", s(sSTG), "0")
I("s_mov_b32", s(sLSLOT), "0")
I("s_mul_i32", s(sM0W), s(sWK), "6144"); I("s_add_u32", s(sM0W), s(sM0W), str(WOFF))
I("v_min_u32", "v20", "3", v(vLANE)); I("v_lshlrev_b32", "v20", "2", "v20"); I("v_add_u32", "v20", str(M_DN), "v20")
I("s_lshl_b32", s(sT0), s(sWK), "2"); I("s_add_u32", s(sT0), s(sT0), str(M_R)); I("v_mov_b32", "v21", s(sT0))
I("v_mov_b32", "v22", "0")
a.wait_lgkm(0)
srd(SW1, pW1, 640 * 3072)
stamp(63, real=True); stamp(0)
def issue_stage():
    I("s_mul_i32", s(sSOFFW), s(sKST), str(64 * 3072)); I("s_add_u32", s(sSOFFW), s(sSOFFW), s(sWBASE))
    I("s_add_u32", s(sT3), s(sLSLOT), s(sM0W))
    for g in range(2):
        I("s_add_u32", "m0", s(sT3), str(3072 * g))
        for i in range(3):
            I("buffer_load_dwordx4", v(vDW + i), s(SW1, 4), s(sSOFFW), "offen", f"offset:{1024*i}", "lds", tag="st")
        if g < 1: I("s_add_u32", s(sSOFFW), s(sSOFFW), str(16 * 3072))
    I("s_add_u32", s(sKST), s(sKST), "1"); I("s_cmp_eq_u32", s(sKST), "10"); I("s_cselect_b32", s(sKST), "0", s(sKST))
    I("s_add_u32", s(sLSLOT), s(sLSLOT), str(SLOT)); I("s_cmp_eq_u32", s(sLSLOT), str(NSLOT * SLOT)); I("s_cselect_b32", s(sLSLOT), "0", s(sLSLOT))
    I("s_add_u32", s(sSTG), s(sSTG), "1")
for _ in range(LDEPTH - 1): issue_stage()
a.barrier()
a.label("L_ld_loop")
I("s_cmp_lt_u32", s(sSTG), str(NSLOT)); I("s_cbranch_scc1", "L_ld_free")
I("s_cmp_ge_u32", s(sSTG), "10"); I("s_cbranch_scc1", "L_ld_last")
I("s_sub_u32", s(sT1), s(sSTG), str(NSLOT - 1))
lds_wait(23, 20, 0, "v_cmp_gt_u32", s(sT1), sleep=0)
a.label("L_ld_free")
a.vm = ["st"] * (6 * (LDEPTH - 1))
issue_stage()
I("v_add_u32", "v22", "1", "v22")
a.wait_vm(n=6 * (LDEPTH - 1))
I("ds_write_b32", "v21", "v22")
if STAMP:
    I("s_add_u32", "m0", s(sSTG), "30"); stamp("m0")
I("s_branch", "L_ld_loop")
a.label("L_ld_last")
for k in range(LDEPTH - 2, -1, -1):
    I("v_add_u32", "v22", "1" if k else "90", "v22")
    a.wait_vm(n=6 * k)
    I("ds_write_b32", "v21", "v22")
stamp(5)
srd(SWS, pWS, WS_SIZE)
I("v_mov_b32", "v7", str(MISC))
lds_wait(vNC, 7, 0, "v_cmp_eq_u32", "0", sleep=2)
I("s_cmp_eq_u32", s(sWK), "1"); I("s_cbranch_scc1", "L_pf")
I("s_mov_b32", s(sCVB), str(PRIV[0]))
lds_wait(23, 20, 0, "v_cmp_gt_u32", "8", sleep=1)
if NOWORK == 2: I("s_branch", "L_final")
I("s_and_b32", s(sT0), "s2", "1"); I("s_cmp_eq_u32", s(sT0), "1"); I("s_cbranch_scc1", "L_preepi")
I("s_lshr_b32", s(sT0), "s2", "1"); I("s_mul_i32", s(sCH), s(sT0), "5"); I("s_add_u32", s(sCH), s(sCH), "2")
I("s_branch", "L_conv")

a.label("L_pf")
a.vm = []
I("s_mov_b32", s(sCVB), str(PRIV[1]))
I("v_min_u32", "v6", "47", v(vLANE)); I("v_lshlrev_b32", "v6", "2", "v6")
I("s_lshl_b32", s(sT0), s(sC2), "8"); I("s_add_u32", s(sT0), s(sT0), hex(FW))
poll(8, 6, sT0, vNC)
lds_wait(23, 20, 0, "v_cmp_gt_u32", "10", sleep=1)
rot2(sT1)
I("s_mul_i32", s(sT2), s(sC2), str(48 * 5120)); I("s_add_u32", s(sT2), s(sT2), hex(WS_W2F))
I("v_add_u32", "v6", "4096", v(vL16))
for i in range(NPF):
    I("s_mul_i32", s(sT0), s(sT1), str(4 * 5120)); I("s_add_u32", s(sT0), s(sT0), s(sT2))
    I("s_add_u32", s(sT1), s(sT1), "1"); I("s_cmp_eq_u32", s(sT1), "12"); I("s_cselect_b32", s(sT1), "0", s(sT1))
    for w in range(4):
        I("s_mov_b32", "m0", str(RED + w * REDW + i * 5120))
        for ct in range(4):
            I("buffer_load_dwordx4", v(vL16), s(SWS, 4), s(sT0), "offen", f"offset:{1024*ct}", "sc1", "lds", tag="pf")
        I("s_mov_b32", "m0", str(RED + w * REDW + i * 5120 + 4096))
        I("buffer_load_dwordx4", "v6", s(SWS, 4), s(sT0), "offen", "sc1", "lds", tag="pf")
        I("s_add_u32", s(sT0), s(sT0), "5120")
        if len(a.vm) > PFDEPTH: a.wait_vm(n=PFDEPTH)
a.wait_vm(n=0)
I("ds_write_b32", "v7", v(vNC), "offset:4")
stamp(3)
I("s_branch", "L_preepi")

a.label("L_W")
a.vm = []
vG = 20
vGV = 216
def g_loads():
    I("s_lshl_b32", s(sT0), "s2", "3"); I("s_lshl_b32", s(sT1), s(sWK), "2"); I("s_add_u32", s(sT0), s(sT0), s(sT1))
    I("v_add_u32", v(vG), s(sT0), v(vKG))
    I("v_lshlrev_b32", v(vGV + 2), "3", v(vG))
    I("v_lshlrev_b32", v(vG + 1), "4", v(vN))
    I("v_mul_u32_u24", v(vG + 2), "1280", v(vG)); I("v_add_u32", v(vG + 2), v(vG + 2), v(vG + 1))
    for i in range(5):
        I("global_load_dwordx4", v(160 + 4 * i, 4), v(vG + 2), s(pQ, 2), f"offset:{256*i}", tag="g")
        I("global_load_dwordx4", v(180 + 4 * i, 4), v(vG + 1), s(pGW, 2), f"offset:{256*i}", tag="g")
def g_compute():
    acc, x, w, t = vG + 4, vG + 6, vG + 8, vG + 10
    for i in range(20):
        unpack(x, 160 + i); unpack(w, 180 + i)
        if i == 0: I("v_pk_mul_f32", v(acc, 2), v(x, 2), v(w, 2))
        else: I("v_pk_fma_f32", v(acc, 2), v(x, 2), v(w, 2), v(acc, 2))
    I("v_add_f32", v(acc), v(acc), v(acc + 1))
    for off in (0x041F, 0x081F, 0x101F, 0x201F):
        I("ds_swizzle_b32", v(t), v(acc), f"offset:{off}"); a.wait_lgkm(0)
        I("v_add_f32", v(acc), v(acc), v(t))
    I("v_cvt_pk_bf16_f32", v(t), v(acc), v(acc)); I("v_lshlrev_b32", v(acc), "16", v(t))
    I("v_mul_f32", v(acc), hex(f32bits(-LOG2E)), v(acc))
    I("v_exp_f32", v(acc), v(acc)); I("v_add_f32", v(acc), "1.0", v(acc)); I("v_rcp_f32", v(acc), v(acc))
    I("v_cvt_pk_bf16_f32", v(t), v(acc), v(acc)); I("v_lshlrev_b32", v(vGV), "16", v(t))
    I("v_mov_b32", v(vGV + 1), v(vNC))
    I("s_mov_b32", s(sT0), hex(WS_G))
    I("s_mov_b32", s(sEX), "0x10001"); I("s_mov_b32", s(sEX + 1), "0x10001"); I("s_mov_b64", "exec", s(sEX, 2))
    I("buffer_store_dwordx2", v(vGV, 2), v(vGV + 2), s(SWS, 4), s(sT0), "offen", "sc1", tag="gst")
    I("s_mov_b64", "exec", "-1")
def nonce_get():
    top = newlbl("nct"); done = newlbl("ncd")
    I("s_mov_b32", s(sPOLL), "0x40000"); I("v_mov_b32", "v6", "0")
    a.label(top)
    I("global_load_dword", v(vNC), "v6", s(pDBG, 2), "sc1")
    a.wait_vm(n=0)
    I("v_cmp_eq_u32", "vcc", "0", v(vNC)); a.nop(1)
    I("s_cbranch_vccz", done)
    I("s_sleep", "2"); I("s_sub_u32", s(sPOLL), s(sPOLL), "1"); I("s_cmp_lg_u32", s(sPOLL), "0"); I("s_cbranch_scc1", top)
    a.label(done)
    I("v_mov_b32", "v7", str(MISC)); I("ds_write_b32", "v7", v(vNC))

if NOWORK:
    a.wait_lgkm(0); stamp(63, real=True); stamp(0); srd(SWS, pWS, WS_SIZE); a.barrier(); nonce_get()
    I("s_mul_i32", s(sCVB), s(sWK), str(CVSZ)); I("s_add_u32", s(sCVB), s(sCVB), str(PRIV[2]))
    I("s_branch", "L_Wjoin" if NOWORK == 1 else "L_final")
I("s_cmp_ge_u32", s(sSLOT), "20"); I("s_cbranch_scc1", "L_WW")
sTT, sCB = sU0, sU1
I("s_mul_i32", s(sT0), s(sXCD), "20"); I("s_add_u32", s(sT0), s(sT0), s(sSLOT))
I("s_mul_i32", s(sTT), s(sT0), "52429"); I("s_lshr_b32", s(sTT), s(sTT), "18")
I("s_mul_i32", s(sT1), s(sTT), "5"); I("s_sub_u32", s(sCB), s(sT0), s(sT1))
a.wait_lgkm(0)
stamp(63, real=True); stamp(0)
I("s_setprio", "1")
vSKR = 48
I("v_lshrrev_b32", "v16", "3", v(vLANE)); I("v_lshlrev_b32", "v16", "4", "v16")
I("s_lshl_b32", s(sT0), s(sCB), "10"); I("s_lshl_b32", s(sT1), s(sWK), "9"); I("s_add_u32", s(sT0), s(sT0), s(sT1))
I("v_add_u32", "v16", s(sT0), "v16")
for rho in range(4):
    I("global_load_dwordx4", v(vSKR + 4 * rho, 4), "v16", s(pSK, 2), f"offset:{128*rho}", tag="sk")
g_loads()
srd(SWS, pWS, WS_SIZE)
a.barrier()
I("s_lshl_b32", s(sT0), s(sCB), "2"); I("s_lshl_b32", s(sT1), s(sWK), "1"); I("s_add_u32", s(sT0), s(sT0), s(sT1)); I("s_lshl_b32", s(sT0), s(sT0), "8")
I("s_lshl_b32", s(sT1), s(sTT), "2"); I("s_add_u32", s(sT0), s(sT0), s(sT1)); I("s_add_u32", s(sFLAG), s(sT0), hex(FK))
ad = 16
I("v_and_b32", v(ad), "7", v(vLANE)); I("v_mul_u32_u24", v(ad), "2064", v(ad))
I("v_lshrrev_b32", v(ad + 1), "3", v(vLANE)); I("v_lshl_add_u32", v(ad), v(ad + 1), "2", v(ad))
I("s_lshl_b32", s(sT0), s(sWK), "7"); I("s_add_u32", s(sT0), s(sT0), str(KT)); I("v_add_u32", v(ad), s(sT0), v(ad))
I("v_lshlrev_b32", v(ad + 1), "13", v(ad + 1))
I("v_and_b32", v(ad + 2), "7", v(vLANE)); I("v_lshlrev_b32", v(ad + 2), "4", v(ad + 2))
I("v_sub_u32", v(ad + 1), v(ad + 1), v(ad + 2)); I("v_add_u32", v(ad + 1), "112", v(ad + 1))
I("v_add_u32", v(ad + 2), "4096", v(ad + 1))
I("s_lshl_b32", s(sT0), s(sCB), "7"); I("s_lshl_b32", s(sT1), s(sWK), "6"); I("s_add_u32", s(sT0), s(sT0), s(sT1))
I("s_lshl_b32", s(sT0), s(sT0), "12")
I("s_lshl_b32", s(sT1), s(sTT), "7"); I("s_sub_u32", s(sT0), s(sT0), s(sT1)); I("s_add_u32", s(sT4), s(sT0), hex(WS_KVT + 4080 - 112))
I("s_mov_b32", s(sT2), "0x05040100"); I("s_mov_b32", s(sT3), "0x07060302")
I("v_and_b32", "v7", "3", v(vLANE)); I("v_lshlrev_b32", "v7", "2", "v7"); I("v_add_u32", "v7", str(M_TK), "v7")
I("s_lshl_b32", s(sT0), s(sWK), "2"); I("s_add_u32", s(sT0), s(sT0), str(M_TD)); I("v_mov_b32", "v6", s(sT0)); I("v_xor_b32", "v10", "4", "v6")
I("v_mov_b32", "v8", "1")
lds_wait(9, 7, 0, "v_cmp_eq_u32", "0", sleep=1)
stamp(18)
KR, VR, KU, S, P, VU, OUT, O2 = 64, 76, 96, 118, 126, 128, 132, 140
def kv_reads():
    for i in range(11): I("ds_read_b32", v(KR + i), v(ad), f"offset:{(1+i)*256 + ((5+i)>>3)*16}")
    for i in range(8): I("ds_read_b32", v(VR + i), v(ad), f"offset:{VT-KT + i*256}")
    I("v_add_u32", v(ad), "32", v(ad))
kv_reads()
I("s_mov_b32", s(sCNT), "4")
a.wait_vm(tag="sk")
a.label("L_kv")
for j in range(4):
    for ch in range(2):
        src = vSKR + 2 * ch + (j >> 1)
        if j & 1: I("v_and_b32", v(S + 2 * j + ch), "0xffff0000", v(src))
        else: I("v_lshlrev_b32", v(S + 2 * j + ch), "16", v(src))
for i in range(12): I("v_mov_b32", v(vSKR + i), v(vSKR + 4 + i))
a.wait_lgkm(0)
for i in range(11): unpack(KU + 2 * i, KR + i)
for t_ in range(8): unpack(224 + 2 * t_, VR + t_)
kv_reads()
for t_ in range(8):
    I("v_pk_mul_f32", v(P, 2), v(KU + 2 * t_, 2), v(S + 6, 2))
    for j in (2, 1, 0):
        I("v_pk_fma_f32", v(P, 2), v(KU + 2 * (t_ + 3 - j), 2), v(S + 2 * j, 2), v(P, 2))
    I("v_pk_mul_f32", v(P, 2), v(P, 2), v(224 + 2 * t_, 2))
    I("v_cvt_pk_bf16_f32", v(OUT + t_), v(P), v(P + 1))
for ch in range(2):
    for j in range(4):
        I("v_perm_b32", v(O2 + 4 * ch + j), v(OUT + 6 - 2 * j), v(OUT + 7 - 2 * j), s(sT2 + ch))
I("buffer_store_dwordx4", v(O2, 4), v(ad + 1), s(SWS, 4), s(sT4), "offen", "sc1", tag="pst")
I("buffer_store_dwordx4", v(O2 + 4, 4), v(ad + 2), s(SWS, 4), s(sT4), "offen", "sc1", tag="pst")
I("s_add_u32", s(sT4), s(sT4), str(16 * 4096))
I("s_sub_u32", s(sCNT), s(sCNT), "1"); I("s_cmp_lg_u32", s(sCNT), "0"); I("s_cbranch_scc1", "L_kv")
a.wait_lgkm(0)
I("ds_write_b32", "v6", "v8")
stamp(19)
nonce_get()
I("v_lshlrev_b32", "v6", "8", v(vLANE))
flag_store(6, sFLAG, vNC, nlanes=2, zero=False)
stamp(5)
g_compute()
lds_wait(9, 10, 0, "v_cmp_eq_u32", "0", sleep=1)
I("s_branch", "L_Wjoin")
a.label("L_WW")
a.vm = []
sUU, sC2W = sU0, sU1
I("s_mul_i32", s(sT0), s(sXCD), "12"); I("s_add_u32", s(sT0), s(sT0), s(sSLOT)); I("s_sub_u32", s(sT0), s(sT0), "20")
I("s_lshr_b32", s(sUU), s(sT0), "1"); I("s_and_b32", s(sT0), s(sT0), "1"); I("s_lshl_b32", s(sT0), s(sT0), "2")
I("s_lshl_b32", s(sT1), s(sWK), "1"); I("s_add_u32", s(sC2W), s(sT0), s(sT1))
I("s_mul_i32", s(sT2), s(sUU), str(32 * 1280)); I("s_mul_i32", s(sT3), s(sC2W), "160"); I("s_add_u32", s(sT2), s(sT2), s(sT3))
I("s_add_u32", s(sT3), s(sT2), "160")
I("s_mul_i32", s(sT4), s(sWK), str(CVSZ)); I("s_add_u32", s(sT4), s(sT4), str(PRE))
for i in range(5):
    I("v_add_u32", "v16", str(64 * i), v(vLANE))
    I("v_mul_u32_u24", "v17", "6554", "v16"); I("v_lshrrev_b32", "v17", "16", "v17")
    I("v_mul_u32_u24", "v18", "10", "v17"); I("v_sub_u32", "v18", "v16", "v18")
    I("v_mul_u32_u24", "v17", "1280", "v17"); I("v_lshl_add_u32", v(32 + i), "v18", "4", "v17")
a.wait_lgkm(0)
stamp(63, real=True); stamp(0)
srd(SA, pW2, 1536 * 1280)
for i in range(5):
    for hf in range(2):
        I("s_add_u32", "m0", s(sT4), str(1024 * i + 5120 * hf))
        I("buffer_load_dwordx4", v(32 + i), s(SA, 4), s(sT2 + hf), "offen", "lds", tag="w2")
g_loads()
srd(SWS, pWS, WS_SIZE)
a.barrier()
I("v_lshrrev_b32", "v16", "2", v(vLANE)); I("v_mul_u32_u24", "v16", "160", "v16")
I("v_and_b32", "v17", "3", v(vLANE)); I("v_lshl_add_u32", "v16", "v17", "3", "v16")
I("v_add_u32", "v16", s(sT4), "v16")
I("s_lshl_b32", s(sT0), s(sC2W), "8"); I("s_lshl_b32", s(sT1), s(sUU), "2"); I("s_add_u32", s(sT0), s(sT0), s(sT1))
I("s_add_u32", s(sFLAG), s(sT0), hex(FW))
I("s_mul_i32", s(sT0), s(sC2W), "48"); I("s_add_u32", s(sT0), s(sT0), s(sUU)); I("s_mul_i32", s(sT0), s(sT0), "5120")
I("s_add_u32", s(sT2), s(sT0), hex(WS_W2F))
I("v_add_u32", "v17", "4096", v(vL16))
a.wait_vm(tag="w2")
for hf in range(2):
    for ct in range(5):
        for hh in range(2):
            I("ds_read_b64_tr_b16", v(64 + 20 * hf + 4 * ct + 2 * hh, 2), "v16", f"offset:{5120*hf + 32*ct + hh*16*160}")
a.wait_lgkm(0)
for hf in range(2):
    for ct in range(5):
        if ct < 4: I("buffer_store_dwordx4", v(64 + 20 * hf + 4 * ct, 4), v(vL16), s(SWS, 4), s(sT2), "offen", f"offset:{1024*ct}", "sc1", tag="pst")
        else: I("buffer_store_dwordx4", v(64 + 20 * hf + 4 * ct, 4), "v17", s(SWS, 4), s(sT2), "offen", "sc1", tag="pst")
    if hf == 0: I("s_add_u32", s(sT2), s(sT2), str(48 * 5120))
stamp(19)
nonce_get()
I("v_lshlrev_b32", "v6", "8", v(vLANE))
flag_store(6, sFLAG, vNC, nlanes=2, zero=False)
stamp(5)
g_compute()
a.label("L_Wjoin")
I("s_setprio", "0")
I("s_lshr_b32", s(sT0), "s2", "1"); I("s_mul_i32", s(sCH), s(sT0), "5")
I("s_and_b32", s(sT0), "s2", "1"); I("s_mul_i32", s(sT1), s(sT0), "3"); I("s_add_u32", s(sCH), s(sCH), s(sT1))
I("s_add_u32", s(sCH), s(sCH), s(sWK))
I("s_mul_i32", s(sCVB), s(sWK), str(CVSZ)); I("s_add_u32", s(sCVB), s(sCVB), str(PRIV[2]))

a.label("L_conv")
a.vm = []
vHC, vHN = 128, 192
srd(SH, pH, 640 * 4096)
I("s_lshl_b32", s(sT0), s(sCH), "12")
for blk in range(4):
    I("buffer_load_dwordx4", v(vHC + blk * 4, 4), v(vL16), s(SH, 4), s(sT0), "offen", f"offset:{1024*blk}", tag="h")
    I("buffer_load_dwordx2", v(vHN + blk * 2, 2), v(vL16), s(SH, 4), s(sT0), "offen", f"offset:{1024*blk+16}", tag="h")
I("s_lshl_b32", s(sT0), s(sCH), "1"); I("v_mov_b32", "v6", s(sT0))
I("global_load_ushort", "v15", "v6", s(pD, 2), tag="D")
I("v_and_b32", "v6", "31", v(vLANE)); I("v_lshlrev_b32", "v6", "2", "v6")
I("s_lshr_b32", s(sT0), s(sCH), "5"); I("s_lshl_b32", s(sT0), s(sT0), "8"); I("s_add_u32", s(sT0), s(sT0), hex(FK))
poll(7, 6, sT0, vNC)
stamp(2)
I("s_lshl_b32", s(sT0), s(sCH), "12"); I("s_add_u32", s(sT0), s(sT0), hex(WS_KVT))
for blk in range(4):
    I("buffer_load_dwordx4", v(64 + 4 * blk, 4), v(vL16), s(SWS, 4), s(sT0), "offen", f"offset:{1024*blk}", "sc1", tag="xr")
I("v_add_u32", "v16", s(sCVB), v(vL16))
for blk in range(4):
    d = [vHC + blk * 4 + k for k in range(4)] + [vHN + 2 * blk, vHN + 2 * blk + 1]
    for k in range(4):
        I("v_alignbit_b32", v(vHC + (4 + blk) * 4 + k), v(d[k + 1]), v(d[k]), "16")
        I("v_mov_b32", v(vHC + (8 + blk) * 4 + k), v(d[k + 1]))
        I("v_alignbit_b32", v(vHC + (12 + blk) * 4 + k), v(d[k + 2]), v(d[k + 1]), "16")
    for c in range(4):
        I("ds_write_b128", "v16", v(vHC + (c * 4 + blk) * 4, 4), f"offset:{c*HCP + 32 + 1024*blk}")
for i in range(4): I("v_mov_b32", v(20 + i), "0")
I("s_mov_b64", "exec", "0x3fffffff")
I("ds_write_b128", "v16", v(20, 4), f"offset:{XR + 4096}")
I("s_mov_b64", "exec", "3")
for c in range(4): I("ds_write_b128", "v16", v(20, 4), f"offset:{c*HCP}")
I("s_mov_b64", "exec", "1")
I("v_lshlrev_b32", "v24", "16", v(vHC))
I("ds_write_b32", "v16", "v24", f"offset:{1*HCP + 28}")
I("ds_write_b32", "v16", v(vHC), f"offset:{2*HCP + 28}")
I("ds_write_b32", "v16", "v24", f"offset:{3*HCP + 24}")
I("ds_write_b32", "v16", v(vHC + 16), f"offset:{3*HCP + 28}")
I("s_mov_b64", "exec", "-1")
I("v_mov_b32", "v10", "v16")
YA = 16
vAA, vBA = 8, 9
I("v_lshl_add_u32", "v12", v(vKG), "3", v(vN)); I("v_add_u32", "v12", "1", "v12")
I("v_and_b32", "v11", "3", "v12"); I("v_sub_u32", "v12", "v12", "v11"); I("v_lshlrev_b32", "v12", "1", "v12")
I("v_mul_u32_u24", "v11", str(HCP), "v11"); I("v_add3_u32", v(vAA), "v12", "v11", s(sCVB))
I("v_lshlrev_b32", "v12", "5", v(vN)); I("v_lshlrev_b32", "v11", "4", v(vKG)); I("v_sub_u32", "v12", "v11", "v12")
I("v_add_u32", "v12", str(XR + 480), "v12"); I("v_add_u32", v(vBA), s(sCVB), "v12")
a.wait_lgkm(0)
for i in range(32): I("v_mov_b32", v(YA + i), "0")
a.wait_vm(tag="xr")
for blk in range(4): I("ds_write_b128", "v10", v(64 + 4 * blk, 4), f"offset:{XR + 1024*blk}")
a.wait_lgkm(0)
stamp(3)
FA = [64, 128]; FB = [96, 160]
def cv_reads(st, extra):
    r = []
    for x in range(8):
        r.append(("ds_read_b64", v(FA[st] + 4 * x, 2), v(vAA), f"offset:{512*x + extra}"))
        r.append(("ds_read_b64", v(FA[st] + 4 * x + 2, 2), v(vAA), f"offset:{512*x + extra + 8}"))
        r.append(("ds_read_b128", v(FB[st] + 4 * x, 4), v(vBA), f"offset:{3584 - 512*x + extra}"))
    return r
def cv_mfmas(st):
    m = []
    for pa in range(8):
        for qa in range(8 - pa):
            d = v(YA + 4 * (pa + qa), 4)
            m.append(("v_mfma_f32_16x16x32_bf16", d, v(FA[st] + 4 * pa, 4), v(FB[st] + 4 * qa, 4), d))
    return m
for x in cv_reads(0, 0): I(*x)
I("s_mov_b32", s(sCNT), "4")
a.wait_lgkm(0)
a.label("L_cv")
interleave(cv_reads(1, 64), cv_mfmas(0))
a.wait_lgkm(0)
interleave(cv_reads(0, 128), cv_mfmas(1))
I("v_add_u32", v(vAA), "128", v(vAA)); I("v_add_u32", v(vBA), "128", v(vBA))
I("s_sub_u32", s(sCNT), s(sCNT), "1"); I("s_cmp_lg_u32", s(sCNT), "0")
a.wait_lgkm(0)
I("s_cbranch_scc1", "L_cv")
stamp(4)
I("v_lshlrev_b32", "v10", "5", v(vN)); I("v_lshl_add_u32", "v10", v(vKG), "3", "v10")
I("v_sub_u32", "v11", str(XR + 4088 - 3584), "v10"); I("v_add_u32", "v11", s(sCVB), "v11")
I("v_add_u32", "v10", s(sCVB), "v10")
for a_ in range(8): I("ds_read_b64", v(64 + 2 * a_, 2), "v11", f"offset:{3584 - 512*a_}")
I("v_lshlrev_b32", "v12", "16", "v15"); I("v_mov_b32", "v13", "v12")
a.wait_lgkm(0)
for a_ in range(8):
    e = 64 + 2 * a_; y = YA + 4 * a_
    K0, K1 = 96, 98
    I("v_and_b32", v(K0), "0xffff0000", v(e + 1)); I("v_lshlrev_b32", v(K0 + 1), "16", v(e + 1))
    I("v_and_b32", v(K1), "0xffff0000", v(e)); I("v_lshlrev_b32", v(K1 + 1), "16", v(e))
    I("v_pk_fma_f32", v(y, 2), v(K0, 2), "v[12:13]", v(y, 2)); I("v_pk_fma_f32", v(y + 2, 2), v(K1, 2), "v[12:13]", v(y + 2, 2))
    I("v_cvt_pk_bf16_f32", v(e), v(y), v(y + 1)); I("v_cvt_pk_bf16_f32", v(e + 1), v(y + 2), v(y + 3))
    I("ds_write_b64", "v10", v(e, 2), f"offset:{512*a_}")
a.wait_lgkm(0)
I("v_add_u32", "v10", s(sCVB), v(vL16))
for blk in range(4): I("ds_read_b128", v(96 + 4 * blk, 4), "v10", f"offset:{1024*blk}")
I("s_lshl_b32", s(sT0), s(sCH), "12"); I("s_add_u32", s(sT0), s(sT0), hex(WS_YT))
a.wait_lgkm(0)
for blk in range(4):
    I("buffer_store_dwordx4", v(96 + 4 * blk, 4), v(vL16), s(SWS, 4), s(sT0), "offen", f"offset:{1024*blk}", "sc1", tag="yst")
I("s_mul_i32", s(sT0), s(sCH), "52429"); I("s_lshr_b32", s(sT0), s(sT0), "20")
I("s_mul_i32", s(sT1), s(sT0), "20"); I("s_sub_u32", s(sT1), s(sCH), s(sT1))
I("s_lshl_b32", s(sT0), s(sT0), "7"); I("s_lshl_b32", s(sT1), s(sT1), "2"); I("s_add_u32", s(sT0), s(sT0), s(sT1))
I("s_add_u32", s(sT0), s(sT0), hex(FY))
a.wait_vm(n=0)
flag_store(6, sT0, vNC)

a.label("L_preepi")
a.vm = []
stamp(6)
I("v_lshlrev_b32", "v6", "3", v(vLANE))
I("s_lshl_b32", s(sT0), s(sR2), "9"); I("s_add_u32", s(sT0), s(sT0), hex(WS_G))
poll(16, 6, sT0, vNC, wide=True)
I("v_min_u32", "v6", "19", v(vLANE)); I("v_lshlrev_b32", "v6", "2", "v6")
I("s_lshl_b32", s(sT0), s(sC2), "2"); I("s_add_u32", s(sT0), s(sT0), s(sCW)); I("s_lshl_b32", s(sT1), s(sT0), "7")
I("s_add_u32", s(sT1), s(sT1), hex(FY))
I("v_lshlrev_b32", "v8", "2", v(vLANE)); I("v_add_u32", "v8", str(M_G), "v8"); I("ds_write_b32", "v8", "v16")
poll(7, 6, sT1, vNC, sleep=8)
stamp(9)
I("s_mul_i32", s(sT0), s(sT0), str(20 * 4096)); I("s_lshl_b32", s(sT1), s(sR2), "7"); I("s_add_u32", s(sT0), s(sT0), s(sT1))
I("s_add_u32", s(sT0), s(sT0), hex(WS_YT))
I("v_lshlrev_b32", "v6", "12", v(vKG)); I("v_lshl_add_u32", "v6", v(vN), "3", "v6")
for i in range(5):
    I("buffer_load_dwordx2", v(64 + 2 * i, 2), "v6", s(SWS, 4), s(sT0), "offen", "sc1", tag="yl")
    if i < 4: I("s_add_u32", s(sT0), s(sT0), str(4 * 4096))
I("v_lshlrev_b32", "v6", "7", v(vKG)); I("v_lshl_add_u32", "v6", v(vN), "3", "v6"); I("v_add_u32", "v6", s(sCVB), "v6")
I("v_bfe_u32", "v7", v(vLANE), "2", "2"); I("v_lshlrev_b32", "v7", "7", "v7")
I("v_lshl_add_u32", "v7", v(vKG), "5", "v7"); I("v_and_b32", "v8", "3", v(vLANE)); I("v_lshl_add_u32", "v7", "v8", "3", "v7")
I("v_add_u32", "v7", s(sCVB), "v7")
I("v_mul_u32_u24", "v8", "40", v(vLANE)); I("v_add_u32", "v8", s(sCVB), "v8")
I("v_mov_b32", "v17", "v16")
a.wait_vm(tag="yl")
for i in range(5): I("ds_write_b64", "v6", v(64 + 2 * i, 2), f"offset:{512*i}")
a.wait_lgkm(0)
for i in range(5): I("ds_read_b64_tr_b16", v(64 + 2 * i, 2), "v7", f"offset:{512*i}")
a.wait_lgkm(0)
for i in range(5):
    for h in range(2):
        Y = 96 + 2 * h
        unpack(Y, 64 + 2 * i + h)
        I("v_pk_mul_f32", v(Y, 2), v(Y, 2), "v[16:17]")
        I("v_cvt_pk_bf16_f32", v(80 + 2 * i + h), v(Y), v(Y + 1))
    I("ds_write_b64", "v8", v(80 + 2 * i, 2), f"offset:{GYO + 8*i}")
stamp(7)
I("s_branch", "L_final")

a.label("L_G")
a.vm = []
ACC = 64
XS = 112
WSR = 128
vXA0, vXA1, vWE, vWO = 8, 9, 10, 11
vCX0, vCX1, vCWE, vCWO = 12, 13, 14, 15
vBIAS = 176
vRA, vRV, vDNA, vDNV = 16, 17, 18, 19
I("v_lshlrev_b32", "v6", "2", v(vLANE)); I("v_add_u32", "v6", str(MISC), "v6")
I("v_mov_b32", "v7", "0")
I("ds_write_b32", "v6", "v7")
a.wait_lgkm(0)
stamp(63, real=True); stamp(0)
srd(SWS, pWS, WS_SIZE)
I("s_add_u32", s(sT0), "s2", s(sWAVE)); I("s_cmp_lg_u32", s(sT0), "0"); I("s_cbranch_scc1", "L_nonce_skip")
I("s_memrealtime", s(sTM, 2)); a.wait_lgkm(0)
I("s_mul_i32", s(sT0), s(sTM), "0x9E3779B1"); I("s_xor_b32", s(sT0), s(sT0), s(sTM + 1)); I("s_or_b32", s(sT0), s(sT0), "1")
I("v_mov_b32", "v16", s(sT0)); I("v_mov_b32", "v17", "0")
a.lines.append("  global_store_dword v17, v16, s[42:43] sc1")
a.label("L_nonce_skip")
srd(SQ, pQ, 2621440)
vDX = 20
I("v_lshrrev_b32", "v6", "3", v(vLANE)); I("v_and_b32", "v7", "7", v(vLANE))
I("s_lshl_b32", s(sT0), s(sRB), "7"); I("s_lshl_b32", s(sT1), s(sCW), "5"); I("s_add_u32", s(sT0), s(sT0), s(sT1))
for jj in range(4):
    I("v_add_u32", "v16", str(8 * jj), "v6")
    I("v_bfe_u32", "v17", "v16", "1", "3"); I("v_xor_b32", "v17", "v17", "v7")
    I("v_add_u32", "v16", s(sT0), "v16"); I("v_mul_u32_u24", "v16", "1280", "v16")
    I("v_lshl_add_u32", "v16", "v17", "4", "v16")
    I("v_subrev_u32", v(vDX + jj), str(1024 * jj), "v16")
I("s_and_b32", s(sT1), s(sRB), "3"); I("s_lshl_b32", s(sT1), s(sT1), "1"); I("s_add_u32", s(sT1), s(sT1), s(sC)); I("s_and_b32", s(sT1), s(sT1), "7")
I("s_lshl_b32", s(sSOFFX), s(sT1), "7")
I("s_lshl_b32", s(sM0X), s(sCW), "12")
I("s_add_u32", s(sM0W), s(sM0X), str(NSLOT * SLOT))
def x_dma():
    r = [("s_mov_b32", "m0", s(sM0X))]
    for jj in range(4):
        r.append(("buffer_load_dwordx4", v(vDX + jj), s(SQ, 4), s(sSOFFX), "offen", f"offset:{1024*jj}", "lds"))
    return r
def x_adv():
    I("s_add_u32", s(sSOFFX), s(sSOFFX), "128"); I("s_cmp_eq_u32", s(sSOFFX), "1280"); I("s_cselect_b32", s(sSOFFX), "0", s(sSOFFX))
    I("s_add_u32", s(sM0X), s(sM0X), str(SLOT)); I("s_sub_u32", s(sT0), s(sM0X), str(NSLOT * SLOT))
    I("s_cmp_eq_u32", s(sM0X), s(sM0W)); I("s_cselect_b32", s(sM0X), s(sT0), s(sM0X))
for x in x_dma(): I(*x)
x_adv()
I("s_cmp_ge_u32", s(sSLOT), "0" if NOWORK else "20"); I("s_cbranch_scc1", "L_notile")
srd(SA, pK, 2621440); srd(SB, pV, 2621440)
I("s_mul_i32", s(sT0), s(sXCD), "20"); I("s_add_u32", s(sT0), s(sT0), s(sSLOT))
I("s_mul_i32", s(sT2), s(sT0), "52429"); I("s_lshr_b32", s(sT2), s(sT2), "18")
I("s_mul_i32", s(sT1), s(sT2), "5"); I("s_sub_u32", s(sT3), s(sT0), s(sT1))
I("v_mul_u32_u24", "v16", "1280", v(vKG)); I("v_lshl_add_u32", "v16", v(vN), "4", "v16")
I("s_mul_i32", s(sT0), s(sT2), str(64 * 1280)); I("s_lshl_b32", s(sT1), s(sT3), "8"); I("s_add_u32", s(sT0), s(sT0), s(sT1))
I("v_add_u32", "v16", s(sT0), "v16")
I("v_subrev_u32", "v17", str(4 * 1280), "v16")
I("s_mov_b32", "m0", str(KT))
a.lines.append("  s_nop 0")
a.lines.append(f"  buffer_load_dwordx4 v17, s[{SA}:{SA+3}], 0 offen lds")
I("s_mul_i32", s(sT1), s(sCW), str(16 * 1280))
I("s_mul_i32", s(sT2), s(sCW), str(4096 + 32))
for i in range(4):
    I("s_add_u32", "m0", s(sT2), str(KT + 1024 + 1024 * i + ((i + 2) >> 1) * 16))
    a.lines.append("  s_nop 0")
    a.lines.append(f"  buffer_load_dwordx4 v16, s[{SA}:{SA+3}], s{sT1} offen lds")
    I("s_add_u32", "m0", s(sT2), str(VT + 1024 * i + (i >> 1) * 16))
    a.lines.append("  s_nop 0")
    a.lines.append(f"  buffer_load_dwordx4 v16, s[{SB}:{SB+3}], s{sT1} offen lds")
    if i < 3: I("s_add_u32", s(sT1), s(sT1), str(4 * 1280))
a.label("L_notile")
I("v_lshlrev_b32", "v6", "3", v(vKG))
I("s_mul_i32", s(sT0), s(sC), "192")
I("s_add_u32", s(sT2), s(pB1), s(sT0)); I("s_addc_u32", s(sT3), s(pB1 + 1), "0")
for ft in range(6):
    I("global_load_dwordx2", v(vBIAS + 2 * ft, 2), "v6", s(sT2, 2), f"offset:{32*ft}", tag="bias1")
I("s_and_b32", s(sT0), s(sSLOT), "7"); I("s_lshl_b32", s(sT0), s(sT0), "2"); I("s_add_u32", s(sT0), s(sT0), s(sCW))
I("s_min_u32", s(sT0), s(sT0), "CODE_KB"); I("s_lshl_b32", s(sT0), s(sT0), "10")
I("v_add_u32", "v6", s(sT0), v(vL16))
I("global_load_dwordx4", v(240, 4), "v6", s(sPC, 2), tag="code")
for x in x_dma(): I(*x)
x_adv()
a.barrier()
I("s_lshl_b32", s(sT0), s(sCW), "5")
I("v_add_u32", "v6", s(sT0), v(vN)); I("v_lshlrev_b32", "v6", "7", "v6")
I("v_lshrrev_b32", "v7", "1", v(vN)); I("v_xor_b32", "v7", "v7", v(vKG)); I("v_lshlrev_b32", "v7", "4", "v7")
I("v_add_u32", v(vXA0), "v6", "v7"); I("v_xor_b32", v(vXA1), "64", v(vXA0))
I("v_bfe_u32", "v6", v(vLANE), "2", "2"); I("v_lshl_add_u32", "v6", v(vKG), "3", "v6")
I("v_mul_u32_u24", "v6", "192", "v6")
I("v_and_b32", "v7", "3", v(vLANE)); I("v_lshl_add_u32", "v6", "v7", "3", "v6")
I("v_add_u32", "v6", hex(WOFF), "v6")
I("v_and_b32", "v7", "1", v(vKG)); I("v_lshlrev_b32", "v7", "5", "v7")
I("v_add_u32", v(vWE), "v6", "v7"); I("v_sub_u32", v(vWO), "v6", "v7")
for i in range(8): I("v_mov_b32", v(XS + 8 + i), "0")
for i in range(24): I("v_mov_b32", v(WSR + 24 + i), "0")
I("s_mov_b32", s(sLSLOT), "0"); I("s_mov_b32", s(sCNT), "10")
for c_, l_ in ((vCX0, vXA0), (vCX1, vXA1), (vCWE, vWE), (vCWO, vWO)): I("v_mov_b32", v(c_), v(l_))
I("v_and_b32", v(vRA), "1", v(vLANE)); I("v_lshlrev_b32", v(vRA), "2", v(vRA)); I("v_add_u32", v(vRA), str(M_R), v(vRA))
I("s_lshl_b32", s(sT0), s(sCW), "2"); I("s_add_u32", s(sT0), s(sT0), str(M_DN)); I("v_mov_b32", v(vDNA), s(sT0)); I("v_mov_b32", v(vDNV), "0")
a.wait_vm(tag="bias1")
I("v_mov_b32", "v7", "1"); I("ds_write_b32", v(vDNA), "v7", f"offset:{M_TK - M_DN + 65536}" if False else f"offset:0") if False else None
I("v_subrev_u32", "v6", str(M_DN - M_TK), v(vDNA)); I("v_mov_b32", "v7", "1"); I("ds_write_b32", "v6", "v7")
for rt in range(2):
    for ft in range(6):
        for h in range(2): unpack(ACC + (rt * 6 + ft) * 4 + 2 * h, vBIAS + 2 * ft + h)

def g1_reads(st, ks):
    r = []
    for rt in range(2):
        r.append(("ds_read_b128", v(XS + (st * 2 + rt) * 4, 4), v(vCX1 if ks else vCX0), f"offset:{rt*2048}"))
    for ft in range(6):
        for hh in range(2):
            r.append(("ds_read_b64_tr_b16", v(WSR + (st * 6 + ft) * 4 + 2 * hh, 2), v(vCWO if ft & 1 else vCWE),
                      f"offset:{32*ft + ks*6144 + hh*768}"))
    return r
def g1_mfmas(st):
    m = []
    for ft in range(6):
        for rt in range(2):
            d = v(ACC + (rt * 6 + ft) * 4, 4)
            m.append(("v_mfma_f32_16x16x32_bf16", d, v(WSR + (st * 6 + ft) * 4, 4), v(XS + (st * 2 + rt) * 4, 4), d))
    return m
stamp(17)
a.label("L_g1_wait")
lds_wait(vRV, vRA, 0, "v_cmp_ge_u32", v(vDNV), sleep=0)
a.label("L_g1")
if STAMP:
    I("s_sub_u32", "m0", "30", s(sCNT)); stamp("m0")
m1 = g1_mfmas(1)
frontload(g1_reads(0, 0), m1[:5])
I("s_cmp_le_u32", s(sCNT), "2"); I("s_cbranch_scc1", "L_g1_nox")
xd = x_dma()
I(*xd[0])
for k in range(4):
    I(*m1[5 + k]); I(*xd[1 + k])
for x in m1[9:]: I(*x)
x_adv()
I("s_branch", "L_g1_x")
a.label("L_g1_nox")
for x in m1[5:]: I(*x)
a.lines.append("  s_waitcnt vmcnt(0)")
a.label("L_g1_x")
a.wait_lgkm(0)
mm = g1_mfmas(0)
frontload(g1_reads(1, 1), mm[:9])
I("ds_read_b32", v(vRV), v(vRA))
for x in mm[9:]: I(*x)
I("s_add_u32", s(sLSLOT), s(sLSLOT), str(SLOT))
I("s_cmp_eq_u32", s(sLSLOT), str(NSLOT * SLOT)); I("s_cselect_b32", s(sLSLOT), "0", s(sLSLOT))
I("v_add_u32", v(vDNV), "1", v(vDNV))
for c_, l_ in ((vCX0, vXA0), (vCX1, vXA1), (vCWE, vWE), (vCWO, vWO)): I("v_add_u32", v(c_), s(sLSLOT), v(l_))
I("s_sub_u32", s(sCNT), s(sCNT), "1")
a.lines.append("  s_waitcnt vmcnt(4) lgkmcnt(0)")
I("ds_write_b32", v(vDNA), v(vDNV))
I("v_cmp_ge_u32", "vcc", v(vDNV), v(vRV))
I("s_cmp_eq_u32", s(sCNT), "0"); I("s_cbranch_scc1", "L_g1_done")
I("s_cbranch_vccz", "L_g1")
I("s_branch", "L_g1_wait")
a.label("L_g1_done")
for x in g1_mfmas(1): I(*x)
I("v_mov_b32", "v7", str(MISC))
lds_wait(vNC, 7, 0, "v_cmp_eq_u32", "0", sleep=1)
stamp(1)
a.vm = []
c0, c1, one = 16, 18, 20
I("v_mov_b32", v(c0), hex(f32bits(C0))); I("v_mov_b32", v(c0 + 1), hex(f32bits(C0)))
I("v_mov_b32", v(c1), hex(f32bits(C1))); I("v_mov_b32", v(c1 + 1), hex(f32bits(C1)))
I("v_mov_b32", v(one), "1.0"); I("v_mov_b32", v(one + 1), "1.0")
I("s_lshl_b32", s(sT0), s(sRB), "1"); I("s_lshr_b32", s(sT1), s(sCW), "1"); I("s_add_u32", s(sT0), s(sT0), s(sT1))
I("s_and_b32", s(sT1), s(sCW), "1"); I("s_lshl_b32", s(sT1), s(sT1), "1")
I("s_mul_i32", s(sT2), s(sT0), "48"); I("s_mul_i32", s(sT3), s(sC), "3"); I("s_add_u32", s(sT2), s(sT2), s(sT3))
I("s_lshl_b32", s(sT2), s(sT2), "2"); I("s_add_u32", s(sT2), s(sT2), s(sT1)); I("s_lshl_b32", s(sT2), s(sT2), "10")
I("s_add_u32", s(sT2), s(sT2), hex(WS_HF))
I("s_lshl_b32", s(sT0), s(sT0), "8"); I("s_lshl_b32", s(sT3), s(sC), "3"); I("s_lshl_b32", s(sT1), s(sT1), "1")
I("s_add_u32", s(sT0), s(sT0), s(sT3)); I("s_add_u32", s(sT0), s(sT0), s(sT1)); I("s_add_u32", s(sFLAG), s(sT0), hex(FH))
I("s_setprio", "2")
HO = 128
for up in range(3):
    for rt in range(2):
        o = HO + (up * 2 + rt) * 4
        P = []
        for k in range(4):
            ft = 2 * up + (k >> 1); h = k & 1
            P.append((ACC + (rt * 6 + ft) * 4 + 2 * h, 24 + 2 * k, o + k))
        def every(fn):
            for p in P: fn(*p)
        every(lambda x, t, o_: I("v_pk_mul_f32", v(t, 2), v(x, 2), v(x, 2)))
        every(lambda x, t, o_: I("v_pk_fma_f32", v(t, 2), v(t, 2), v(c1, 2), v(c0, 2)))
        every(lambda x, t, o_: I("v_pk_mul_f32", v(t, 2), v(t, 2), v(x, 2)))
        every(lambda x, t, o_: (I("v_exp_f32", v(t), v(t)), I("v_exp_f32", v(t + 1), v(t + 1))))
        every(lambda x, t, o_: I("v_pk_add_f32", v(t, 2), v(t, 2), v(one, 2)))
        every(lambda x, t, o_: (I("v_rcp_f32", v(t), v(t)), I("v_rcp_f32", v(t + 1), v(t + 1))))
        every(lambda x, t, o_: I("v_pk_mul_f32", v(t, 2), v(t, 2), v(x, 2)))
        every(lambda x, t, o_: I("v_cvt_pk_bf16_f32", v(o_), v(t), v(t + 1)))
        I("buffer_store_dwordx4", v(o, 4), v(vL16), s(SWS, 4), s(sT2), "offen", f"offset:{1024*rt}", "sc1", tag="hst")
    if up < 2: I("s_add_u32", s(sT2), s(sT2), "4096")
I("s_setprio", "0")
stamp(9)
AC2 = 16
ST = 96
for i in range(80): I("v_mov_b32", v(AC2 + i), "0")
a.wait_vm(n=0)
flag_store(6, sFLAG, vNC)
stamp(2)
I("v_and_b32", "v6", "31", v(vLANE)); I("v_lshlrev_b32", "v6", "2", "v6")
I("s_lshl_b32", s(sT0), s(sR2), "8"); I("s_add_u32", s(sT0), s(sT0), hex(FH))
poll(8, 6, sT0, vNC, sleep=2)
stamp(3)
sHB, sWB, sHE = sM0X, sM0W, sWBASE
rot2(sT1)
I("s_mul_i32", s(sHB), s(sR2), "48"); I("s_add_u32", s(sHB), s(sHB), s(sCW)); I("s_lshl_b32", s(sHB), s(sHB), "12")
I("s_add_u32", s(sHB), s(sHB), hex(WS_HF)); I("s_add_u32", s(sHE), s(sHB), str(48 * 4096))
I("s_lshl_b32", s(sU0), s(sT1), "14"); I("s_add_u32", s(sU0), s(sU0), s(sHB))
I("s_mul_i32", s(sWB), s(sC2), "48"); I("s_add_u32", s(sWB), s(sWB), s(sCW)); I("s_mul_i32", s(sWB), s(sWB), "5120")
I("s_add_u32", s(sWB), s(sWB), hex(WS_W2F))
I("s_mul_i32", s(sU1), s(sT1), str(4 * 5120)); I("s_add_u32", s(sU1), s(sU1), s(sWB))
vL16b = 6
I("v_add_u32", v(vL16b), "4096", v(vL16))
def g2_load_list(i):
    b = ST + (i % NSET) * 36
    r = []
    for rt in range(4):
        r.append((("buffer_load_dwordx4", v(b + rt * 4, 4), v(vL16), s(SWS, 4), s(sU0), "offen", f"offset:{rt*1024}", "sc1"), f"k{i}"))
    if i >= NPF:
        for ct in range(5):
            if ct < 4: r.append((("buffer_load_dwordx4", v(b + 16 + ct * 4, 4), v(vL16), s(SWS, 4), s(sU1), "offen", f"offset:{ct*1024}", "sc1"), f"k{i}"))
            else: r.append((("buffer_load_dwordx4", v(b + 16 + ct * 4, 4), v(vL16b), s(SWS, 4), s(sU1), "offen", "sc1"), f"k{i}"))
    return r
def g2_adv():
    I("s_add_u32", s(sU0), s(sU0), str(4 * 4096)); I("s_add_u32", s(sU1), s(sU1), str(4 * 5120))
    I("s_cmp_eq_u32", s(sU0), s(sHE)); I("s_cselect_b32", s(sU0), s(sHB), s(sU0)); I("s_cselect_b32", s(sU1), s(sWB), s(sU1))
def g2_wlds(i):
    b = ST + (i % NSET) * 36
    return [("ds_read_b128", v(b + 16 + ct * 4, 4), "v7", f"offset:{RED + i*5120 + ct*1024}") for ct in range(5)]
def g2_mfma_list(i):
    b = ST + (i % NSET) * 36
    m = []
    for ct in range(5):
        for rt in range(4):
            d = v(AC2 + (rt * 5 + ct) * 4, 4)
            m.append(("v_mfma_f32_16x16x32_bf16", d, v(b + 16 + ct * 4, 4), v(b + rt * 4, 4), d))
    return m
for i in range(NSET - 1):
    for x, tg in g2_load_list(i): I(*x, tag=tg)
    g2_adv()
lds_wait(8, 7, 4, "v_cmp_ne_u32", v(vNC), sleep=1)
stamp(11)
I("s_mul_i32", s(sT0), s(sCW), str(REDW)); I("v_add_u32", "v7", s(sT0), v(vL16))
for i in range(NSET - 1):
    for x in g2_wlds(i): I(*x)
for i in range(12):
    j = i + NSET - 1
    ld = g2_load_list(j) if j < 12 else []
    wl = g2_wlds(j) if j < NPF else []
    a.wait_vm(tag=f"k{i}", lgkm=0 if i < NPF else None)
    m = g2_mfma_list(i)
    li = 0
    for k, x in enumerate(m):
        I(*x)
        if k % 2 == 1 and li < len(ld): I(*ld[li][0], tag=ld[li][1]); li += 1
        if k >= 10 and wl: I(*wl.pop(0))
    if ld: g2_adv()
stamp(4)
I("v_mul_u32_u24", "v6", str(REDP), v(vN)); I("v_lshl_add_u32", "v6", v(vKG), "4", "v6")
I("s_mul_i32", s(sT0), s(sCW), str(REDW)); I("v_add_u32", "v6", s(sT0), "v6")
a.nop(6)
for ct in range(5):
    for rt in range(4):
        I("ds_write_b128", "v6", v(AC2 + (rt * 5 + ct) * 4, 4), f"offset:{RED + rt*16*REDP + ct*64}")
a.wait_vm(n=0)

a.label("L_final")
a.vm = []
srd(SO, pOUT, 2621440)
srd(SQ, pQ, 2621440)
I("s_mul_i32", s(sT0), s(sC2), "160"); I("s_add_u32", s(sT2), s(pB2), s(sT0)); I("s_addc_u32", s(sT3), s(pB2 + 1), "0")
I("s_lshl_b32", s(sT1), s(sR2), "6"); I("s_mul_i32", s(sT1), s(sT1), "1280"); I("s_add_u32", s(sT4), s(sT1), s(sT0))
def gy_addr(dst, quad, row, t0, t1):
    I("v_mul_u32_u24", v(t0), "13108", v(quad)); I("v_lshrrev_b32", v(t0), "16", v(t0))
    I("v_mul_u32_u24", v(t1), "5", v(t0)); I("v_sub_u32", v(t1), v(quad), v(t1))
    I("v_mul_u32_u24", v(dst), "40", v(row)); I("v_lshl_add_u32", v(dst), v(t1), "3", v(dst))
    I("v_mov_b32", v(t1), str(PRIV[0] + GYO))
    for b in range(1, 4):
        I("v_cmp_eq_u32", "vcc", str(b), v(t0)); I("v_mov_b32", v(t0 + 3), str(PRIV[b] + GYO))
        I("v_cndmask_b32", v(t1), v(t1), v(t0 + 3), "vcc")
    I("v_add_u32", v(dst), v(dst), v(t1))
def fin_setup(idreg, b):
    T = 124
    I("v_mul_u32_u24", v(b), "6554", v(idreg)); I("v_lshrrev_b32", v(b), "16", v(b))
    I("v_mul_u32_u24", v(b + 1), "10", v(b)); I("v_sub_u32", v(b + 1), v(idreg), v(b + 1))
    I("v_lshlrev_b32", v(b + 5), "4", v(b + 1))
    I("global_load_dwordx4", v(b + 8, 4), v(b + 5), s(sT2, 2), tag="b2")
    I("v_mul_u32_u24", v(b + 6), "1280", v(b)); I("v_add_u32", v(b + 5), v(b + 5), v(b + 6))
    I("buffer_load_dwordx4", v(b + 12, 4), v(b + 5), s(SQ, 4), s(sT4), "offen", tag="b2")
    I("v_mul_u32_u24", v(b + 2), str(REDP), v(b)); I("v_lshl_add_u32", v(b + 2), v(b + 1), "5", v(b + 2))
    I("v_lshlrev_b32", v(T + 2), "1", v(b + 1)); gy_addr(b + 3, T + 2, b, T, T + 1)
    I("v_add_u32", v(T + 2), "1", v(T + 2)); gy_addr(b + 7, T + 2, b, T, T + 1)
    I("v_lshlrev_b32", v(b + 4), "2", v(b)); I("v_add_u32", v(b + 4), str(M_G), v(b + 4))
def fin_item(b):
    P = 160
    for w in range(4):
        I("ds_read_b128", v(P + 8 * w, 4), v(b + 2), f"offset:{RED + w*REDW}")
        I("ds_read_b128", v(P + 8 * w + 4, 4), v(b + 2), f"offset:{RED + w*REDW + 16}")
    I("ds_read_b64", v(P + 32, 2), v(b + 3)); I("ds_read_b64", v(P + 34, 2), v(b + 7))
    I("ds_read_b32", v(P + 36), v(b + 4))
    a.wait_vm(tag="b2", lgkm=0)
    G1, Qq, B, GA = P + 38, P + 40, P + 42, P + 44
    I("v_sub_f32", v(G1), "1.0", v(P + 36)); I("v_mov_b32", v(G1 + 1), v(G1))
    for j in range(4):
        x = P + 2 * j
        unpack(B, b + 8 + j); unpack(GA, P + 32 + j); unpack(Qq, b + 12 + j)
        I("v_pk_add_f32", v(x, 2), v(x, 2), v(x + 8, 2)); I("v_pk_add_f32", v(x + 16, 2), v(x + 16, 2), v(x + 24, 2))
        I("v_pk_add_f32", v(x, 2), v(x, 2), v(B, 2))
        I("v_pk_mul_f32", v(GA, 2), v(GA, 2), v(Qq, 2))
        I("v_pk_add_f32", v(x, 2), v(x, 2), v(x + 16, 2))
        I("v_pk_fma_f32", v(x, 2), v(x, 2), v(G1, 2), v(GA, 2))
        I("v_cvt_pk_bf16_f32", v(P + 48 + j), v(x), v(x + 1))
    I("buffer_store_dwordx4", v(P + 48, 4), v(b + 5), s(SO, 4), s(sT4), "offen", tag="out")
fin_setup(0, 96)
I("v_add_u32", "v120", "256", "v0"); I("v_min_u32", "v120", "639", "v120")
fin_setup(120, 128)
a.wait_lgkm(0)
a.barrier()
stamp(10)
fin_item(96)
I("s_lshr_b32", s(sT0), s(sWAVE), "1"); I("s_cmp_lg_u32", s(sT0), "2"); I("s_cbranch_scc1", "L_fin_done")
a.nop(2)
fin_item(128)
a.label("L_fin_done")
stamp(8)
stamp_flush()
a.label("L_end")
I("s_endpgm")
a.raw(f""".section .rodata,"a"
.p2align 6
.amdhsa_kernel {KNAME}
  .amdhsa_next_free_vgpr 256
  .amdhsa_next_free_sgpr 100
  .amdhsa_accum_offset 256
  .amdhsa_group_segment_fixed_size 0
  .amdhsa_kernarg_size 120
  .amdhsa_user_sgpr_count 2
  .amdhsa_user_sgpr_kernarg_segment_ptr 1
  .amdhsa_system_sgpr_workgroup_id_x 1
  .amdhsa_float_denorm_mode_32 3
.end_amdhsa_kernel
""")
out = [x for x in sys.argv[1:] if not x.startswith("--")]
import subprocess, re
txt = a.text()
open("_t.s", "w").write(txt.replace("CODE_KB", "100"))
subprocess.run(["clang", "-x", "assembler", "-target", "amdgcn-amd-amdhsa", "-mcpu=gfx950", "-c", "_t.s", "-o", "_t.o"], check=True)
sec = subprocess.run(["llvm-readelf", "-S", "_t.o"], capture_output=True, text=True).stdout
size = int(re.search(r"\.text\s+PROGBITS\s+\S+\s+\S+\s+(\S+)", sec).group(1), 16)
print("code bytes", size)
open(out[0] if out else "k.s", "w").write(txt.replace("CODE_KB", str((size >> 10) - 1)))
```

```python
import sys, struct
import re as _re
from asmlib import Asm, v, s

KNAME = "gated_mix__ssm_conv_h3__dense_activation_gelu__prompt_kernel"
STAMP = "--stamp" in sys.argv
def knob(name, default):
    for x in sys.argv:
        if x.startswith(f"--{name}="): return int(x.split("=")[1])
    return default
NOPOLL = knob("nopoll", 0)
PFDEPTH = knob("pfd", 20)
LD = knob("ld", 3)
WPRE = knob("wpre", 4)
PSL = knob("psl", 6)
YSL = knob("ysl", 4)
YGO = knob("ygo", 6)
PFGATE = knob("pfgate", 0)

FK, FW, FH, FY = 0x0000, 0x2000, 0x3000, 0x5000
WS_G = 0x10000
WS_KVT = 0x100000
WS_W2F = 0x400000
WS_YT = 0x600000
WS_HF = 0x900000
WS_DBG = 0xF00000
WS_SIZE = 0x1000000
WOFF = 16384
SLOT = 16384 + 16384 + 256
NSLOT = 4
HCP = 4160
XR = 4 * HCP
CVSZ = 21248
MISC = 157184
M_NONCE, M_FWOK, M_CV, M_PS, M_PF, M_X, M_CD, M_G = MISC, MISC + 8, MISC + 16, MISC + 20, MISC + 32, MISC + 64, MISC + 96, MISC + 256
M_FHS = MISC + 12
M_HC = MISC + 4
M_YS = MISC + 36
M_G2L = MISC + 40
LG0 = 8
PRIV = [104448, 157696, 114688, 114688 + CVSZ]
CVH = [0, 43008]
GYO = 2560
RED = 0
REDW = 21504
REDP = 336
XCH = 2 * SLOT
KSUB = 17 * 1040
LDS_BYTES = 163840
NPF = 4
NREG = 4

sWAVE, sXCD, sSLOT, sRB, sC, sR2, sC2 = 3, 4, 5, 6, 7, 8, 9
sT0, sT1, sT2, sT3, sT4, sT5 = 10, 11, 12, 13, 14, 15
pQ, pK, pV, pSK, pH, pD, pBX, pW1, pB1, pW2, pB2, pGW, pOUT, pDBG, pWS = [16 + 2 * i for i in range(15)]
SQ, SW1, SWS, SA, SB, SH, SO = 48, 52, 56, 60, 64, 68, 72
sWBASE = 76
sCW = 77
sSOFFX, sSOFFW, sLSLOT, sCNT = 78, 79, 80, 81
sM0X, sM0W = 82, 83
sCH, sCVB = 84, 85
sEX = 86
sTM = 88
sU0, sU1 = 90, 91
sPOLL = 92
sFLAG = 93
sPC = 94
sSTG = 96
sHID = 97
sPRV = 98
sPAIR = 99

a = Asm()
def I(op, *args, **kw):
    if op.startswith("v_pk_") and op.endswith("_f32"):
        base = [int(_re.match(r"v\[(\d+):", x).group(1)) for x in args]
        sop = {"v_pk_mul_f32": "v_mul_f32", "v_pk_add_f32": "v_add_f32", "v_pk_fma_f32": "v_fma_f32"}[op]
        for h in range(2): a.I(sop, *[f"v{b+h}" for b in base])
        return
    a.I(op, *args, **kw)

def f32bits(x): return struct.unpack("<I", struct.pack("<f", x))[0]

def srd(d, p, nbytes):
    I("s_mov_b32", s(d), s(p)); I("s_mov_b32", s(d + 1), s(p + 1))
    I("s_mov_b32", s(d + 2), hex(nbytes)); I("s_mov_b32", s(d + 3), "0x20000")

vSTAMP = 255
def stamp(idx, real=False):
    if not STAMP: return
    I("s_memrealtime" if real else "s_memtime", s(sTM, 2)); a.wait_lgkm(0)
    I("v_writelane_b32", v(vSTAMP), s(sTM), str(idx))
def stamp_flush():
    if not STAMP: return
    stamp(62, real=True)
    I("s_lshl_b32", s(sT5), s(2), "3"); I("s_add_u32", s(sT5), s(sT5), s(sWAVE)); I("s_lshl_b32", s(sT5), s(sT5), "8")
    I("s_add_u32", s(sT5), s(sT5), hex(WS_DBG))
    I("v_lshlrev_b32", "v254", "2", v(1))
    I("buffer_store_dword", v(vSTAMP), "v254", s(SWS, 4), s(sT5), "offen", tag="stamp")

_lbl = [0]
def newlbl(p):
    _lbl[0] += 1; return f"L_{p}_{_lbl[0]}"

def poll(vtmp, voff, soff_reg, vnonce, wide=False, sleep=4):
    top = newlbl("poll"); done = newlbl("pdone")
    I("s_mov_b32", s(sPOLL), "1" if NOPOLL else "0x40000")
    a.label(top)
    if wide: I("buffer_load_dwordx2", v(vtmp, 2), v(voff), s(SWS, 4), s(soff_reg), "offen", "sc1")
    else: I("buffer_load_dword", v(vtmp), v(voff), s(SWS, 4), s(soff_reg), "offen", "sc1")
    a.wait_vm(n=0)
    I("v_cmp_ne_u32", "vcc", v(vtmp + (1 if wide else 0)), v(vnonce))
    a.nop(1)
    I("s_cbranch_vccz", done)
    I("s_sleep", str(sleep))
    I("s_sub_u32", s(sPOLL), s(sPOLL), "1")
    I("s_cmp_lg_u32", s(sPOLL), "0")
    I("s_cbranch_scc1", top)
    a.label(done)

def lds_wait(vtmp, vaddr, off, cmp_op, ref, sleep=1):
    top = newlbl("lw"); done = newlbl("lwd")
    I("s_mov_b32", s(sPOLL), "0x100000")
    a.label(top)
    I("ds_read_b32", v(vtmp), v(vaddr), f"offset:{off}"); a.wait_lgkm(0)
    I(cmp_op, "vcc", ref, v(vtmp)); a.nop(1)
    I("s_cbranch_vccz", done)
    if sleep: I("s_sleep", str(sleep))
    I("s_sub_u32", s(sPOLL), s(sPOLL), "1"); I("s_cmp_lg_u32", s(sPOLL), "0"); I("s_cbranch_scc1", top)
    a.label(done)

def flag_store(voff, soff_reg, vnonce, nlanes=1, zero=True):
    if zero: I("v_mov_b32", v(voff), "0")
    I("s_mov_b64", "exec", str((1 << nlanes) - 1))
    I("buffer_store_dword", v(vnonce), v(voff), s(SWS, 4), s(soff_reg), "offen", "sc1", tag="flag")
    I("s_mov_b64", "exec", "-1")

def h_publish():
    skip = newlbl("hp")
    I("v_mov_b32", "v6", str(M_HC)); I("v_mov_b32", "v8", "1")
    I("s_mov_b64", "exec", "1")
    I("ds_add_rtn_u32", "v8", "v6", "v8"); a.wait_lgkm(0)
    I("v_readfirstlane_b32", s(sT0), "v8")
    I("s_mov_b64", "exec", "-1")
    I("s_cmp_lg_u32", s(sT0), "7"); I("s_cbranch_scc1", skip)
    flag_store(6, sFLAG, vNC)
    a.label(skip)

def unpack(dlo, src):
    I("v_lshlrev_b32", v(dlo), "16", v(src)); I("v_and_b32", v(dlo + 1), "0xffff0000", v(src))

def interleave(r, m):
    n = max(len(r), len(m))
    for i in range(n):
        if i < len(r): I(*r[i])
        if i < len(m): I(*m[i])

LOG2E = 1.4426950408889634
C0 = -2.0 * LOG2E * 0.7978845608028654
C1 = C0 * 0.044715
vLANE, vN, vKG, vL16, vNC = 1, 2, 3, 4, 5
vHC, vHN = 128, 192

def nonce_get():
    top = newlbl("nct"); done = newlbl("ncd")
    I("s_mov_b32", s(sPOLL), "0x40000"); I("v_mov_b32", "v6", "0")
    a.label(top)
    I("global_load_dword", v(vNC), "v6", s(pDBG, 2), "sc1")
    a.wait_vm(n=0)
    I("v_cmp_eq_u32", "vcc", "0", v(vNC)); a.nop(1)
    I("s_cbranch_vccz", done)
    I("s_sleep", "2"); I("s_sub_u32", s(sPOLL), s(sPOLL), "1"); I("s_cmp_lg_u32", s(sPOLL), "0"); I("s_cbranch_scc1", top)
    a.label(done)

def h_loads():
    srd(SH, pH, 640 * 4096)
    I("s_lshl_b32", s(sT0), s(sCH), "12")
    for blk in range(4):
        I("buffer_load_dwordx4", v(vHC + blk * 4, 4), v(vL16), s(SH, 4), s(sT0), "offen", f"offset:{1024*blk}", tag="h")
        I("buffer_load_dwordx2", v(vHN + blk * 2, 2), v(vL16), s(SH, 4), s(sT0), "offen", f"offset:{1024*blk+16}", tag="h")
    I("s_lshl_b32", s(sT0), s(sCH), "1"); I("v_mov_b32", "v6", s(sT0))
    I("global_load_ushort", "v15", "v6", s(pD, 2), tag="h")

def gelu_store(src, rt, mid=None):
    c0, c1, T, O = 16, 17, 24, 40
    I("v_mov_b32", v(c0), hex(f32bits(C0))); I("v_mov_b32", v(c1), hex(f32bits(C1)))
    I("s_lshl_b32", s(sT0), s(sRB), "1"); I("s_lshr_b32", s(sT1), s(sCW), "1"); I("s_add_u32", s(sT0), s(sT0), s(sT1))
    I("s_and_b32", s(sT1), s(sCW), "1"); I("s_lshl_b32", s(sT1), s(sT1), "1"); I("s_add_u32", s(sT1), s(sT1), str(rt))
    I("s_mul_i32", s(sT2), s(sT0), "48"); I("s_lshl_b32", s(sT3), s(sC), "2"); I("s_add_u32", s(sT2), s(sT2), s(sT3))
    I("s_lshl_b32", s(sT2), s(sT2), "2"); I("s_add_u32", s(sT2), s(sT2), s(sT1)); I("s_lshl_b32", s(sT2), s(sT2), "10")
    I("s_add_u32", s(sT2), s(sT2), hex(WS_HF))
    I("s_lshl_b32", s(sT0), s(sRB), "8"); I("s_add_u32", s(sT0), s(sT0), s(sT3)); I("s_add_u32", s(sFLAG), s(sT0), hex(FH))
    for up in range(4):
        X = [src + 8 * up + k for k in range(8)]
        for k in range(8): I("v_mul_f32", v(T + k), v(X[k]), v(X[k]))
        for k in range(8): I("v_fma_f32", v(T + k), v(T + k), v(c1), v(c0))
        for k in range(8): I("v_mul_f32", v(T + k), v(T + k), v(X[k]))
        for k in range(8): I("v_exp_f32", v(T + k), v(T + k))
        for k in range(8): I("v_add_f32", v(T + k), "1.0", v(T + k))
        for k in range(8): I("v_rcp_f32", v(T + k), v(T + k))
        for k in range(8): I("v_mul_f32", v(T + k), v(T + k), v(X[k]))
        for k in range(4): I("v_cvt_pk_bf16_f32", v(O + 4 * up + k), v(T + 2 * k), v(T + 2 * k + 1))
        I("buffer_store_dwordx4", v(O + 4 * up, 4), v(vL16), s(SWS, 4), s(sT2), "offen", "sc1", tag="hst")
        if up < 3: I("s_add_u32", s(sT2), s(sT2), "4096")
        if up == 1 and mid: mid()


XRL = 96
def conv_fetch():
    I("v_and_b32", "v6", "31", v(vLANE)); I("v_lshlrev_b32", "v6", "2", "v6")
    I("s_lshr_b32", s(sT0), s(sCH), "4"); I("s_lshl_b32", s(sT0), s(sT0), "7"); I("s_add_u32", s(sT0), s(sT0), hex(FK))
    poll(7, 6, sT0, vNC)
    stamp(2)
    I("s_lshl_b32", s(sT0), s(sCH), "12"); I("s_add_u32", s(sT0), s(sT0), hex(WS_KVT))
    for blk in range(4):
        I("buffer_load_dwordx4", v(XRL + 4 * blk, 4), v(vL16), s(SWS, 4), s(sT0), "offen", f"offset:{1024*blk}", "sc1", tag="xr")
def conv_hcopies():
    I("v_add_u32", "v10", s(sCVB), v(vL16))
    for blk in range(4):
        d = [vHC + blk * 4 + k for k in range(4)] + [vHN + 2 * blk, vHN + 2 * blk + 1]
        for k in range(4):
            I("v_alignbit_b32", v(vHC + (4 + blk) * 4 + k), v(d[k + 1]), v(d[k]), "16")
            I("v_mov_b32", v(vHC + (8 + blk) * 4 + k), v(d[k + 1]))
            I("v_alignbit_b32", v(vHC + (12 + blk) * 4 + k), v(d[k + 2]), v(d[k + 1]), "16")
        for c in range(4):
            I("ds_write_b128", "v10", v(vHC + (c * 4 + blk) * 4, 4), f"offset:{c*HCP + 32 + 1024*blk}")
    for i in range(4): I("v_mov_b32", v(20 + i), "0")
    I("s_mov_b64", "exec", "0x3fffffff")
    I("ds_write_b128", "v10", v(20, 4), f"offset:{XR + 4096}")
    I("s_mov_b64", "exec", "3")
    for c in range(4): I("ds_write_b128", "v10", v(20, 4), f"offset:{c*HCP}")
    I("s_mov_b64", "exec", "1")
    I("v_lshlrev_b32", "v24", "16", v(vHC))
    I("ds_write_b32", "v10", "v24", f"offset:{1*HCP + 28}")
    I("ds_write_b32", "v10", v(vHC), f"offset:{2*HCP + 28}")
    I("ds_write_b32", "v10", "v24", f"offset:{3*HCP + 24}")
    I("ds_write_b32", "v10", v(vHC + 16), f"offset:{3*HCP + 28}")
    I("s_mov_b64", "exec", "-1")
def conv_xwrite():
    I("v_add_u32", "v10", s(sCVB), v(vL16))
    for blk in range(4): I("ds_write_b128", "v10", v(XRL + 4 * blk, 4), f"offset:{XR + 1024*blk}")

AC2 = 16
vL16b = 9
pool = [144 + 4 * i for i in range(27)] + [96 + 4 * i for i in range(12)]
Wf, Hf = {}, {}
def take(n):
    r = pool[:n]; del pool[:n]; return r
def w_loads(g):
    if g not in Wf: Wf[g] = take(5)
    I("s_add_u32", s(sT1), s(sU1), str(g * 4 * 5120))
    for ct in range(5):
        if ct < 4: I("buffer_load_dwordx4", v(Wf[g][ct], 4), v(vL16), s(SWS, 4), s(sT1), "offen", f"offset:{ct*1024}", "sc1", tag=f"w{g}")
        else: I("buffer_load_dwordx4", v(Wf[g][ct], 4), v(vL16b), s(SWS, 4), s(sT1), "offen", "sc1", tag=f"w{g}")
def w_lds(g):
    Wf[g] = take(5)
    for ct in range(5): I("ds_read_b128", v(Wf[g][ct], 4), "v7", f"offset:{RED + (g - LG0)*5120 + ct*1024}")
def h_loads2(g):
    Hf[g] = take(4)
    I("s_add_u32", s(sT2), s(sU0), str(g * 4 * 4096))
    for rt in range(4):
        I("buffer_load_dwordx4", v(Hf[g][rt], 4), v(vL16), s(SWS, 4), s(sT2), "offen", f"offset:{rt*1024}", "sc1", tag=f"h{g}")
def g2_setup():
    I("s_mul_i32", s(sU0), s(sR2), "48"); I("s_add_u32", s(sU0), s(sU0), s(sCW)); I("s_lshl_b32", s(sU0), s(sU0), "12")
    I("s_add_u32", s(sU0), s(sU0), hex(WS_HF))
    I("s_mul_i32", s(sU1), s(sC2), "48"); I("s_add_u32", s(sU1), s(sU1), s(sCW)); I("s_mul_i32", s(sU1), s(sU1), "5120")
    I("s_add_u32", s(sU1), s(sU1), hex(WS_W2F))
    I("v_add_u32", v(vL16b), "4096", v(vL16))
    for g in range(WPRE): w_loads(g)

hdr = open("cdna_kernels/" + KNAME[:-7] + ".s.ref").read().split("; Override")[0]
a.raw(hdr.rstrip())
a.raw(f"; @launch grid=(256,1,1) block=(512,1,1) lds={LDS_BYTES}")
a.raw('.amdgcn_target "amdgcn-amd-amdhsa--gfx950"\n.text')
a.raw(f".globl {KNAME}\n.p2align 8\n.type {KNAME},@function\n{KNAME}:")
I("s_cmp_ge_u32", "s2", "256"); I("s_cbranch_scc1", "L_end")
I("s_load_dwordx16", s(16, 16), "s[0:1]", "0")
I("s_load_dwordx8", s(32, 8), "s[0:1]", "64")
I("s_load_dwordx4", s(40, 4), "s[0:1]", "96")
I("s_load_dwordx2", s(44, 2), "s[0:1]", "112")
I("s_getpc_b64", s(sPC, 2))
I("v_and_b32", v(vLANE), "63", "v0")
I("v_lshrrev_b32", "v2", "6", "v0")
I("v_readfirstlane_b32", s(sWAVE), "v2")
I("s_and_b32", s(sXCD), "s2", "7"); I("s_lshr_b32", s(sSLOT), "s2", "3")
I("s_lshr_b32", s(sT0), s(sXCD), "1"); I("s_and_b32", s(sT1), s(sXCD), "1")
I("s_lshl_b32", s(sR2), s(sT0), "3"); I("s_lshr_b32", s(sT2), s(sSLOT), "2"); I("s_add_u32", s(sR2), s(sR2), s(sT2))
I("s_lshl_b32", s(sC2), s(sT1), "2"); I("s_and_b32", s(sT2), s(sSLOT), "3"); I("s_add_u32", s(sC2), s(sC2), s(sT2))
I("s_mul_i32", s(sT2), s(sSLOT), "43"); I("s_lshr_b32", s(sT2), s(sT2), "8"); I("s_mul_i32", s(sT3), s(sT2), "6"); I("s_sub_u32", s(sT3), s(sSLOT), s(sT3))
I("s_lshl_b32", s(sRB), s(sT0), "2"); I("s_add_u32", s(sRB), s(sRB), s(sT2))
I("s_mul_i32", s(sC), s(sT1), "6"); I("s_add_u32", s(sC), s(sC), s(sT3))
I("s_and_b32", s(sCW), s(sWAVE), "3")
I("v_and_b32", v(vN), "15", v(vLANE)); I("v_lshrrev_b32", v(vKG), "4", v(vLANE))
I("v_lshlrev_b32", v(vL16), "4", v(vLANE))
if STAMP: I("v_mov_b32", v(vSTAMP), "0")
I("s_cmp_ge_u32", s(sSLOT), "24"); I("s_cbranch_scc1", "L_H")
I("s_cmp_lt_u32", s(sWAVE), "4"); I("s_cbranch_scc1", "L_G")

vDX = 8
vDW = 12
sKST = sU0
I("s_mul_i32", s(sKST), s(sT3), "3"); I("s_mul_i32", s(sT2), s(sT2), "5"); I("s_lshr_b32", s(sT2), s(sT2), "1"); I("s_add_u32", s(sKST), s(sKST), s(sT2))
for _ in range(2):
    I("s_sub_u32", s(sT0), s(sKST), "10"); I("s_cmp_ge_u32", s(sKST), "10"); I("s_cselect_b32", s(sKST), s(sT0), s(sKST))
I("v_lshrrev_b32", "v6", "3", v(vLANE)); I("v_and_b32", "v7", "7", v(vLANE))
I("s_lshl_b32", s(sT0), s(sRB), "7"); I("s_lshl_b32", s(sT1), s(sCW), "5"); I("s_add_u32", s(sT0), s(sT0), s(sT1))
for jj in range(4):
    I("v_add_u32", "v16", str(8 * jj), "v6")
    I("v_bfe_u32", "v17", "v16", "1", "3"); I("v_xor_b32", "v17", "v17", "v7")
    I("v_add_u32", "v16", s(sT0), "v16"); I("v_mul_u32_u24", "v16", "1280", "v16")
    I("v_lshl_add_u32", "v16", "v17", "4", "v16")
    I("v_subrev_u32", v(vDX + jj), str(1024 * jj), "v16")
I("v_bfe_u32", "v16", v(vLANE), "3", "2"); I("v_mul_u32_u24", "v16", "3072", "v16")
I("v_lshrrev_b32", "v17", "5", v(vLANE)); I("v_lshl_add_u32", "v16", "v17", "7", "v16")
I("v_bfe_u32", "v17", v(vLANE), "4", "1"); I("v_lshlrev_b32", "v17", "2", "v17"); I("v_xor_b32", "v17", "v17", "v7")
I("v_lshl_add_u32", v(vDW), "v17", "4", "v16")
I("s_lshl_b32", s(sWBASE), s(sC), "8"); I("s_mul_i32", s(sT0), s(sCW), str(16 * 3072)); I("s_add_u32", s(sWBASE), s(sWBASE), s(sT0))
I("s_mov_b32", s(sSTG), "0"); I("s_mov_b32", s(sLSLOT), "0")
I("s_lshl_b32", s(sM0X), s(sCW), "12"); I("s_mul_i32", s(sM0W), s(sCW), str(4096 + 64)); I("s_add_u32", s(sM0W), s(sM0W), str(WOFF))
a.wait_lgkm(0)
srd(SQ, pQ, 2621440)
srd(SW1, pW1, 640 * 3072)
stamp(63, real=True); stamp(0)
def issue_stage():
    I("s_lshl_b32", s(sSOFFX), s(sKST), "7")
    I("s_mul_i32", s(sSOFFW), s(sKST), str(64 * 3072)); I("s_add_u32", s(sSOFFW), s(sSOFFW), s(sWBASE))
    I("s_add_u32", "m0", s(sLSLOT), s(sM0X)); I("s_add_u32", s(sT3), s(sLSLOT), s(sM0W))
    for jj in range(4):
        I("buffer_load_dwordx4", v(vDX + jj), s(SQ, 4), s(sSOFFX), "offen", f"offset:{1024*jj}", "lds", tag="st")
    for i in range(4):
        I("s_add_u32", "m0", s(sT3), str(1024 * i + 32 * (i >> 1)))
        I("buffer_load_dwordx4", v(vDW), s(SW1, 4), s(sSOFFW), "offen", "lds", tag="st")
        if i < 3: I("s_add_u32", s(sSOFFW), s(sSOFFW), str(4 * 3072))
    I("s_add_u32", s(sKST), s(sKST), "1"); I("s_cmp_eq_u32", s(sKST), "10"); I("s_cselect_b32", s(sKST), "0", s(sKST))
    I("s_add_u32", s(sLSLOT), s(sLSLOT), str(SLOT)); I("s_cmp_eq_u32", s(sLSLOT), str(NSLOT * SLOT)); I("s_cselect_b32", s(sLSLOT), "0", s(sLSLOT))
    I("s_add_u32", s(sSTG), s(sSTG), "1")
issue_stage()
I("s_mul_i32", s(sT0), s(sXCD), "24"); I("s_add_u32", s(sT0), s(sT0), s(sSLOT)); I("s_lshl_b32", s(sT0), s(sT0), "1")
I("s_lshr_b32", s(sPAIR), s(sCW), "1"); I("s_add_u32", s(sCH), s(sT0), s(sPAIR)); I("s_add_u32", s(sCH), s(sCH), "256")
I("s_mul_i32", s(sCVB), s(sPAIR), str(CVSZ)); I("s_add_u32", s(sCVB), s(sCVB), str(PRIV[2]))
I("s_and_b32", s(sT0), s(sWAVE), "1"); I("s_cmp_eq_u32", s(sT0), "0"); I("s_cbranch_scc1", "L_noh")
h_loads()
a.label("L_noh")
issue_stage()
srd(SWS, pWS, WS_SIZE)
a.lines.append("  s_waitcnt vmcnt(8)")
a.barrier()
issue_stage(); issue_stage()
a.label("L_ld_loop")
a.vm = ["st"] * 24
a.wait_vm(n=16)
a.barrier()
issue_stage()
if STAMP:
    I("s_add_u32", "m0", s(sSTG), "28"); stamp("m0")
I("s_cmp_lt_u32", s(sSTG), "10"); I("s_cbranch_scc1", "L_ld_loop")
I("v_mov_b32", "v6", "0")
I("global_load_dword", v(vNC), "v6", s(pDBG, 2), "sc1", tag="nc")
vG, vGV = 20, 32
I("s_min_u32", s(sT1), s(sC), "7"); I("s_lshl_b32", s(sT1), s(sT1), "4"); I("s_lshl_b32", s(sT0), s(sRB), "7"); I("s_add_u32", s(sT0), s(sT0), s(sT1))
I("s_lshl_b32", s(sT1), s(sCW), "2"); I("s_add_u32", s(sT0), s(sT0), s(sT1))
I("v_add_u32", v(vG), s(sT0), v(vKG))
I("v_lshlrev_b32", v(vGV + 2), "3", v(vG))
I("v_lshlrev_b32", v(vG + 1), "4", v(vN))
I("v_mul_u32_u24", v(vG + 2), "1280", v(vG)); I("v_add_u32", v(vG + 2), v(vG + 2), v(vG + 1))
for i in range(5):
    I("global_load_dwordx4", v(64 + 4 * i, 4), v(vG + 2), s(pQ, 2), f"offset:{256*i}", tag="g")
    I("global_load_dwordx4", v(84 + 4 * i, 4), v(vG + 1), s(pGW, 2), f"offset:{256*i}", tag="g")
for k in (2, 1, 0):
    a.wait_vm(n=8 * k + (11 if k else 10))
    if k == 0:
        I("v_cmp_eq_u32", "vcc", "0", v(vNC)); a.nop(1)
        I("s_cbranch_vccz", "L_ld_tag")
        nonce_get()
        a.label("L_ld_tag")
        I("v_mov_b32", "v7", str(MISC)); I("ds_write_b32", "v7", v(vNC)); a.wait_lgkm(0)
    a.barrier()
stamp(5)
I("s_setprio", str(knob("p1", 1)))
I("s_and_b32", s(sT0), s(sWAVE), "1"); I("s_cmp_eq_u32", s(sT0), "0"); I("s_cbranch_scc1", "L_nocp")
conv_hcopies()
a.label("L_nocp")
a.wait_vm(n=0)
acc, x_, w_, t_ = vG + 4, vG + 6, vG + 8, vG + 10
for i in range(20):
    unpack(x_, 64 + i); unpack(w_, 84 + i)
    if i == 0: I("v_pk_mul_f32", v(acc, 2), v(x_, 2), v(w_, 2))
    else: I("v_pk_fma_f32", v(acc, 2), v(x_, 2), v(w_, 2), v(acc, 2))
I("v_add_f32", v(acc), v(acc), v(acc + 1))
for off in (0x041F, 0x081F, 0x101F, 0x201F):
    I("ds_swizzle_b32", v(t_), v(acc), f"offset:{off}"); a.wait_lgkm(0)
    I("v_add_f32", v(acc), v(acc), v(t_))
I("v_cvt_pk_bf16_f32", v(t_), v(acc), v(acc)); I("v_lshlrev_b32", v(acc), "16", v(t_))
I("v_mul_f32", v(acc), hex(f32bits(-LOG2E)), v(acc))
I("v_exp_f32", v(acc), v(acc)); I("v_add_f32", v(acc), "1.0", v(acc)); I("v_rcp_f32", v(acc), v(acc))
I("v_cvt_pk_bf16_f32", v(t_), v(acc), v(acc)); I("v_lshlrev_b32", v(vGV), "16", v(t_))
I("v_mov_b32", v(vGV + 1), v(vNC))
I("s_lshl_b32", s(sT0), s(sCW), "2"); I("s_add_u32", s(sT0), s(sT0), str(M_X)); I("v_mov_b32", "v6", s(sT0))
I("s_lshl_b32", s(sT0), s(sCW), "13"); I("s_add_u32", s(sT0), s(sT0), str(XCH)); I("v_add_u32", "v8", s(sT0), v(vL16))
lds_wait(9, 6, 0, "v_cmp_eq_u32", "0", sleep=0)
for ft in range(8): I("ds_read_b128", v(64 + 4 * ft, 4), "v8", f"offset:{1024*ft}")
I("v_mov_b32", "v9", "2")
a.wait_lgkm(0)
I("ds_write_b32", "v6", "v9")
a.vm = []
sXRF, sFKA = sSOFFX, sSOFFW
I("v_and_b32", "v10", "31", v(vLANE)); I("v_lshlrev_b32", "v10", "2", "v10")
I("s_lshr_b32", s(sFKA), s(sCH), "4"); I("s_lshl_b32", s(sFKA), s(sFKA), "7"); I("s_add_u32", s(sFKA), s(sFKA), hex(FK))
I("buffer_load_dword", "v11", "v10", s(SWS, 4), s(sFKA), "offen", "sc1", tag="fk")
I("s_mov_b32", s(sXRF), "0")
def early_xr():
    I("s_and_b32", s(sT0), s(sWAVE), "1"); I("s_cmp_eq_u32", s(sT0), "0"); I("s_cbranch_scc1", "L_noexr")
    vm = list(a.vm)
    a.wait_vm(tag="fk")
    I("v_cmp_ne_u32", "vcc", "v11", v(vNC)); a.nop(1)
    I("s_cbranch_vccnz", "L_noexr")
    I("s_lshl_b32", s(sT0), s(sCH), "12"); I("s_add_u32", s(sT0), s(sT0), hex(WS_KVT))
    for blk in range(4):
        I("buffer_load_dwordx4", v(XRL + 4 * blk, 4), v(vL16), s(SWS, 4), s(sT0), "offen", f"offset:{1024*blk}", "sc1")
    I("s_mov_b32", s(sXRF), "1")
    a.label("L_noexr")
    a.vm = vm
gelu_store(64, 1, early_xr)
a.wait_vm(n=0)
h_publish()
stamp(1)
I("s_cmp_ge_u32", s(sC), "8"); I("s_cbranch_scc1", "L_nogs")
I("s_mov_b32", s(sT0), hex(WS_G))
I("s_mov_b32", s(sEX), "0x10001"); I("s_mov_b32", s(sEX + 1), "0x10001"); I("s_mov_b64", "exec", s(sEX, 2))
I("buffer_store_dwordx2", v(vGV, 2), v(vGV + 2), s(SWS, 4), s(sT0), "offen", "sc1", tag="gst")
I("s_mov_b64", "exec", "-1")
a.label("L_nogs")
I("s_sub_u32", s(sT0), s(sWAVE), "4")
for w in range(4):
    I("s_cmp_eq_u32", s(sT0), str(w)); I("s_cselect_b32", s(sPRV), str(PRIV[w]), s(sPRV))
I("v_and_b32", "v14", "1", v(vLANE)); I("v_lshlrev_b32", "v14", "3", "v14"); I("v_add_u32", "v14", str(M_CD + 20), "v14")
I("s_mov_b32", s(sCNT), "2")
I("s_and_b32", s(sT0), s(sWAVE), "1"); I("s_cmp_eq_u32", s(sT0), "0"); I("s_cbranch_scc1", "L_cv6")
I("s_branch", "L_cv7")

a.label("L_G")
a.vm = []
ACC = 64
XS = 128
WSR = 144
vXA0, vXA1, vWE, vWO = 8, 9, 10, 11
vCX0, vCX1, vCWE, vCWO = 12, 13, 14, 15
vBIAS = 208
vRA, vRV, vDNA, vDNV = 16, 17, 18, 19
def lds_init():
    I("v_lshlrev_b32", "v6", "2", v(vLANE)); I("v_add_u32", "v6", str(MISC), "v6"); I("v_mov_b32", "v7", "0")
    I("ds_write_b32", "v6", "v7")
def code_prefetch():
    I("s_and_b32", s(sT0), s(sSLOT), "7"); I("s_lshl_b32", s(sT0), s(sT0), "2"); I("s_add_u32", s(sT0), s(sT0), s(sCW))
    I("s_min_u32", s(sT0), s(sT0), "CODE_KB"); I("s_lshl_b32", s(sT0), s(sT0), "10")
    I("v_add_u32", "v6", s(sT0), v(vL16))
    I("global_load_dwordx4", v(244, 4), "v6", s(sPC, 2), tag="code")
lds_init()
a.wait_lgkm(0)
stamp(63, real=True); stamp(0)
srd(SWS, pWS, WS_SIZE)
I("s_add_u32", s(sT0), "s2", s(sWAVE)); I("s_cmp_lg_u32", s(sT0), "0"); I("s_cbranch_scc1", "L_nonce_skip")
I("s_memrealtime", s(sTM, 2)); a.wait_lgkm(0)
I("s_mul_i32", s(sT0), s(sTM), "0x9E3779B1"); I("s_xor_b32", s(sT0), s(sT0), s(sTM + 1)); I("s_or_b32", s(sT0), s(sT0), "1")
I("v_mov_b32", "v16", s(sT0)); I("v_mov_b32", "v17", "0")
a.lines.append("  global_store_dword v17, v16, s[42:43] sc1")
a.label("L_nonce_skip")
I("v_lshlrev_b32", "v6", "3", v(vKG))
I("s_lshl_b32", s(sT0), s(sC), "8")
I("s_add_u32", s(sT2), s(pB1), s(sT0)); I("s_addc_u32", s(sT3), s(pB1 + 1), "0")
for ft in range(8):
    I("global_load_dwordx2", v(vBIAS + 2 * ft, 2), "v6", s(sT2, 2), f"offset:{32*ft}", tag="bias1")
code_prefetch()
I("s_lshl_b32", s(sT0), s(sCW), "5")
I("v_add_u32", "v6", s(sT0), v(vN)); I("v_lshlrev_b32", "v6", "7", "v6")
I("v_lshrrev_b32", "v7", "1", v(vN)); I("v_xor_b32", "v7", "v7", v(vKG)); I("v_lshlrev_b32", "v7", "4", "v7")
I("v_add_u32", v(vXA0), "v6", "v7"); I("v_xor_b32", v(vXA1), "64", v(vXA0))
I("v_mul_u32_u24", "v6", "2080", v(vKG)); I("v_bfe_u32", "v7", v(vLANE), "2", "2"); I("v_lshl_add_u32", "v6", "v7", "7", "v6")
I("v_and_b32", "v7", "3", v(vLANE)); I("v_lshl_add_u32", "v6", "v7", "3", "v6"); I("v_add_u32", "v6", hex(WOFF), "v6")
I("v_bfe_u32", "v7", v(vLANE), "3", "1"); I("v_lshlrev_b32", "v7", "6", "v7")
I("v_add_u32", v(vWE), "v6", "v7"); I("v_sub_u32", v(vWO), "v6", "v7")
for i in range(8): I("v_mov_b32", v(XS + 8 + i), "0")
for i in range(32): I("v_mov_b32", v(WSR + 32 + i), "0")
I("s_mov_b32", s(sLSLOT), "0"); I("s_mov_b32", s(sCNT), "10")
for c_, l_ in ((vCX0, vXA0), (vCX1, vXA1), (vCWE, vWE), (vCWO, vWO)): I("v_mov_b32", v(c_), v(l_))
I("s_lshl_b32", s(sT0), s(sCW), "2"); I("s_add_u32", s(sT0), s(sT0), str(M_X)); I("v_mov_b32", v(vDNA), s(sT0))
a.wait_vm(tag="bias1")
for rt in range(2):
    for ft in range(8):
        for h in range(2): unpack(ACC + (rt * 8 + ft) * 4 + 2 * h, vBIAS + 2 * ft + h)
def g1_reads(st, ks):
    r = []
    for rt in range(2):
        r.append(("ds_read_b128", v(XS + (st * 2 + rt) * 4, 4), v(vCX1 if ks else vCX0), f"offset:{rt*2048}"))
    for ft in range(8):
        for hh in range(2):
            r.append(("ds_read_b64_tr_b16", v(WSR + (st * 8 + ft) * 4 + 2 * hh, 2), v(vCWO if ft & 2 else vCWE),
                      f"offset:{ks*8320 + hh*1024 + (ft >> 2)*512 + (ft & 3)*32}"))
    return r
def g1_mfmas(st):
    m = []
    for ft in range(8):
        for rt in range(2):
            d = v(ACC + (rt * 8 + ft) * 4, 4)
            m.append(("v_mfma_f32_16x16x32_bf16", d, v(WSR + (st * 8 + ft) * 4, 4), v(XS + (st * 2 + rt) * 4, 4), d))
    return m
def half(reads, mfmas, counted, sched):
    n_new = 0; ri = 0
    for k, m in enumerate(mfmas):
        if counted and k % 2 == 0:
            a.wait_lgkm(min(14, (14 - 2 * (k // 2)) + n_new))
        I(*m)
        for _ in range(sched[k]):
            I(*reads[ri]); ri += 1; n_new += 1
    assert ri == len(reads)
stamp(17)
a.label("L_g1")
a.barrier()
if STAMP:
    I("s_sub_u32", "m0", "30", s(sCNT)); stamp("m0")
half(g1_reads(0, 0), g1_mfmas(1), False, [2, 2] + [1] * 14)
half(g1_reads(1, 1), g1_mfmas(0), True, [0, 2, 1, 2, 1, 2, 1, 2, 1, 2, 2, 2, 0, 0, 0, 0])
I("s_add_u32", s(sLSLOT), s(sLSLOT), str(SLOT))
I("s_cmp_eq_u32", s(sLSLOT), str(NSLOT * SLOT)); I("s_cselect_b32", s(sLSLOT), "0", s(sLSLOT))
for c_, l_ in ((vCX0, vXA0), (vCX1, vXA1), (vCWE, vWE), (vCWO, vWO)): I("v_add_u32", v(c_), s(sLSLOT), v(l_))
I("s_sub_u32", s(sCNT), s(sCNT), "1"); I("s_cmp_lg_u32", s(sCNT), "0")
a.wait_lgkm(0)
I("s_cbranch_scc1", "L_g1")
m = g1_mfmas(1)
for x in m[1::2]: I(*x)
for x in m[0::2]: I(*x)
I("v_mov_b32", "v7", str(MISC)); I("ds_read_b32", v(vNC), "v7")
stamp(1)
I("s_lshl_b32", s(sT0), s(sCW), "13"); I("s_add_u32", s(sT0), s(sT0), str(XCH)); I("v_add_u32", "v8", s(sT0), v(vL16))
for ft in range(8): I("ds_write_b128", "v8", v(ACC + (8 + ft) * 4, 4), f"offset:{1024*ft}")
I("v_mov_b32", "v6", "1"); I("ds_write_b32", v(vDNA), "v6")
I("v_and_b32", "v14", "1", v(vLANE)); I("v_lshlrev_b32", "v14", "3", "v14"); I("v_add_u32", "v14", str(M_CD + 20), "v14")
a.vm = []
I("v_min_u32", "v10", "47", v(vLANE)); I("v_lshlrev_b32", "v10", "2", "v10")
I("s_lshl_b32", s(sT5), s(sC2), "8"); I("s_add_u32", s(sT5), s(sT5), hex(FW))
I("buffer_load_dword", "v11", "v10", s(SWS, 4), s(sT5), "offen", "sc1")
gelu_store(ACC, 0)
stamp(9)
a.wait_vm(n=0, lgkm=0)
h_publish()
stamp(2)
lds_wait(8, 7, M_HC - MISC, "v_cmp_ne_u32", "8", sleep=1)
I("v_cmp_ne_u32", "vcc", "v11", v(vNC)); a.nop(1)
I("s_cbranch_vccz", "L_fwok")
a.label("L_fwpoll")
poll(11, 10, sT5, vNC)
a.label("L_fwok")
g2_setup()

a.label("L_gemm2")
for i in range(80): I("v_mov_b32", v(AC2 + i), "0")
I("v_mov_b32", "v7", str(MISC))
I("s_cmp_lg_u32", s(sCW), "0"); I("s_cbranch_scc1", "L_fhwait")
I("v_min_u32", "v6", "11", v(vLANE)); I("v_lshlrev_b32", "v6", "2", "v6")
I("s_lshr_b32", s(sT0), s(sR2), "1"); I("s_lshl_b32", s(sT0), s(sT0), "8"); I("s_add_u32", s(sT0), s(sT0), hex(FH))
vmsave = list(a.vm)
poll(8, 6, sT0, vNC, sleep=PSL)
I("ds_write_b32", "v7", v(vNC), f"offset:{M_FHS - MISC}")
a.label("L_fhwait")
a.vm = vmsave
lds_wait(8, 7, M_FHS - MISC, "v_cmp_ne_u32", v(vNC), sleep=1)
stamp(3)
for g in range(4):
    h_loads2(g)
    if g >= WPRE: w_loads(g)
for g in range(12):
    a.wait_vm(tag=f"h{g}")
    a.wait_vm(tag=f"w{g}")
    for ct in range(5):
        for rt in range(4):
            d = v(AC2 + (rt * 5 + ct) * 4, 4)
            I("v_mfma_f32_16x16x32_bf16", d, v(Wf[g][ct], 4), v(Hf[g][rt], 4), d)
    pool.extend(Wf[g] + Hf[g])
    if g + 4 < 12: h_loads2(g + 4); w_loads(g + 4)
    if g == YGO: I("ds_write_b32", "v7", v(vNC), f"offset:{M_G2L - MISC}")
stamp(4)
lds_wait(8, 14, 0, "v_cmp_eq_u32", "0", sleep=1)
I("v_mul_u32_u24", "v6", str(REDP), v(vN)); I("v_lshl_add_u32", "v6", v(vKG), "4", "v6")
I("s_mul_i32", s(sT0), s(sCW), str(REDW)); I("v_add_u32", "v6", s(sT0), "v6")
a.nop(6)
for ct in range(5):
    for rt in range(4):
        I("ds_write_b128", "v6", v(AC2 + (rt * 5 + ct) * 4, 4), f"offset:{RED + rt*16*REDP + ct*64}")
I("s_branch", "L_final")


a.label("L_H")
a.vm = []
I("s_lshl_b32", s(sHID), s(sXCD), "3"); I("s_add_u32", s(sHID), s(sHID), s(sSLOT)); I("s_sub_u32", s(sHID), s(sHID), "24")
lds_init()
vG = 20
vGV = 216
def g_loads():
    I("s_lshl_b32", s(sT0), s(sHID), "5"); I("s_add_u32", s(sT0), s(sT0), s(sCNT))
    I("v_add_u32", v(vG), s(sT0), v(vKG))
    I("v_lshlrev_b32", v(vGV + 2), "3", v(vG))
    I("v_lshlrev_b32", v(vG + 1), "4", v(vN))
    I("v_mul_u32_u24", v(vG + 2), "1280", v(vG)); I("v_add_u32", v(vG + 2), v(vG + 2), v(vG + 1))
    for i in range(5):
        I("global_load_dwordx4", v(160 + 4 * i, 4), v(vG + 2), s(pQ, 2), f"offset:{256*i}", tag="g")
        I("global_load_dwordx4", v(180 + 4 * i, 4), v(vG + 1), s(pGW, 2), f"offset:{256*i}", tag="g")
sTT, sHF = sU0, sU1
I("s_lshr_b32", s(sTT), s(sHID), "1"); I("s_and_b32", s(sHF), s(sHID), "1")
I("v_lshrrev_b32", "v16", "3", v(vLANE)); I("v_mul_u32_u24", "v16", "1280", "v16")
I("v_and_b32", "v17", "7", v(vLANE)); I("v_lshl_add_u32", "v16", "v17", "4", "v16")
I("s_mul_i32", s(sT0), s(sTT), str(64 * 1280)); I("s_mul_i32", s(sT1), s(sHF), "640"); I("s_add_u32", s(sT0), s(sT0), s(sT1))
I("s_min_u32", s(sT3), s(sWAVE), "4"); I("s_lshl_b32", s(sT1), s(sT3), "7"); I("s_add_u32", s(sT1), s(sT1), s(sT0))
I("v_add_u32", "v17", s(sT1), "v16"); I("v_subrev_u32", "v17", str(8 * 1280), "v17")
I("s_mul_i32", s(sT1), s(sWAVE), str(8 * 1280)); I("s_add_u32", s(sT0), s(sT0), s(sT1))
I("v_add_u32", "v16", s(sT0), "v16")
I("s_mul_i32", s(sT3), s(sT3), str(KSUB))
I("s_mul_i32", s(sT2), s(sWAVE), "1040")
a.wait_lgkm(0)
stamp(63, real=True); stamp(0)
srd(SA, pK, 2621440); srd(SB, pV, 2621440)
for b in range(5):
    I("s_movk_i32", s(sT1), str(128 * b))
    I("s_add_u32", "m0", s(sT2), str(b * KSUB + 1040))
    I("buffer_load_dwordx4", "v16", s(SA, 4), s(sT1), "offen", "lds", tag="kv")
    I("s_add_u32", "m0", s(sT2), str(b * KSUB + 1040 * 9))
    I("buffer_load_dwordx4", "v16", s(SB, 4), s(sT1), "offen", "lds", tag="kv")
I("s_mov_b32", "m0", s(sT3))
I("buffer_load_dwordx4", "v17", s(SA, 4), "0", "offen", "lds", tag="kv")
vSKR = 48
srd(SB, pSK, 5120)
I("v_lshrrev_b32", "v16", "3", v(vLANE)); I("v_lshlrev_b32", "v16", "4", "v16")
I("s_mul_i32", s(sT0), s(sHF), "2560"); I("s_lshl_b32", s(sT1), s(sWAVE), "7"); I("s_add_u32", s(sT0), s(sT0), s(sT1))
for j in range(3):
    I("buffer_load_dwordx4", v(vSKR + 4 * j, 4), "v16", s(SB, 4), s(sT0), "offen", f"offset:{1024*j}", tag="sk")
sUU, sC2W = sM0X, sM0W
I("s_mul_i32", s(sT0), s(sHID), "3"); I("s_add_u32", s(sT0), s(sT0), s(sWAVE)); I("s_sub_u32", s(sT0), s(sT0), "5")
I("s_lshr_b32", s(sUU), s(sT0), "2"); I("s_and_b32", s(sT0), s(sT0), "3"); I("s_lshl_b32", s(sC2W), s(sT0), "1")
I("s_mul_i32", s(sWBASE), s(sWAVE), "10240"); I("s_add_u32", s(sWBASE), s(sWBASE), str(5 * KSUB - 5 * 10240))
I("s_cmp_lt_u32", s(sWAVE), "5"); I("s_cbranch_scc1", "L_now2")
srd(SA, pW2, 1536 * 1280)
I("s_mul_i32", s(sT2), s(sUU), str(32 * 1280)); I("s_mul_i32", s(sT3), s(sC2W), "160"); I("s_add_u32", s(sT2), s(sT2), s(sT3))
I("s_add_u32", s(sT3), s(sT2), "160")
for i in range(5):
    I("v_add_u32", "v24", str(64 * i), v(vLANE))
    I("v_mul_u32_u24", "v25", "6554", "v24"); I("v_lshrrev_b32", "v25", "16", "v25")
    I("v_mul_u32_u24", "v26", "10", "v25"); I("v_sub_u32", "v26", "v24", "v26")
    I("v_mul_u32_u24", "v25", "1280", "v25"); I("v_lshl_add_u32", "v25", "v26", "4", "v25")
    for hf in range(2):
        I("s_add_u32", "m0", s(sWBASE), str(1024 * i + 5120 * hf))
        I("buffer_load_dwordx4", "v25", s(SA, 4), s(sT2 + hf), "offen", "lds", tag="sk")
a.label("L_now2")
srd(SWS, pWS, WS_SIZE)
ad = 16
I("v_and_b32", v(ad), "7", v(vLANE)); I("v_mul_u32_u24", v(ad), "1040", v(ad))
I("v_lshrrev_b32", v(ad + 1), "3", v(vLANE)); I("v_lshl_add_u32", v(ad), v(ad + 1), "2", v(ad))
I("s_lshr_b32", s(sT0), s(sWAVE), "2"); I("s_mul_i32", s(sT0), s(sT0), str(KSUB)); I("s_lshl_b32", s(sT1), s(sCW), "5"); I("s_add_u32", s(sT0), s(sT0), s(sT1))
I("v_add_u32", v(ad), s(sT0), v(ad))
I("v_lshlrev_b32", v(ad + 1), "13", v(ad + 1))
I("v_and_b32", v(ad + 2), "7", v(vLANE)); I("v_lshlrev_b32", v(ad + 2), "4", v(ad + 2))
I("v_sub_u32", v(ad + 1), v(ad + 1), v(ad + 2)); I("v_add_u32", v(ad + 1), "112", v(ad + 1))
I("v_add_u32", v(ad + 2), "4096", v(ad + 1))
I("s_mul_i32", s(sT0), s(sHF), "20"); I("s_add_u32", s(sT0), s(sT0), s(sWAVE))
I("s_lshl_b32", s(sT1), s(sT0), "7"); I("s_lshl_b32", s(sT2), s(sTT), "2"); I("s_add_u32", s(sT1), s(sT1), s(sT2)); I("s_add_u32", s(sFLAG), s(sT1), hex(FK))
I("s_lshl_b32", s(sT0), s(sT0), "16")
I("s_lshl_b32", s(sT1), s(sTT), "7"); I("s_sub_u32", s(sT0), s(sT0), s(sT1)); I("s_add_u32", s(sT4), s(sT0), hex(WS_KVT + 4080 - 112))
KR, VR, KU, S, P, OUT, O2 = 64, 76, 96, 118, 126, 132, 140
def kv_reads():
    for i in range(11):
        r_ = 5 + i
        I("ds_read_b32", v(KR + i), v(ad), f"offset:{(r_ >> 3)*1040 + (r_ & 7)*128}")
    for i in range(8): I("ds_read_b32", v(VR + i), v(ad), f"offset:{9*1040 + i*128}")
    I("v_add_u32", v(ad), str(2 * KSUB), v(ad))
I("s_cmp_lt_u32", s(sWAVE), "4"); I("s_cselect_b32", s(sCNT), "3", "2"); I("s_cselect_b32", s(sEX), "7", "3"); I("s_mov_b32", s(sEX + 1), "0")
a.wait_vm(tag="sk")
a.barrier()
stamp(18)
kv_reads()
I("s_cmp_lt_u32", s(sWAVE), "5"); I("s_cbranch_scc1", "L_now2b")
I("v_lshrrev_b32", "v24", "2", v(vLANE)); I("v_mul_u32_u24", "v24", "160", "v24")
I("v_and_b32", "v25", "3", v(vLANE)); I("v_lshl_add_u32", "v24", "v25", "3", "v24")
I("v_add_u32", "v24", s(sWBASE), "v24")
for hf in range(2):
    for ct in range(5):
        for hh in range(2):
            I("ds_read_b64_tr_b16", v(160 + 20 * hf + 4 * ct + 2 * hh, 2), "v24", f"offset:{5120*hf + 32*ct + hh*16*160}")
I("s_lshl_b32", s(sT0), s(sC2W), "8"); I("s_lshl_b32", s(sT1), s(sUU), "2"); I("s_add_u32", s(sT0), s(sT0), s(sT1))
I("s_add_u32", s(sSTG), s(sT0), hex(FW))
I("s_mul_i32", s(sT0), s(sC2W), "48"); I("s_add_u32", s(sT0), s(sT0), s(sUU)); I("s_mul_i32", s(sT0), s(sT0), "5120")
I("s_add_u32", s(sT2), s(sT0), hex(WS_W2F))
I("v_add_u32", "v25", "4096", v(vL16))
a.wait_lgkm(0)
for hf in range(2):
    for ct in range(5):
        if ct < 4: I("buffer_store_dwordx4", v(160 + 20 * hf + 4 * ct, 4), v(vL16), s(SWS, 4), s(sT2), "offen", f"offset:{1024*ct}", "sc1", tag="pst")
        else: I("buffer_store_dwordx4", v(160 + 20 * hf + 4 * ct, 4), "v25", s(SWS, 4), s(sT2), "offen", "sc1", tag="pst")
    if hf == 0: I("s_add_u32", s(sT2), s(sT2), str(48 * 5120))
a.label("L_now2b")
I("v_mov_b32", "v6", "0")
I("global_load_dword", v(vNC), "v6", s(pDBG, 2), "sc1")
I("s_mov_b32", s(sT2), "0x05040100"); I("s_mov_b32", s(sT3), "0x07060302")
a.label("L_kv")
for j in range(4):
    for ch in range(2):
        src = vSKR + 2 * ch + (j >> 1)
        if j & 1: I("v_and_b32", v(S + 2 * j + ch), "0xffff0000", v(src))
        else: I("v_lshlrev_b32", v(S + 2 * j + ch), "16", v(src))
for i in range(8): I("v_mov_b32", v(vSKR + i), v(vSKR + 4 + i))
a.wait_lgkm(0)
for i in range(11): unpack(KU + 2 * i, KR + i)
for t_ in range(8): unpack(224 + 2 * t_, VR + t_)
kv_reads()
for t_ in range(8):
    a.I("v_pk_mul_f32", v(P, 2), v(KU + 2 * t_, 2), v(S + 6, 2))
    for j in (2, 1, 0):
        a.I("v_pk_fma_f32", v(P, 2), v(KU + 2 * (t_ + 3 - j), 2), v(S + 2 * j, 2), v(P, 2))
    a.I("v_pk_mul_f32", v(P, 2), v(P, 2), v(224 + 2 * t_, 2))
    I("v_cvt_pk_bf16_f32", v(OUT + t_), v(P), v(P + 1))
for ch in range(2):
    for j in range(4):
        I("v_perm_b32", v(O2 + 4 * ch + j), v(OUT + 6 - 2 * j), v(OUT + 7 - 2 * j), s(sT2 + ch))
I("buffer_store_dwordx4", v(O2, 4), v(ad + 1), s(SWS, 4), s(sT4), "offen", "sc1", tag="pst")
I("buffer_store_dwordx4", v(O2 + 4, 4), v(ad + 2), s(SWS, 4), s(sT4), "offen", "sc1", tag="pst")
I("s_add_u32", s(sT4), s(sT4), str(128 * 4096))
I("s_sub_u32", s(sCNT), s(sCNT), "1"); I("s_cmp_lg_u32", s(sCNT), "0"); I("s_cbranch_scc1", "L_kv")
stamp(19)
a.wait_vm(n=0, lgkm=0)
I("v_cmp_eq_u32", "vcc", "0", v(vNC)); a.nop(1)
I("s_cbranch_vccz", "L_h_tag")
nonce_get()
a.label("L_h_tag")
I("v_lshlrev_b32", "v6", "10", v(vLANE))
I("s_mov_b64", "exec", s(sEX, 2))
I("buffer_store_dword", v(vNC), "v6", s(SWS, 4), s(sFLAG), "offen", "sc1", tag="flag")
I("s_mov_b64", "exec", "-1")
I("s_cmp_lt_u32", s(sWAVE), "5"); I("s_cbranch_scc1", "L_nofwf")
I("v_lshlrev_b32", "v6", "8", v(vLANE))
flag_store(6, sSTG, vNC, nlanes=2, zero=False)
a.label("L_nofwf")
stamp(5)
I("s_lshl_b32", s(sCH), s(sHID), "2"); I("s_add_u32", s(sCH), s(sCH), s(sCW))
I("s_cmp_lt_u32", s(sWAVE), "4"); I("s_cbranch_scc1", "L_nohh")
h_loads()
a.label("L_nohh")
a.barrier()
for w in range(4):
    I("s_cmp_eq_u32", s(sCW), str(w)); I("s_cselect_b32", s(sPRV), str(PRIV[w]), s(sPRV))
    I("s_cselect_b32", s(sCVB), str(CVH[w] if w < 2 else PRIV[w]), s(sCVB))
I("v_and_b32", "v14", "1", v(vLANE)); I("v_lshlrev_b32", "v14", "2", "v14"); I("v_add_u32", "v14", str(M_CD + 16), "v14")
I("s_cmp_ge_u32", s(sWAVE), "4"); I("s_cbranch_scc1", "L_conv")
I("v_min_u32", "v10", "47", v(vLANE)); I("v_lshlrev_b32", "v10", "2", "v10")
I("s_lshl_b32", s(sT5), s(sC2), "8"); I("s_add_u32", s(sT5), s(sT5), hex(FW))
I("v_mov_b32", "v7", str(MISC))
I("s_cmp_lg_u32", s(sWAVE), "0"); I("s_cbranch_scc1", "L_hfw")
poll(11, 10, sT5, vNC, sleep=16)
I("ds_write_b32", "v7", v(vNC), f"offset:{M_FWOK - MISC}")
a.label("L_hfw")
lds_wait(8, 7, M_FWOK - MISC, "v_cmp_ne_u32", v(vNC), sleep=4)
I("s_branch", "L_fwok")

a.label("L_cv7")
a.vm = []
I("s_cmp_eq_u32", s(sXRF), "1"); I("s_cbranch_scc1", "L_havexr")
conv_fetch()
a.wait_vm(tag="xr")
a.label("L_havexr")
conv_xwrite()
I("s_lshl_b32", s(sT0), s(sPAIR), "3"); I("s_add_u32", s(sT0), s(sT0), str(M_CV)); I("v_mov_b32", "v7", s(sT0))
I("v_mov_b32", "v6", "1"); I("ds_write_b32", "v7", "v6")
I("s_mov_b32", s(sT5), "0")
I("s_branch", "L_cvgo")
a.label("L_cv6")
I("s_lshl_b32", s(sT0), s(sPAIR), "3"); I("s_add_u32", s(sT0), s(sT0), str(M_CV)); I("v_mov_b32", "v7", s(sT0))
lds_wait(6, 7, 0, "v_cmp_eq_u32", "0", sleep=1)
I("s_movk_i32", s(sT5), "256")
I("s_branch", "L_cvgo")
a.label("L_conv")
a.vm = []
I("s_setprio", str(knob("p1", 1)))
conv_fetch()
conv_hcopies()
a.wait_vm(tag="xr")
conv_xwrite()
I("s_mov_b32", s(sCNT), "4"); I("s_mov_b32", s(sT5), "0")
a.label("L_cvgo")
I("s_add_u32", s(sT5), s(sT5), s(sCVB))
YA = 16
vAA, vBA = 8, 9
I("v_lshl_add_u32", "v12", v(vKG), "3", v(vN)); I("v_add_u32", "v12", "1", "v12")
I("v_and_b32", "v11", "3", "v12"); I("v_sub_u32", "v12", "v12", "v11"); I("v_lshlrev_b32", "v12", "1", "v12")
I("v_mul_u32_u24", "v11", str(HCP), "v11"); I("v_add3_u32", v(vAA), "v12", "v11", s(sT5))
I("v_lshlrev_b32", "v12", "5", v(vN)); I("v_lshlrev_b32", "v11", "4", v(vKG)); I("v_sub_u32", "v12", "v11", "v12")
I("v_add_u32", "v12", str(XR + 480), "v12"); I("v_add_u32", v(vBA), s(sT5), "v12")
a.wait_lgkm(0)
for i in range(32): I("v_mov_b32", v(YA + i), "0")
stamp(3)
FA = [64, 128]; FB = [96, 160]
def cv_reads(st, extra):
    r = []
    for x in range(8):
        r.append(("ds_read_b64", v(FA[st] + 4 * x, 2), v(vAA), f"offset:{512*x + extra}"))
        r.append(("ds_read_b64", v(FA[st] + 4 * x + 2, 2), v(vAA), f"offset:{512*x + extra + 8}"))
        r.append(("ds_read_b128", v(FB[st] + 4 * x, 4), v(vBA), f"offset:{3584 - 512*x + extra}"))
    return r
def cv_mfmas(st):
    m = []
    for pa in range(8):
        for qa in range(8 - pa):
            d = v(YA + 4 * (pa + qa), 4)
            m.append(("v_mfma_f32_16x16x32_bf16", d, v(FA[st] + 4 * pa, 4), v(FB[st] + 4 * qa, 4), d))
    return m
for x in cv_reads(0, 0): I(*x)
a.wait_lgkm(0)
a.label("L_cv")
interleave(cv_reads(1, 64), cv_mfmas(0))
a.wait_lgkm(0)
interleave(cv_reads(0, 128), cv_mfmas(1))
I("v_add_u32", v(vAA), "128", v(vAA)); I("v_add_u32", v(vBA), "128", v(vBA))
I("s_sub_u32", s(sCNT), s(sCNT), "1"); I("s_cmp_lg_u32", s(sCNT), "0")
a.wait_lgkm(0)
I("s_cbranch_scc1", "L_cv")
I("s_setprio", "3")
stamp(4)
I("s_cmp_ge_u32", s(sSLOT), "24"); I("s_cbranch_scc1", "L_cvepi")
I("s_lshl_b32", s(sT0), s(sPAIR), "13"); I("s_add_u32", s(sT0), s(sT0), "86016"); I("v_add_u32", "v10", s(sT0), v(vL16))
I("s_and_b32", s(sT0), s(sWAVE), "1"); I("s_cmp_eq_u32", s(sT0), "1"); I("s_cbranch_scc1", "L_cvadd")
I("v_and_b32", "v11", "3", v(vLANE)); I("v_lshlrev_b32", "v11", "2", "v11"); I("v_add_u32", "v11", str(M_X), "v11")
lds_wait(6, 11, 0, "v_cmp_gt_u32", "2", sleep=0)
for a_ in range(8): I("ds_write_b128", "v10", v(YA + 4 * a_, 4), f"offset:{1024*a_}")
I("v_mov_b32", "v6", "1"); I("ds_write_b32", "v7", "v6", "offset:4")
I("s_branch", "L_preepi")
a.label("L_cvadd")
lds_wait(6, 7, 4, "v_cmp_eq_u32", "0", sleep=0)
for a_ in range(8): I("ds_read_b128", v(64 + 4 * a_, 4), "v10", f"offset:{1024*a_}")
a.wait_lgkm(0)
for i in range(32): I("v_add_f32", v(YA + i), v(YA + i), v(64 + i))
a.label("L_cvepi")
I("v_lshlrev_b32", "v10", "5", v(vN)); I("v_lshl_add_u32", "v10", v(vKG), "3", "v10")
I("v_sub_u32", "v11", str(XR + 4088 - 3584), "v10"); I("v_add_u32", "v11", s(sCVB), "v11")
I("v_add_u32", "v10", s(sCVB), "v10")
for a_ in range(8): I("ds_read_b64", v(64 + 2 * a_, 2), "v11", f"offset:{3584 - 512*a_}")
I("v_lshlrev_b32", "v12", "16", "v15"); I("v_mov_b32", "v13", "v12")
a.wait_lgkm(0)
for a_ in range(8):
    e = 64 + 2 * a_; y = YA + 4 * a_
    K0, K1 = 96, 98
    I("v_and_b32", v(K0), "0xffff0000", v(e + 1)); I("v_lshlrev_b32", v(K0 + 1), "16", v(e + 1))
    I("v_and_b32", v(K1), "0xffff0000", v(e)); I("v_lshlrev_b32", v(K1 + 1), "16", v(e))
    I("v_pk_fma_f32", v(y, 2), v(K0, 2), "v[12:13]", v(y, 2)); I("v_pk_fma_f32", v(y + 2, 2), v(K1, 2), "v[12:13]", v(y + 2, 2))
    I("v_cvt_pk_bf16_f32", v(e), v(y), v(y + 1)); I("v_cvt_pk_bf16_f32", v(e + 1), v(y + 2), v(y + 3))
    I("ds_write_b64", "v10", v(e, 2), f"offset:{512*a_}")
a.wait_lgkm(0)
I("v_add_u32", "v10", s(sCVB), v(vL16))
for blk in range(4): I("ds_read_b128", v(96 + 4 * blk, 4), "v10", f"offset:{1024*blk}")
I("s_lshl_b32", s(sT0), s(sCH), "12"); I("s_add_u32", s(sT0), s(sT0), hex(WS_YT))
a.wait_lgkm(0)
I("s_lshl_b32", s(sT1), s(sWAVE), "2"); I("s_add_u32", s(sT1), s(sT1), str(M_CD)); I("v_mov_b32", "v6", s(sT1)); I("v_mov_b32", "v7", "1")
I("ds_write_b32", "v6", "v7")
for blk in range(4):
    I("buffer_store_dwordx4", v(96 + 4 * blk, 4), v(vL16), s(SWS, 4), s(sT0), "offen", f"offset:{1024*blk}", "sc1", tag="yst")
I("s_mul_i32", s(sT0), s(sCH), "52429"); I("s_lshr_b32", s(sT0), s(sT0), "22")
I("s_mul_i32", s(sT1), s(sT0), "80"); I("s_sub_u32", s(sT1), s(sCH), s(sT1))
I("s_lshl_b32", s(sT0), s(sT0), "9"); I("s_lshl_b32", s(sT1), s(sT1), "2"); I("s_add_u32", s(sT0), s(sT0), s(sT1))
I("s_add_u32", s(sT0), s(sT0), hex(FY))
a.wait_vm(n=0)
flag_store(6, sT0, vNC)
stamp(12)
a.label("L_preepi")
a.vm = []
stamp(6)
I("v_lshlrev_b32", "v8", "2", v(vLANE)); I("v_add_u32", "v8", str(M_G), "v8"); I("v_mov_b32", "v9", str(M_YS))
I("s_cmp_lg_u32", s(sWAVE), "4"); I("s_cbranch_scc1", "L_yswait")
lds_wait(7, 14, 0, "v_cmp_eq_u32", "0", sleep=4)
lds_wait(7, 9, M_G2L - M_YS, "v_cmp_ne_u32", v(vNC), sleep=4)
I("v_min_u32", "v6", "39", v(vLANE)); I("v_lshlrev_b32", "v6", "3", "v6")
I("s_lshl_b32", s(sT1), s(sC2), "9"); I("s_add_u32", s(sT1), s(sT1), hex(FY))
I("v_lshlrev_b32", "v7", "3", v(vLANE))
I("s_lshl_b32", s(sT0), s(sR2), "9"); I("s_add_u32", s(sT0), s(sT0), hex(WS_G))
I("s_mov_b32", s(sPOLL), "1" if NOPOLL else "0x40000")
a.label("L_yp")
I("buffer_load_dwordx2", "v[18:19]", "v6", s(SWS, 4), s(sT1), "offen", "sc1")
I("buffer_load_dwordx2", "v[16:17]", "v7", s(SWS, 4), s(sT0), "offen", "sc1")
a.wait_vm(n=0)
I("v_xor_b32", "v18", "v18", v(vNC)); I("v_xor_b32", "v19", "v19", v(vNC)); I("v_xor_b32", "v17", "v17", v(vNC))
I("v_or3_b32", "v18", "v18", "v19", "v17")
I("v_cmp_ne_u32", "vcc", "0", "v18"); a.nop(1)
I("s_cbranch_vccz", "L_ypd")
I("s_sleep", str(YSL)); I("s_sub_u32", s(sPOLL), s(sPOLL), "1"); I("s_cmp_lg_u32", s(sPOLL), "0"); I("s_cbranch_scc1", "L_yp")
a.label("L_ypd")
I("ds_write_b32", "v8", "v16"); I("ds_write_b32", "v9", v(vNC))
a.label("L_yswait")
lds_wait(7, 9, 0, "v_cmp_ne_u32", v(vNC), sleep=4)
I("ds_read_b32", "v16", "v8")
I("s_lshl_b32", s(sT0), s(sC2), "2"); I("s_add_u32", s(sT0), s(sT0), s(sCW))
stamp(9)
I("s_mul_i32", s(sT0), s(sT0), str(20 * 4096)); I("s_lshl_b32", s(sT1), s(sR2), "7"); I("s_add_u32", s(sT0), s(sT0), s(sT1))
I("s_add_u32", s(sT0), s(sT0), hex(WS_YT))
I("v_lshlrev_b32", "v6", "12", v(vKG)); I("v_lshl_add_u32", "v6", v(vN), "3", "v6")
for i in range(5):
    I("buffer_load_dwordx2", v(64 + 2 * i, 2), "v6", s(SWS, 4), s(sT0), "offen", "sc1", tag="yl")
    if i < 4: I("s_add_u32", s(sT0), s(sT0), str(4 * 4096))
I("v_lshlrev_b32", "v6", "7", v(vKG)); I("v_lshl_add_u32", "v6", v(vN), "3", "v6"); I("v_add_u32", "v6", s(sPRV), "v6")
I("v_bfe_u32", "v7", v(vLANE), "2", "2"); I("v_lshlrev_b32", "v7", "7", "v7")
I("v_lshl_add_u32", "v7", v(vKG), "5", "v7"); I("v_and_b32", "v8", "3", v(vLANE)); I("v_lshl_add_u32", "v7", "v8", "3", "v7")
I("v_add_u32", "v7", s(sPRV), "v7")
I("v_mul_u32_u24", "v8", "40", v(vLANE)); I("v_add_u32", "v8", s(sPRV), "v8")
a.wait_vm(tag="yl", lgkm=0)
I("v_mov_b32", "v17", "v16")
for i in range(5): I("ds_write_b64", "v6", v(64 + 2 * i, 2), f"offset:{512*i}")
a.wait_lgkm(0)
for i in range(5): I("ds_read_b64_tr_b16", v(64 + 2 * i, 2), "v7", f"offset:{512*i}")
a.wait_lgkm(0)
for i in range(5):
    for h in range(2):
        Y = 96 + 2 * h
        unpack(Y, 64 + 2 * i + h)
        I("v_pk_mul_f32", v(Y, 2), v(Y, 2), "v[16:17]")
        I("v_cvt_pk_bf16_f32", v(80 + 2 * i + h), v(Y), v(Y + 1))
    I("ds_write_b64", "v8", v(80 + 2 * i, 2), f"offset:{GYO + 8*i}")
stamp(7)

a.label("L_final")
a.vm = []
srd(SO, pOUT, 2621440)
srd(SQ, pQ, 2621440)
I("s_mul_i32", s(sT0), s(sC2), "160"); I("s_add_u32", s(sT2), s(pB2), s(sT0)); I("s_addc_u32", s(sT3), s(pB2 + 1), "0")
I("s_lshl_b32", s(sT1), s(sR2), "6"); I("s_mul_i32", s(sT1), s(sT1), "1280"); I("s_add_u32", s(sT4), s(sT1), s(sT0))
def gy_addr(dst, quad, row, t0, t1):
    I("v_mul_u32_u24", v(t0), "13108", v(quad)); I("v_lshrrev_b32", v(t0), "16", v(t0))
    I("v_mul_u32_u24", v(t1), "5", v(t0)); I("v_sub_u32", v(t1), v(quad), v(t1))
    I("v_mul_u32_u24", v(dst), "40", v(row)); I("v_lshl_add_u32", v(dst), v(t1), "3", v(dst))
    I("v_mov_b32", v(t1), str(PRIV[0] + GYO))
    for b in range(1, 4):
        I("v_cmp_eq_u32", "vcc", str(b), v(t0)); I("v_mov_b32", v(t0 + 3), str(PRIV[b] + GYO))
        I("v_cndmask_b32", v(t1), v(t1), v(t0 + 3), "vcc")
    I("v_add_u32", v(dst), v(dst), v(t1))
def fin_setup(idreg, b):
    T = 124
    I("v_mul_u32_u24", v(b), "6554", v(idreg)); I("v_lshrrev_b32", v(b), "16", v(b))
    I("v_mul_u32_u24", v(b + 1), "10", v(b)); I("v_sub_u32", v(b + 1), v(idreg), v(b + 1))
    I("v_lshlrev_b32", v(b + 5), "4", v(b + 1))
    I("global_load_dwordx4", v(b + 8, 4), v(b + 5), s(sT2, 2), tag="b2")
    I("v_mul_u32_u24", v(b + 6), "1280", v(b)); I("v_add_u32", v(b + 5), v(b + 5), v(b + 6))
    I("buffer_load_dwordx4", v(b + 12, 4), v(b + 5), s(SQ, 4), s(sT4), "offen", tag="b2")
    I("v_mul_u32_u24", v(b + 2), str(REDP), v(b)); I("v_lshl_add_u32", v(b + 2), v(b + 1), "5", v(b + 2))
    I("v_lshlrev_b32", v(T + 2), "1", v(b + 1)); gy_addr(b + 3, T + 2, b, T, T + 1)
    I("v_add_u32", v(T + 2), "1", v(T + 2)); gy_addr(b + 7, T + 2, b, T, T + 1)
    I("v_lshlrev_b32", v(b + 4), "2", v(b)); I("v_add_u32", v(b + 4), str(M_G), v(b + 4))
def fin_item(b):
    P = 160
    for w in range(4):
        I("ds_read_b128", v(P + 8 * w, 4), v(b + 2), f"offset:{RED + w*REDW}")
        I("ds_read_b128", v(P + 8 * w + 4, 4), v(b + 2), f"offset:{RED + w*REDW + 16}")
    I("ds_read_b64", v(P + 32, 2), v(b + 3)); I("ds_read_b64", v(P + 34, 2), v(b + 7))
    I("ds_read_b32", v(P + 36), v(b + 4))
    a.wait_vm(tag="b2", lgkm=0)
    G1, Qq, B, GA = P + 38, P + 40, P + 42, P + 44
    I("v_sub_f32", v(G1), "1.0", v(P + 36)); I("v_mov_b32", v(G1 + 1), v(G1))
    for j in range(4):
        x = P + 2 * j
        unpack(B, b + 8 + j); unpack(GA, P + 32 + j); unpack(Qq, b + 12 + j)
        a.I("v_pk_add_f32", v(x, 2), v(x, 2), v(x + 8, 2)); a.I("v_pk_add_f32", v(x + 16, 2), v(x + 16, 2), v(x + 24, 2))
        a.I("v_pk_add_f32", v(x, 2), v(x, 2), v(B, 2))
        a.I("v_pk_mul_f32", v(GA, 2), v(GA, 2), v(Qq, 2))
        a.I("v_pk_add_f32", v(x, 2), v(x, 2), v(x + 16, 2))
        a.I("v_pk_fma_f32", v(x, 2), v(x, 2), v(G1, 2), v(GA, 2))
        I("v_cvt_pk_bf16_f32", v(P + 48 + j), v(x), v(x + 1))
    I("buffer_store_dwordx4", v(P + 48, 4), v(b + 5), s(SO, 4), s(sT4), "offen", tag="out")
fin_setup(0, 96)
I("v_add_u32", "v120", "256", "v0"); I("v_min_u32", "v120", "639", "v120")
fin_setup(120, 128)
a.wait_lgkm(0)
a.barrier()
stamp(10)
fin_item(96)
I("s_lshr_b32", s(sT0), s(sWAVE), "1"); I("s_cmp_lg_u32", s(sT0), "2"); I("s_cbranch_scc1", "L_fin_done")
a.nop(2)
fin_item(128)
a.label("L_fin_done")
stamp(8)
stamp_flush()
a.label("L_end")
I("s_endpgm")
a.raw(f""".section .rodata,"a"
.p2align 6
.amdhsa_kernel {KNAME}
  .amdhsa_next_free_vgpr 256
  .amdhsa_next_free_sgpr 102
  .amdhsa_accum_offset 256
  .amdhsa_group_segment_fixed_size 0
  .amdhsa_kernarg_size 120
  .amdhsa_user_sgpr_count 2
  .amdhsa_user_sgpr_kernarg_segment_ptr 1
  .amdhsa_system_sgpr_workgroup_id_x 1
  .amdhsa_float_denorm_mode_32 3
.end_amdhsa_kernel
""")
out = [x for x in sys.argv[1:] if not x.startswith("--")]
import subprocess, re
txt = a.text()
open("_t.s", "w").write(txt.replace("CODE_KB", "100"))
subprocess.run(["clang", "-x", "assembler", "-target", "amdgcn-amd-amdhsa", "-mcpu=gfx950", "-c", "_t.s", "-o", "_t.o"], check=True)
sec = subprocess.run(["llvm-readelf", "-S", "_t.o"], capture_output=True, text=True).stdout
size = int(re.search(r"\.text\s+PROGBITS\s+\S+\s+\S+\s+(\S+)", sec).group(1), 16)
print("code bytes", size)
open(out[0] if out else "k.s", "w").write(txt.replace("CODE_KB", str((size >> 10) - 1)))
```

```python
import sys, struct
import re as _re
from asmlib import Asm, v, s

KNAME = "gated_mix__ssm_conv_h3__dense_activation_gelu__prompt_kernel"
STAMP = "--stamp" in sys.argv
def knob(name, default):
    for x in sys.argv:
        if x.startswith(f"--{name}="): return int(x.split("=")[1])
    return default
NOPOLL = knob("nopoll", 0)
PFDEPTH = knob("pfd", 20)
LD = knob("ld", 3)
WPRE = knob("wpre", 4)
PSL = knob("psl", 6)
YSL = knob("ysl", 4)
YGO = knob("ygo", 6)
PFGATE = knob("pfgate", 0)

FK, FW, FH, FY = 0x0000, 0x2000, 0x3000, 0x5000
WS_G = 0x10000
WS_KVT = 0x100000
WS_W2F = 0x400000
WS_YT = 0x600000
WS_HF = 0x900000
WS_DBG = 0xF00000
WS_SIZE = 0x1000000
WOFF = 16384
SLOT = 16384 + 16384 + 256
NSLOT = 4
HCP = 4160
XR = 4 * HCP
CVSZ = 21248
MISC = 157184
M_NONCE, M_FWOK, M_CV, M_PS, M_PF, M_X, M_CD, M_G = MISC, MISC + 8, MISC + 16, MISC + 20, MISC + 32, MISC + 64, MISC + 96, MISC + 256
M_FHS = MISC + 12
M_HC = MISC + 4
M_YS = MISC + 36
M_G2L = MISC + 40
LG0 = 8
PRIV = [104448, 157696, 114688, 114688 + CVSZ]
CVH = [0, 43008]
GYO = 2560
RED = 0
REDW = 21504
REDP = 336
XCH = 2 * SLOT
KSUB = 17 * 1040
LDS_BYTES = 163840
NPF = 4
NREG = 4

sWAVE, sXCD, sSLOT, sRB, sC, sR2, sC2 = 3, 4, 5, 6, 7, 8, 9
sT0, sT1, sT2, sT3, sT4, sT5 = 10, 11, 12, 13, 14, 15
pQ, pK, pV, pSK, pH, pD, pBX, pW1, pB1, pW2, pB2, pGW, pOUT, pDBG, pWS = [16 + 2 * i for i in range(15)]
SQ, SW1, SWS, SA, SB, SH, SO = 48, 52, 56, 60, 64, 68, 72
sWBASE = 76
sCW = 77
sSOFFX, sSOFFW, sLSLOT, sCNT = 78, 79, 80, 81
sM0X, sM0W = 82, 83
sCH, sCVB = 84, 85
sEX = 86
sTM = 88
sU0, sU1 = 90, 91
sPOLL = 92
sFLAG = 93
sPC = 94
sSTG = 96
sHID = 97
sPRV = 98
sPAIR = 99

a = Asm()
def I(op, *args, **kw):
    if op.startswith("v_pk_") and op.endswith("_f32"):
        base = [int(_re.match(r"v\[(\d+):", x).group(1)) for x in args]
        sop = {"v_pk_mul_f32": "v_mul_f32", "v_pk_add_f32": "v_add_f32", "v_pk_fma_f32": "v_fma_f32"}[op]
        for h in range(2): a.I(sop, *[f"v{b+h}" for b in base])
        return
    a.I(op, *args, **kw)

def f32bits(x): return struct.unpack("<I", struct.pack("<f", x))[0]

def srd(d, p, nbytes):
    I("s_mov_b32", s(d), s(p)); I("s_mov_b32", s(d + 1), s(p + 1))
    I("s_mov_b32", s(d + 2), hex(nbytes)); I("s_mov_b32", s(d + 3), "0x20000")

DBG = "--dbg" in sys.argv
def dstamp(idx, inv=False, reg=None):
    if not DBG: return
    if reg is None:
        I("s_memrealtime", s(sTM, 2)); a.wait_lgkm(0); reg = sTM
    I("v_mov_b32", "v253", s(reg))
    if inv: I("v_not_b32", "v253", "v253")
    I("v_mov_b32", "v252", str(4 * idx))
    I("s_mov_b64", "exec", "1")
    a.lines.append("  global_atomic_umax v252, v253, s[42:43]")
    I("s_mov_b64", "exec", "-1")
vSTAMP = 255
def stamp(idx, real=False):
    if not STAMP: return
    I("s_memrealtime" if real else "s_memtime", s(sTM, 2)); a.wait_lgkm(0)
    I("v_writelane_b32", v(vSTAMP), s(sTM), str(idx))
def stamp_flush():
    if not STAMP: return
    stamp(62, real=True)
    I("s_lshl_b32", s(sT5), s(2), "3"); I("s_add_u32", s(sT5), s(sT5), s(sWAVE)); I("s_lshl_b32", s(sT5), s(sT5), "8")
    I("s_add_u32", s(sT5), s(sT5), hex(WS_DBG))
    I("v_lshlrev_b32", "v254", "2", v(1))
    I("buffer_store_dword", v(vSTAMP), "v254", s(SWS, 4), s(sT5), "offen", tag="stamp")

_lbl = [0]
def newlbl(p):
    _lbl[0] += 1; return f"L_{p}_{_lbl[0]}"

def poll(vtmp, voff, soff_reg, vnonce, wide=False, sleep=4):
    top = newlbl("poll"); done = newlbl("pdone")
    I("s_mov_b32", s(sPOLL), "1" if NOPOLL else "0x40000")
    a.label(top)
    if wide: I("buffer_load_dwordx2", v(vtmp, 2), v(voff), s(SWS, 4), s(soff_reg), "offen", "sc1")
    else: I("buffer_load_dword", v(vtmp), v(voff), s(SWS, 4), s(soff_reg), "offen", "sc1")
    a.wait_vm(n=0)
    I("v_cmp_ne_u32", "vcc", v(vtmp + (1 if wide else 0)), v(vnonce))
    a.nop(1)
    I("s_cbranch_vccz", done)
    I("s_sleep", str(sleep))
    I("s_sub_u32", s(sPOLL), s(sPOLL), "1")
    I("s_cmp_lg_u32", s(sPOLL), "0")
    I("s_cbranch_scc1", top)
    a.label(done)

def lds_wait(vtmp, vaddr, off, cmp_op, ref, sleep=1):
    top = newlbl("lw"); done = newlbl("lwd")
    I("s_mov_b32", s(sPOLL), "0x100000")
    a.label(top)
    I("ds_read_b32", v(vtmp), v(vaddr), f"offset:{off}"); a.wait_lgkm(0)
    I(cmp_op, "vcc", ref, v(vtmp)); a.nop(1)
    I("s_cbranch_vccz", done)
    if sleep: I("s_sleep", str(sleep))
    I("s_sub_u32", s(sPOLL), s(sPOLL), "1"); I("s_cmp_lg_u32", s(sPOLL), "0"); I("s_cbranch_scc1", top)
    a.label(done)

def flag_store(voff, soff_reg, vnonce, nlanes=1, zero=True):
    if zero: I("v_mov_b32", v(voff), "0")
    I("s_mov_b64", "exec", str((1 << nlanes) - 1))
    I("buffer_store_dword", v(vnonce), v(voff), s(SWS, 4), s(soff_reg), "offen", "sc1", tag="flag")
    I("s_mov_b64", "exec", "-1")

def h_publish():
    skip = newlbl("hp")
    I("v_mov_b32", "v6", str(M_HC)); I("v_mov_b32", "v8", "1")
    I("s_mov_b64", "exec", "1")
    I("ds_add_rtn_u32", "v8", "v6", "v8"); a.wait_lgkm(0)
    I("v_readfirstlane_b32", s(sT0), "v8")
    I("s_mov_b64", "exec", "-1")
    I("s_cmp_lg_u32", s(sT0), "7"); I("s_cbranch_scc1", skip)
    flag_store(6, sFLAG, vNC)
    a.label(skip)

def unpack(dlo, src):
    I("v_lshlrev_b32", v(dlo), "16", v(src)); I("v_and_b32", v(dlo + 1), "0xffff0000", v(src))

def interleave(r, m):
    n = max(len(r), len(m))
    for i in range(n):
        if i < len(r): I(*r[i])
        if i < len(m): I(*m[i])

LOG2E = 1.4426950408889634
C0 = -2.0 * LOG2E * 0.7978845608028654
C1 = C0 * 0.044715
vLANE, vN, vKG, vL16, vNC = 1, 2, 3, 4, 5
vHC, vHN = 128, 192

def nonce_get():
    top = newlbl("nct"); done = newlbl("ncd")
    I("s_mov_b32", s(sPOLL), "0x40000"); I("v_mov_b32", "v6", "0")
    a.label(top)
    I("global_load_dword", v(vNC), "v6", s(pDBG, 2), "sc1")
    a.wait_vm(n=0)
    I("v_cmp_eq_u32", "vcc", "0", v(vNC)); a.nop(1)
    I("s_cbranch_vccz", done)
    I("s_sleep", "2"); I("s_sub_u32", s(sPOLL), s(sPOLL), "1"); I("s_cmp_lg_u32", s(sPOLL), "0"); I("s_cbranch_scc1", top)
    a.label(done)

def h_loads():
    srd(SH, pH, 640 * 4096)
    I("s_lshl_b32", s(sT0), s(sCH), "12")
    for blk in range(4):
        I("buffer_load_dwordx4", v(vHC + blk * 4, 4), v(vL16), s(SH, 4), s(sT0), "offen", f"offset:{1024*blk}", tag="h")
        I("buffer_load_dwordx2", v(vHN + blk * 2, 2), v(vL16), s(SH, 4), s(sT0), "offen", f"offset:{1024*blk+16}", tag="h")
    I("s_lshl_b32", s(sT0), s(sCH), "1"); I("v_mov_b32", "v6", s(sT0))
    I("global_load_ushort", "v15", "v6", s(pD, 2), tag="h")

def gelu_store(src, rt, mid=None):
    c0, c1, T, O = 16, 17, 24, 40
    I("v_mov_b32", v(c0), hex(f32bits(C0))); I("v_mov_b32", v(c1), hex(f32bits(C1)))
    I("s_lshl_b32", s(sT0), s(sRB), "1"); I("s_lshr_b32", s(sT1), s(sCW), "1"); I("s_add_u32", s(sT0), s(sT0), s(sT1))
    I("s_and_b32", s(sT1), s(sCW), "1"); I("s_lshl_b32", s(sT1), s(sT1), "1"); I("s_add_u32", s(sT1), s(sT1), str(rt))
    I("s_mul_i32", s(sT2), s(sT0), "48"); I("s_lshl_b32", s(sT3), s(sC), "2"); I("s_add_u32", s(sT2), s(sT2), s(sT3))
    I("s_lshl_b32", s(sT2), s(sT2), "2"); I("s_add_u32", s(sT2), s(sT2), s(sT1)); I("s_lshl_b32", s(sT2), s(sT2), "10")
    I("s_add_u32", s(sT2), s(sT2), hex(WS_HF))
    I("s_lshl_b32", s(sT0), s(sRB), "8"); I("s_add_u32", s(sT0), s(sT0), s(sT3)); I("s_add_u32", s(sFLAG), s(sT0), hex(FH))
    for up in range(4):
        X = [src + 8 * up + k for k in range(8)]
        for k in range(8): I("v_mul_f32", v(T + k), v(X[k]), v(X[k]))
        for k in range(8): I("v_fma_f32", v(T + k), v(T + k), v(c1), v(c0))
        for k in range(8): I("v_mul_f32", v(T + k), v(T + k), v(X[k]))
        for k in range(8): I("v_exp_f32", v(T + k), v(T + k))
        for k in range(8): I("v_add_f32", v(T + k), "1.0", v(T + k))
        for k in range(8): I("v_rcp_f32", v(T + k), v(T + k))
        for k in range(8): I("v_mul_f32", v(T + k), v(T + k), v(X[k]))
        for k in range(4): I("v_cvt_pk_bf16_f32", v(O + 4 * up + k), v(T + 2 * k), v(T + 2 * k + 1))
        I("buffer_store_dwordx4", v(O + 4 * up, 4), v(vL16), s(SWS, 4), s(sT2), "offen", "sc1", tag="hst")
        if up < 3: I("s_add_u32", s(sT2), s(sT2), "4096")
        if up == 1 and mid: mid()


XRL = 96
def conv_fetch():
    I("v_and_b32", "v6", "31", v(vLANE)); I("v_lshlrev_b32", "v6", "2", "v6")
    I("s_lshr_b32", s(sT0), s(sCH), "4"); I("s_lshl_b32", s(sT0), s(sT0), "7"); I("s_add_u32", s(sT0), s(sT0), hex(FK))
    poll(7, 6, sT0, vNC)
    stamp(2)
    I("s_lshl_b32", s(sT0), s(sCH), "12"); I("s_add_u32", s(sT0), s(sT0), hex(WS_KVT))
    for blk in range(4):
        I("buffer_load_dwordx4", v(XRL + 4 * blk, 4), v(vL16), s(SWS, 4), s(sT0), "offen", f"offset:{1024*blk}", "sc1", tag="xr")
def conv_hcopies():
    I("v_add_u32", "v10", s(sCVB), v(vL16))
    for blk in range(4):
        d = [vHC + blk * 4 + k for k in range(4)] + [vHN + 2 * blk, vHN + 2 * blk + 1]
        for k in range(4):
            I("v_alignbit_b32", v(vHC + (4 + blk) * 4 + k), v(d[k + 1]), v(d[k]), "16")
            I("v_mov_b32", v(vHC + (8 + blk) * 4 + k), v(d[k + 1]))
            I("v_alignbit_b32", v(vHC + (12 + blk) * 4 + k), v(d[k + 2]), v(d[k + 1]), "16")
        for c in range(4):
            I("ds_write_b128", "v10", v(vHC + (c * 4 + blk) * 4, 4), f"offset:{c*HCP + 32 + 1024*blk}")
    for i in range(4): I("v_mov_b32", v(20 + i), "0")
    I("s_mov_b64", "exec", "0x3fffffff")
    I("ds_write_b128", "v10", v(20, 4), f"offset:{XR + 4096}")
    I("s_mov_b64", "exec", "3")
    for c in range(4): I("ds_write_b128", "v10", v(20, 4), f"offset:{c*HCP}")
    I("s_mov_b64", "exec", "1")
    I("v_lshlrev_b32", "v24", "16", v(vHC))
    I("ds_write_b32", "v10", "v24", f"offset:{1*HCP + 28}")
    I("ds_write_b32", "v10", v(vHC), f"offset:{2*HCP + 28}")
    I("ds_write_b32", "v10", "v24", f"offset:{3*HCP + 24}")
    I("ds_write_b32", "v10", v(vHC + 16), f"offset:{3*HCP + 28}")
    I("s_mov_b64", "exec", "-1")
def conv_xwrite():
    I("v_add_u32", "v10", s(sCVB), v(vL16))
    for blk in range(4): I("ds_write_b128", "v10", v(XRL + 4 * blk, 4), f"offset:{XR + 1024*blk}")

AC2 = 16
vL16b = 9
pool = [144 + 4 * i for i in range(27)] + [96 + 4 * i for i in range(12)]
Wf, Hf = {}, {}
def take(n):
    r = pool[:n]; del pool[:n]; return r
def w_loads(g):
    if g not in Wf: Wf[g] = take(5)
    I("s_add_u32", s(sT1), s(sU1), str(g * 4 * 5120))
    for ct in range(5):
        if ct < 4: I("buffer_load_dwordx4", v(Wf[g][ct], 4), v(vL16), s(SWS, 4), s(sT1), "offen", f"offset:{ct*1024}", "sc1", tag=f"w{g}")
        else: I("buffer_load_dwordx4", v(Wf[g][ct], 4), v(vL16b), s(SWS, 4), s(sT1), "offen", "sc1", tag=f"w{g}")
def w_lds(g):
    Wf[g] = take(5)
    for ct in range(5): I("ds_read_b128", v(Wf[g][ct], 4), "v7", f"offset:{RED + (g - LG0)*5120 + ct*1024}")
def h_loads2(g):
    Hf[g] = take(4)
    I("s_add_u32", s(sT2), s(sU0), str(g * 4 * 4096))
    for rt in range(4):
        I("buffer_load_dwordx4", v(Hf[g][rt], 4), v(vL16), s(SWS, 4), s(sT2), "offen", f"offset:{rt*1024}", "sc1", tag=f"h{g}")
def g2_setup():
    I("s_mul_i32", s(sU0), s(sR2), "48"); I("s_add_u32", s(sU0), s(sU0), s(sCW)); I("s_lshl_b32", s(sU0), s(sU0), "12")
    I("s_add_u32", s(sU0), s(sU0), hex(WS_HF))
    I("s_mul_i32", s(sU1), s(sC2), "48"); I("s_add_u32", s(sU1), s(sU1), s(sCW)); I("s_mul_i32", s(sU1), s(sU1), "5120")
    I("s_add_u32", s(sU1), s(sU1), hex(WS_W2F))
    I("v_add_u32", v(vL16b), "4096", v(vL16))
    for g in range(WPRE): w_loads(g)

hdr = open("cdna_kernels/" + KNAME[:-7] + ".s.ref").read().split("; Override")[0]
a.raw(hdr.rstrip())
a.raw(f"; @launch grid=(256,1,1) block=(512,1,1) lds={LDS_BYTES}")
a.raw('.amdgcn_target "amdgcn-amd-amdhsa--gfx950"\n.text')
a.raw(f".globl {KNAME}\n.p2align 8\n.type {KNAME},@function\n{KNAME}:")
I("s_cmp_ge_u32", "s2", "256"); I("s_cbranch_scc1", "L_end")
if DBG: I("s_memrealtime", "s[100:101]")
I("s_load_dwordx16", s(16, 16), "s[0:1]", "0")
I("s_load_dwordx8", s(32, 8), "s[0:1]", "64")
I("s_load_dwordx4", s(40, 4), "s[0:1]", "96")
I("s_load_dwordx2", s(44, 2), "s[0:1]", "112")
I("s_getpc_b64", s(sPC, 2))
I("v_and_b32", v(vLANE), "63", "v0")
I("v_lshrrev_b32", "v2", "6", "v0")
I("v_readfirstlane_b32", s(sWAVE), "v2")
I("s_and_b32", s(sXCD), "s2", "7"); I("s_lshr_b32", s(sSLOT), "s2", "3")
I("s_lshr_b32", s(sT0), s(sXCD), "1"); I("s_and_b32", s(sT1), s(sXCD), "1")
I("s_lshl_b32", s(sR2), s(sT0), "3"); I("s_lshr_b32", s(sT2), s(sSLOT), "2"); I("s_add_u32", s(sR2), s(sR2), s(sT2))
I("s_lshl_b32", s(sC2), s(sT1), "2"); I("s_and_b32", s(sT2), s(sSLOT), "3"); I("s_add_u32", s(sC2), s(sC2), s(sT2))
I("s_mul_i32", s(sT2), s(sSLOT), "43"); I("s_lshr_b32", s(sT2), s(sT2), "8"); I("s_mul_i32", s(sT3), s(sT2), "6"); I("s_sub_u32", s(sT3), s(sSLOT), s(sT3))
I("s_lshl_b32", s(sRB), s(sT0), "2"); I("s_add_u32", s(sRB), s(sRB), s(sT2))
I("s_mul_i32", s(sC), s(sT1), "6"); I("s_add_u32", s(sC), s(sC), s(sT3))
I("s_and_b32", s(sCW), s(sWAVE), "3")
I("v_and_b32", v(vN), "15", v(vLANE)); I("v_lshrrev_b32", v(vKG), "4", v(vLANE))
I("v_lshlrev_b32", v(vL16), "4", v(vLANE))
if STAMP: I("v_mov_b32", v(vSTAMP), "0")
I("s_cmp_ge_u32", s(sSLOT), "24"); I("s_cbranch_scc1", "L_H")
I("s_cmp_lt_u32", s(sWAVE), "4"); I("s_cbranch_scc1", "L_G")

vDX = 8
vDW = 12
sKST = sU0
I("s_mul_i32", s(sKST), s(sT3), "3"); I("s_mul_i32", s(sT2), s(sT2), "5"); I("s_lshr_b32", s(sT2), s(sT2), "1"); I("s_add_u32", s(sKST), s(sKST), s(sT2))
for _ in range(2):
    I("s_sub_u32", s(sT0), s(sKST), "10"); I("s_cmp_ge_u32", s(sKST), "10"); I("s_cselect_b32", s(sKST), s(sT0), s(sKST))
I("v_lshrrev_b32", "v6", "3", v(vLANE)); I("v_and_b32", "v7", "7", v(vLANE))
I("s_lshl_b32", s(sT0), s(sRB), "7"); I("s_lshl_b32", s(sT1), s(sCW), "5"); I("s_add_u32", s(sT0), s(sT0), s(sT1))
for jj in range(4):
    I("v_add_u32", "v16", str(8 * jj), "v6")
    I("v_bfe_u32", "v17", "v16", "1", "3"); I("v_xor_b32", "v17", "v17", "v7")
    I("v_add_u32", "v16", s(sT0), "v16"); I("v_mul_u32_u24", "v16", "1280", "v16")
    I("v_lshl_add_u32", "v16", "v17", "4", "v16")
    I("v_subrev_u32", v(vDX + jj), str(1024 * jj), "v16")
I("v_bfe_u32", "v16", v(vLANE), "3", "2"); I("v_mul_u32_u24", "v16", "3072", "v16")
I("v_lshrrev_b32", "v17", "5", v(vLANE)); I("v_lshl_add_u32", "v16", "v17", "7", "v16")
I("v_bfe_u32", "v17", v(vLANE), "4", "1"); I("v_lshlrev_b32", "v17", "2", "v17"); I("v_xor_b32", "v17", "v17", "v7")
I("v_lshl_add_u32", v(vDW), "v17", "4", "v16")
I("s_lshl_b32", s(sWBASE), s(sC), "8"); I("s_mul_i32", s(sT0), s(sCW), str(16 * 3072)); I("s_add_u32", s(sWBASE), s(sWBASE), s(sT0))
I("s_mov_b32", s(sSTG), "0"); I("s_mov_b32", s(sLSLOT), "0")
I("s_lshl_b32", s(sM0X), s(sCW), "12"); I("s_mul_i32", s(sM0W), s(sCW), str(4096 + 64)); I("s_add_u32", s(sM0W), s(sM0W), str(WOFF))
a.wait_lgkm(0)
srd(SQ, pQ, 2621440)
srd(SW1, pW1, 640 * 3072)
stamp(63, real=True); stamp(0)
def issue_stage():
    I("s_lshl_b32", s(sSOFFX), s(sKST), "7")
    I("s_mul_i32", s(sSOFFW), s(sKST), str(64 * 3072)); I("s_add_u32", s(sSOFFW), s(sSOFFW), s(sWBASE))
    I("s_add_u32", "m0", s(sLSLOT), s(sM0X)); I("s_add_u32", s(sT3), s(sLSLOT), s(sM0W))
    for jj in range(4):
        I("buffer_load_dwordx4", v(vDX + jj), s(SQ, 4), s(sSOFFX), "offen", f"offset:{1024*jj}", "lds", tag="st")
    for i in range(4):
        I("s_add_u32", "m0", s(sT3), str(1024 * i + 32 * (i >> 1)))
        I("buffer_load_dwordx4", v(vDW), s(SW1, 4), s(sSOFFW), "offen", "lds", tag="st")
        if i < 3: I("s_add_u32", s(sSOFFW), s(sSOFFW), str(4 * 3072))
    I("s_add_u32", s(sKST), s(sKST), "1"); I("s_cmp_eq_u32", s(sKST), "10"); I("s_cselect_b32", s(sKST), "0", s(sKST))
    I("s_add_u32", s(sLSLOT), s(sLSLOT), str(SLOT)); I("s_cmp_eq_u32", s(sLSLOT), str(NSLOT * SLOT)); I("s_cselect_b32", s(sLSLOT), "0", s(sLSLOT))
    I("s_add_u32", s(sSTG), s(sSTG), "1")
issue_stage()
I("s_mul_i32", s(sT0), s(sXCD), "24"); I("s_add_u32", s(sT0), s(sT0), s(sSLOT)); I("s_lshl_b32", s(sT0), s(sT0), "1")
I("s_lshr_b32", s(sPAIR), s(sCW), "1"); I("s_add_u32", s(sCH), s(sT0), s(sPAIR)); I("s_add_u32", s(sCH), s(sCH), "256")
I("s_mul_i32", s(sCVB), s(sPAIR), str(CVSZ)); I("s_add_u32", s(sCVB), s(sCVB), str(PRIV[2]))
I("s_and_b32", s(sT0), s(sWAVE), "1"); I("s_cmp_eq_u32", s(sT0), "0"); I("s_cbranch_scc1", "L_noh")
h_loads()
a.label("L_noh")
issue_stage()
srd(SWS, pWS, WS_SIZE)
a.lines.append("  s_waitcnt vmcnt(8)")
a.barrier()
issue_stage(); issue_stage()
a.label("L_ld_loop")
a.vm = ["st"] * 24
a.wait_vm(n=16)
a.barrier()
issue_stage()
if STAMP:
    I("s_add_u32", "m0", s(sSTG), "28"); stamp("m0")
I("s_cmp_lt_u32", s(sSTG), "10"); I("s_cbranch_scc1", "L_ld_loop")
I("v_mov_b32", "v6", "0")
I("global_load_dword", v(vNC), "v6", s(pDBG, 2), "sc1", tag="nc")
vG, vGV = 20, 32
I("s_min_u32", s(sT1), s(sC), "7"); I("s_lshl_b32", s(sT1), s(sT1), "4"); I("s_lshl_b32", s(sT0), s(sRB), "7"); I("s_add_u32", s(sT0), s(sT0), s(sT1))
I("s_lshl_b32", s(sT1), s(sCW), "2"); I("s_add_u32", s(sT0), s(sT0), s(sT1))
I("v_add_u32", v(vG), s(sT0), v(vKG))
I("v_lshlrev_b32", v(vGV + 2), "3", v(vG))
I("v_lshlrev_b32", v(vG + 1), "4", v(vN))
I("v_mul_u32_u24", v(vG + 2), "1280", v(vG)); I("v_add_u32", v(vG + 2), v(vG + 2), v(vG + 1))
for i in range(5):
    I("global_load_dwordx4", v(64 + 4 * i, 4), v(vG + 2), s(pQ, 2), f"offset:{256*i}", tag="g")
    I("global_load_dwordx4", v(84 + 4 * i, 4), v(vG + 1), s(pGW, 2), f"offset:{256*i}", tag="g")
for k in (2, 1, 0):
    a.wait_vm(n=8 * k + (11 if k else 10))
    if k == 0:
        I("v_cmp_eq_u32", "vcc", "0", v(vNC)); a.nop(1)
        I("s_cbranch_vccz", "L_ld_tag")
        nonce_get()
        a.label("L_ld_tag")
        I("v_mov_b32", "v7", str(MISC)); I("ds_write_b32", "v7", v(vNC)); a.wait_lgkm(0)
    a.barrier()
stamp(5)
I("s_setprio", str(knob("p1", 1)))
I("s_and_b32", s(sT0), s(sWAVE), "1"); I("s_cmp_eq_u32", s(sT0), "0"); I("s_cbranch_scc1", "L_nocp")
conv_hcopies()
a.label("L_nocp")
a.wait_vm(n=0)
acc, x_, w_, t_ = vG + 4, vG + 6, vG + 8, vG + 10
for i in range(20):
    unpack(x_, 64 + i); unpack(w_, 84 + i)
    if i == 0: I("v_pk_mul_f32", v(acc, 2), v(x_, 2), v(w_, 2))
    else: I("v_pk_fma_f32", v(acc, 2), v(x_, 2), v(w_, 2), v(acc, 2))
I("v_add_f32", v(acc), v(acc), v(acc + 1))
for off in (0x041F, 0x081F, 0x101F, 0x201F):
    I("ds_swizzle_b32", v(t_), v(acc), f"offset:{off}"); a.wait_lgkm(0)
    I("v_add_f32", v(acc), v(acc), v(t_))
I("v_cvt_pk_bf16_f32", v(t_), v(acc), v(acc)); I("v_lshlrev_b32", v(acc), "16", v(t_))
I("v_mul_f32", v(acc), hex(f32bits(-LOG2E)), v(acc))
I("v_exp_f32", v(acc), v(acc)); I("v_add_f32", v(acc), "1.0", v(acc)); I("v_rcp_f32", v(acc), v(acc))
I("v_cvt_pk_bf16_f32", v(t_), v(acc), v(acc)); I("v_lshlrev_b32", v(vGV), "16", v(t_))
I("v_mov_b32", v(vGV + 1), v(vNC))
I("s_lshl_b32", s(sT0), s(sCW), "2"); I("s_add_u32", s(sT0), s(sT0), str(M_X)); I("v_mov_b32", "v6", s(sT0))
I("s_lshl_b32", s(sT0), s(sCW), "13"); I("s_add_u32", s(sT0), s(sT0), str(XCH)); I("v_add_u32", "v8", s(sT0), v(vL16))
lds_wait(9, 6, 0, "v_cmp_eq_u32", "0", sleep=0)
for ft in range(8): I("ds_read_b128", v(64 + 4 * ft, 4), "v8", f"offset:{1024*ft}")
I("v_mov_b32", "v9", "2")
a.wait_lgkm(0)
I("ds_write_b32", "v6", "v9")
a.vm = []
sXRF, sFKA = sSOFFX, sSOFFW
I("v_and_b32", "v10", "31", v(vLANE)); I("v_lshlrev_b32", "v10", "2", "v10")
I("s_lshr_b32", s(sFKA), s(sCH), "4"); I("s_lshl_b32", s(sFKA), s(sFKA), "7"); I("s_add_u32", s(sFKA), s(sFKA), hex(FK))
I("buffer_load_dword", "v11", "v10", s(SWS, 4), s(sFKA), "offen", "sc1", tag="fk")
I("s_mov_b32", s(sXRF), "0")
def early_xr():
    I("s_and_b32", s(sT0), s(sWAVE), "1"); I("s_cmp_eq_u32", s(sT0), "0"); I("s_cbranch_scc1", "L_noexr")
    vm = list(a.vm)
    a.wait_vm(tag="fk")
    I("v_cmp_ne_u32", "vcc", "v11", v(vNC)); a.nop(1)
    I("s_cbranch_vccnz", "L_noexr")
    I("s_lshl_b32", s(sT0), s(sCH), "12"); I("s_add_u32", s(sT0), s(sT0), hex(WS_KVT))
    for blk in range(4):
        I("buffer_load_dwordx4", v(XRL + 4 * blk, 4), v(vL16), s(SWS, 4), s(sT0), "offen", f"offset:{1024*blk}", "sc1")
    I("s_mov_b32", s(sXRF), "1")
    a.label("L_noexr")
    a.vm = vm
gelu_store(64, 1, early_xr)
a.wait_vm(n=0)
h_publish()
stamp(1)
I("s_cmp_ge_u32", s(sC), "8"); I("s_cbranch_scc1", "L_nogs")
I("s_mov_b32", s(sT0), hex(WS_G))
I("s_mov_b32", s(sEX), "0x10001"); I("s_mov_b32", s(sEX + 1), "0x10001"); I("s_mov_b64", "exec", s(sEX, 2))
I("buffer_store_dwordx2", v(vGV, 2), v(vGV + 2), s(SWS, 4), s(sT0), "offen", "sc1", tag="gst")
I("s_mov_b64", "exec", "-1")
a.label("L_nogs")
I("s_sub_u32", s(sT0), s(sWAVE), "4")
for w in range(4):
    I("s_cmp_eq_u32", s(sT0), str(w)); I("s_cselect_b32", s(sPRV), str(PRIV[w]), s(sPRV))
I("v_and_b32", "v14", "1", v(vLANE)); I("v_lshlrev_b32", "v14", "3", "v14"); I("v_add_u32", "v14", str(M_CD + 20), "v14")
I("s_mov_b32", s(sCNT), "2")
I("s_and_b32", s(sT0), s(sWAVE), "1"); I("s_cmp_eq_u32", s(sT0), "0"); I("s_cbranch_scc1", "L_cv6")
I("s_branch", "L_cv7")

a.label("L_G")
a.vm = []
ACC = 64
XS = 128
WSR = 144
vXA0, vXA1, vWE, vWO = 8, 9, 10, 11
vCX0, vCX1, vCWE, vCWO = 12, 13, 14, 15
vBIAS = 208
vRA, vRV, vDNA, vDNV = 16, 17, 18, 19
def lds_init():
    I("v_lshlrev_b32", "v6", "2", v(vLANE)); I("v_add_u32", "v6", str(MISC), "v6"); I("v_mov_b32", "v7", "0")
    I("ds_write_b32", "v6", "v7")
def code_prefetch():
    I("s_and_b32", s(sT0), s(sSLOT), "7"); I("s_lshl_b32", s(sT0), s(sT0), "2"); I("s_add_u32", s(sT0), s(sT0), s(sCW))
    I("s_min_u32", s(sT0), s(sT0), "CODE_KB"); I("s_lshl_b32", s(sT0), s(sT0), "10")
    I("v_add_u32", "v6", s(sT0), v(vL16))
    I("global_load_dwordx4", v(244, 4), "v6", s(sPC, 2), tag="code")
lds_init()
a.wait_lgkm(0)
if DBG:
    I("s_memrealtime", s(sTM, 2)); a.wait_lgkm(0); I("s_mov_b32", "s60", s(sTM))
stamp(63, real=True); stamp(0)
srd(SWS, pWS, WS_SIZE)
I("s_add_u32", s(sT0), "s2", s(sWAVE)); I("s_cmp_lg_u32", s(sT0), "0"); I("s_cbranch_scc1", "L_nonce_skip")
I("s_memrealtime", s(sTM, 2)); a.wait_lgkm(0)
I("s_mul_i32", s(sT0), s(sTM), "0x9E3779B1"); I("s_xor_b32", s(sT0), s(sT0), s(sTM + 1)); I("s_or_b32", s(sT0), s(sT0), "1")
I("v_mov_b32", "v16", s(sT0)); I("v_mov_b32", "v17", "0")
a.lines.append("  global_store_dword v17, v16, s[42:43] sc1")
a.label("L_nonce_skip")
I("v_lshlrev_b32", "v6", "3", v(vKG))
I("s_lshl_b32", s(sT0), s(sC), "8")
I("s_add_u32", s(sT2), s(pB1), s(sT0)); I("s_addc_u32", s(sT3), s(pB1 + 1), "0")
for ft in range(8):
    I("global_load_dwordx2", v(vBIAS + 2 * ft, 2), "v6", s(sT2, 2), f"offset:{32*ft}", tag="bias1")
code_prefetch()
I("s_lshl_b32", s(sT0), s(sCW), "5")
I("v_add_u32", "v6", s(sT0), v(vN)); I("v_lshlrev_b32", "v6", "7", "v6")
I("v_lshrrev_b32", "v7", "1", v(vN)); I("v_xor_b32", "v7", "v7", v(vKG)); I("v_lshlrev_b32", "v7", "4", "v7")
I("v_add_u32", v(vXA0), "v6", "v7"); I("v_xor_b32", v(vXA1), "64", v(vXA0))
I("v_mul_u32_u24", "v6", "2080", v(vKG)); I("v_bfe_u32", "v7", v(vLANE), "2", "2"); I("v_lshl_add_u32", "v6", "v7", "7", "v6")
I("v_and_b32", "v7", "3", v(vLANE)); I("v_lshl_add_u32", "v6", "v7", "3", "v6"); I("v_add_u32", "v6", hex(WOFF), "v6")
I("v_bfe_u32", "v7", v(vLANE), "3", "1"); I("v_lshlrev_b32", "v7", "6", "v7")
I("v_add_u32", v(vWE), "v6", "v7"); I("v_sub_u32", v(vWO), "v6", "v7")
for i in range(8): I("v_mov_b32", v(XS + 8 + i), "0")
for i in range(32): I("v_mov_b32", v(WSR + 32 + i), "0")
I("s_mov_b32", s(sLSLOT), "0"); I("s_mov_b32", s(sCNT), "10")
for c_, l_ in ((vCX0, vXA0), (vCX1, vXA1), (vCWE, vWE), (vCWO, vWO)): I("v_mov_b32", v(c_), v(l_))
I("s_lshl_b32", s(sT0), s(sCW), "2"); I("s_add_u32", s(sT0), s(sT0), str(M_X)); I("v_mov_b32", v(vDNA), s(sT0))
a.wait_vm(tag="bias1")
for rt in range(2):
    for ft in range(8):
        for h in range(2): unpack(ACC + (rt * 8 + ft) * 4 + 2 * h, vBIAS + 2 * ft + h)
def g1_reads(st, ks):
    r = []
    for rt in range(2):
        r.append(("ds_read_b128", v(XS + (st * 2 + rt) * 4, 4), v(vCX1 if ks else vCX0), f"offset:{rt*2048}"))
    for ft in range(8):
        for hh in range(2):
            r.append(("ds_read_b64_tr_b16", v(WSR + (st * 8 + ft) * 4 + 2 * hh, 2), v(vCWO if ft & 2 else vCWE),
                      f"offset:{ks*8320 + hh*1024 + (ft >> 2)*512 + (ft & 3)*32}"))
    return r
def g1_mfmas(st):
    m = []
    for ft in range(8):
        for rt in range(2):
            d = v(ACC + (rt * 8 + ft) * 4, 4)
            m.append(("v_mfma_f32_16x16x32_bf16", d, v(WSR + (st * 8 + ft) * 4, 4), v(XS + (st * 2 + rt) * 4, 4), d))
    return m
def half(reads, mfmas, counted, sched):
    n_new = 0; ri = 0
    for k, m in enumerate(mfmas):
        if counted and k % 2 == 0:
            a.wait_lgkm(min(14, (14 - 2 * (k // 2)) + n_new))
        I(*m)
        for _ in range(sched[k]):
            I(*reads[ri]); ri += 1; n_new += 1
    assert ri == len(reads)
stamp(17)
a.label("L_g1")
a.barrier()
if STAMP:
    I("s_sub_u32", "m0", "30", s(sCNT)); stamp("m0")
half(g1_reads(0, 0), g1_mfmas(1), False, [2, 2] + [1] * 14)
half(g1_reads(1, 1), g1_mfmas(0), True, [0, 2, 1, 2, 1, 2, 1, 2, 1, 2, 2, 2, 0, 0, 0, 0])
I("s_add_u32", s(sLSLOT), s(sLSLOT), str(SLOT))
I("s_cmp_eq_u32", s(sLSLOT), str(NSLOT * SLOT)); I("s_cselect_b32", s(sLSLOT), "0", s(sLSLOT))
for c_, l_ in ((vCX0, vXA0), (vCX1, vXA1), (vCWE, vWE), (vCWO, vWO)): I("v_add_u32", v(c_), s(sLSLOT), v(l_))
I("s_sub_u32", s(sCNT), s(sCNT), "1"); I("s_cmp_lg_u32", s(sCNT), "0")
a.wait_lgkm(0)
I("s_cbranch_scc1", "L_g1")
m = g1_mfmas(1)
for x in m[1::2]: I(*x)
for x in m[0::2]: I(*x)
I("v_mov_b32", "v7", str(MISC)); I("ds_read_b32", v(vNC), "v7")
if DBG:
    I("s_memrealtime", s(sTM, 2)); a.wait_lgkm(0); I("s_mov_b32", "s61", s(sTM))
stamp(1)
I("s_lshl_b32", s(sT0), s(sCW), "13"); I("s_add_u32", s(sT0), s(sT0), str(XCH)); I("v_add_u32", "v8", s(sT0), v(vL16))
for ft in range(8): I("ds_write_b128", "v8", v(ACC + (8 + ft) * 4, 4), f"offset:{1024*ft}")
I("v_mov_b32", "v6", "1"); I("ds_write_b32", v(vDNA), "v6")
I("v_and_b32", "v14", "1", v(vLANE)); I("v_lshlrev_b32", "v14", "3", "v14"); I("v_add_u32", "v14", str(M_CD + 20), "v14")
a.vm = []
I("v_min_u32", "v10", "47", v(vLANE)); I("v_lshlrev_b32", "v10", "2", "v10")
I("s_lshl_b32", s(sT5), s(sC2), "8"); I("s_add_u32", s(sT5), s(sT5), hex(FW))
I("buffer_load_dword", "v11", "v10", s(SWS, 4), s(sT5), "offen", "sc1")
gelu_store(ACC, 0)
stamp(9)
a.wait_vm(n=0, lgkm=0)
h_publish()
stamp(2)
lds_wait(8, 7, M_HC - MISC, "v_cmp_ne_u32", "8", sleep=1)
I("v_cmp_ne_u32", "vcc", "v11", v(vNC)); a.nop(1)
I("s_cbranch_vccz", "L_fwok")
a.label("L_fwpoll")
poll(11, 10, sT5, vNC)
a.label("L_fwok")
g2_setup()

a.label("L_gemm2")
for i in range(80): I("v_mov_b32", v(AC2 + i), "0")
I("v_mov_b32", "v7", str(MISC))
I("s_cmp_lg_u32", s(sCW), "0"); I("s_cbranch_scc1", "L_fhwait")
I("v_min_u32", "v6", "11", v(vLANE)); I("v_lshlrev_b32", "v6", "2", "v6")
I("s_lshr_b32", s(sT0), s(sR2), "1"); I("s_lshl_b32", s(sT0), s(sT0), "8"); I("s_add_u32", s(sT0), s(sT0), hex(FH))
vmsave = list(a.vm)
poll(8, 6, sT0, vNC, sleep=PSL)
I("ds_write_b32", "v7", v(vNC), f"offset:{M_FHS - MISC}")
a.label("L_fhwait")
a.vm = vmsave
lds_wait(8, 7, M_FHS - MISC, "v_cmp_ne_u32", v(vNC), sleep=1)
if DBG:
    I("s_memrealtime", s(sTM, 2)); a.wait_lgkm(0); I("s_mov_b32", "s62", s(sTM))
stamp(3)
for g in range(4):
    h_loads2(g)
    if g >= WPRE: w_loads(g)
for g in range(12):
    a.wait_vm(tag=f"h{g}")
    a.wait_vm(tag=f"w{g}")
    for ct in range(5):
        for rt in range(4):
            d = v(AC2 + (rt * 5 + ct) * 4, 4)
            I("v_mfma_f32_16x16x32_bf16", d, v(Wf[g][ct], 4), v(Hf[g][rt], 4), d)
    pool.extend(Wf[g] + Hf[g])
    if g + 4 < 12: h_loads2(g + 4); w_loads(g + 4)
    if g == YGO: I("ds_write_b32", "v7", v(vNC), f"offset:{M_G2L - MISC}")
if DBG:
    I("s_memrealtime", s(sTM, 2)); a.wait_lgkm(0); I("s_mov_b32", "s63", s(sTM))
stamp(4)
lds_wait(8, 14, 0, "v_cmp_eq_u32", "0", sleep=1)
I("v_mul_u32_u24", "v6", str(REDP), v(vN)); I("v_lshl_add_u32", "v6", v(vKG), "4", "v6")
I("s_mul_i32", s(sT0), s(sCW), str(REDW)); I("v_add_u32", "v6", s(sT0), "v6")
a.nop(6)
for ct in range(5):
    for rt in range(4):
        I("ds_write_b128", "v6", v(AC2 + (rt * 5 + ct) * 4, 4), f"offset:{RED + rt*16*REDP + ct*64}")
I("s_branch", "L_final")


a.label("L_H")
a.vm = []
I("s_lshl_b32", s(sHID), s(sXCD), "3"); I("s_add_u32", s(sHID), s(sHID), s(sSLOT)); I("s_sub_u32", s(sHID), s(sHID), "24")
lds_init()
vG = 20
vGV = 216
def g_loads():
    I("s_lshl_b32", s(sT0), s(sHID), "5"); I("s_add_u32", s(sT0), s(sT0), s(sCNT))
    I("v_add_u32", v(vG), s(sT0), v(vKG))
    I("v_lshlrev_b32", v(vGV + 2), "3", v(vG))
    I("v_lshlrev_b32", v(vG + 1), "4", v(vN))
    I("v_mul_u32_u24", v(vG + 2), "1280", v(vG)); I("v_add_u32", v(vG + 2), v(vG + 2), v(vG + 1))
    for i in range(5):
        I("global_load_dwordx4", v(160 + 4 * i, 4), v(vG + 2), s(pQ, 2), f"offset:{256*i}", tag="g")
        I("global_load_dwordx4", v(180 + 4 * i, 4), v(vG + 1), s(pGW, 2), f"offset:{256*i}", tag="g")
sTT, sHF = sU0, sU1
I("s_lshr_b32", s(sTT), s(sHID), "1"); I("s_and_b32", s(sHF), s(sHID), "1")
I("v_lshrrev_b32", "v16", "3", v(vLANE)); I("v_mul_u32_u24", "v16", "1280", "v16")
I("v_and_b32", "v17", "7", v(vLANE)); I("v_lshl_add_u32", "v16", "v17", "4", "v16")
I("s_mul_i32", s(sT0), s(sTT), str(64 * 1280)); I("s_mul_i32", s(sT1), s(sHF), "640"); I("s_add_u32", s(sT0), s(sT0), s(sT1))
I("s_min_u32", s(sT3), s(sWAVE), "4"); I("s_lshl_b32", s(sT1), s(sT3), "7"); I("s_add_u32", s(sT1), s(sT1), s(sT0))
I("v_add_u32", "v17", s(sT1), "v16"); I("v_subrev_u32", "v17", str(8 * 1280), "v17")
I("s_mul_i32", s(sT1), s(sWAVE), str(8 * 1280)); I("s_add_u32", s(sT0), s(sT0), s(sT1))
I("v_add_u32", "v16", s(sT0), "v16")
I("s_mul_i32", s(sT3), s(sT3), str(KSUB))
I("s_mul_i32", s(sT2), s(sWAVE), "1040")
a.wait_lgkm(0)
stamp(63, real=True); stamp(0)
srd(SA, pK, 2621440); srd(SB, pV, 2621440)
for b in range(5):
    I("s_movk_i32", s(sT1), str(128 * b))
    I("s_add_u32", "m0", s(sT2), str(b * KSUB + 1040))
    I("buffer_load_dwordx4", "v16", s(SA, 4), s(sT1), "offen", "lds", tag="kv")
    I("s_add_u32", "m0", s(sT2), str(b * KSUB + 1040 * 9))
    I("buffer_load_dwordx4", "v16", s(SB, 4), s(sT1), "offen", "lds", tag="kv")
I("s_mov_b32", "m0", s(sT3))
I("buffer_load_dwordx4", "v17", s(SA, 4), "0", "offen", "lds", tag="kv")
vSKR = 48
srd(SB, pSK, 5120)
I("v_lshrrev_b32", "v16", "3", v(vLANE)); I("v_lshlrev_b32", "v16", "4", "v16")
I("s_mul_i32", s(sT0), s(sHF), "2560"); I("s_lshl_b32", s(sT1), s(sWAVE), "7"); I("s_add_u32", s(sT0), s(sT0), s(sT1))
for j in range(3):
    I("buffer_load_dwordx4", v(vSKR + 4 * j, 4), "v16", s(SB, 4), s(sT0), "offen", f"offset:{1024*j}", tag="sk")
sUU, sC2W = sM0X, sM0W
I("s_mul_i32", s(sT0), s(sHID), "3"); I("s_add_u32", s(sT0), s(sT0), s(sWAVE)); I("s_sub_u32", s(sT0), s(sT0), "5")
I("s_lshr_b32", s(sUU), s(sT0), "2"); I("s_and_b32", s(sT0), s(sT0), "3"); I("s_lshl_b32", s(sC2W), s(sT0), "1")
I("s_mul_i32", s(sWBASE), s(sWAVE), "10240"); I("s_add_u32", s(sWBASE), s(sWBASE), str(5 * KSUB - 5 * 10240))
I("s_cmp_lt_u32", s(sWAVE), "5"); I("s_cbranch_scc1", "L_now2")
srd(SA, pW2, 1536 * 1280)
I("s_mul_i32", s(sT2), s(sUU), str(32 * 1280)); I("s_mul_i32", s(sT3), s(sC2W), "160"); I("s_add_u32", s(sT2), s(sT2), s(sT3))
I("s_add_u32", s(sT3), s(sT2), "160")
for i in range(5):
    I("v_add_u32", "v24", str(64 * i), v(vLANE))
    I("v_mul_u32_u24", "v25", "6554", "v24"); I("v_lshrrev_b32", "v25", "16", "v25")
    I("v_mul_u32_u24", "v26", "10", "v25"); I("v_sub_u32", "v26", "v24", "v26")
    I("v_mul_u32_u24", "v25", "1280", "v25"); I("v_lshl_add_u32", "v25", "v26", "4", "v25")
    for hf in range(2):
        I("s_add_u32", "m0", s(sWBASE), str(1024 * i + 5120 * hf))
        I("buffer_load_dwordx4", "v25", s(SA, 4), s(sT2 + hf), "offen", "lds", tag="sk")
a.label("L_now2")
srd(SWS, pWS, WS_SIZE)
ad = 16
I("v_and_b32", v(ad), "7", v(vLANE)); I("v_mul_u32_u24", v(ad), "1040", v(ad))
I("v_lshrrev_b32", v(ad + 1), "3", v(vLANE)); I("v_lshl_add_u32", v(ad), v(ad + 1), "2", v(ad))
I("s_lshr_b32", s(sT0), s(sWAVE), "2"); I("s_mul_i32", s(sT0), s(sT0), str(KSUB)); I("s_lshl_b32", s(sT1), s(sCW), "5"); I("s_add_u32", s(sT0), s(sT0), s(sT1))
I("v_add_u32", v(ad), s(sT0), v(ad))
I("v_lshlrev_b32", v(ad + 1), "13", v(ad + 1))
I("v_and_b32", v(ad + 2), "7", v(vLANE)); I("v_lshlrev_b32", v(ad + 2), "4", v(ad + 2))
I("v_sub_u32", v(ad + 1), v(ad + 1), v(ad + 2)); I("v_add_u32", v(ad + 1), "112", v(ad + 1))
I("v_add_u32", v(ad + 2), "4096", v(ad + 1))
I("s_mul_i32", s(sT0), s(sHF), "20"); I("s_add_u32", s(sT0), s(sT0), s(sWAVE))
I("s_lshl_b32", s(sT1), s(sT0), "7"); I("s_lshl_b32", s(sT2), s(sTT), "2"); I("s_add_u32", s(sT1), s(sT1), s(sT2)); I("s_add_u32", s(sFLAG), s(sT1), hex(FK))
I("s_lshl_b32", s(sT0), s(sT0), "16")
I("s_lshl_b32", s(sT1), s(sTT), "7"); I("s_sub_u32", s(sT0), s(sT0), s(sT1)); I("s_add_u32", s(sT4), s(sT0), hex(WS_KVT + 4080 - 112))
KR, VR, KU, S, P, OUT, O2 = 64, 76, 96, 118, 126, 132, 140
def kv_reads():
    for i in range(11):
        r_ = 5 + i
        I("ds_read_b32", v(KR + i), v(ad), f"offset:{(r_ >> 3)*1040 + (r_ & 7)*128}")
    for i in range(8): I("ds_read_b32", v(VR + i), v(ad), f"offset:{9*1040 + i*128}")
    I("v_add_u32", v(ad), str(2 * KSUB), v(ad))
I("s_cmp_lt_u32", s(sWAVE), "4"); I("s_cselect_b32", s(sCNT), "3", "2"); I("s_cselect_b32", s(sEX), "7", "3"); I("s_mov_b32", s(sEX + 1), "0")
a.wait_vm(tag="sk")
a.barrier()
stamp(18)
kv_reads()
I("s_cmp_lt_u32", s(sWAVE), "5"); I("s_cbranch_scc1", "L_now2b")
I("v_lshrrev_b32", "v24", "2", v(vLANE)); I("v_mul_u32_u24", "v24", "160", "v24")
I("v_and_b32", "v25", "3", v(vLANE)); I("v_lshl_add_u32", "v24", "v25", "3", "v24")
I("v_add_u32", "v24", s(sWBASE), "v24")
for hf in range(2):
    for ct in range(5):
        for hh in range(2):
            I("ds_read_b64_tr_b16", v(160 + 20 * hf + 4 * ct + 2 * hh, 2), "v24", f"offset:{5120*hf + 32*ct + hh*16*160}")
I("s_lshl_b32", s(sT0), s(sC2W), "8"); I("s_lshl_b32", s(sT1), s(sUU), "2"); I("s_add_u32", s(sT0), s(sT0), s(sT1))
I("s_add_u32", s(sSTG), s(sT0), hex(FW))
I("s_mul_i32", s(sT0), s(sC2W), "48"); I("s_add_u32", s(sT0), s(sT0), s(sUU)); I("s_mul_i32", s(sT0), s(sT0), "5120")
I("s_add_u32", s(sT2), s(sT0), hex(WS_W2F))
I("v_add_u32", "v25", "4096", v(vL16))
a.wait_lgkm(0)
for hf in range(2):
    for ct in range(5):
        if ct < 4: I("buffer_store_dwordx4", v(160 + 20 * hf + 4 * ct, 4), v(vL16), s(SWS, 4), s(sT2), "offen", f"offset:{1024*ct}", "sc1", tag="pst")
        else: I("buffer_store_dwordx4", v(160 + 20 * hf + 4 * ct, 4), "v25", s(SWS, 4), s(sT2), "offen", "sc1", tag="pst")
    if hf == 0: I("s_add_u32", s(sT2), s(sT2), str(48 * 5120))
a.label("L_now2b")
I("v_mov_b32", "v6", "0")
I("global_load_dword", v(vNC), "v6", s(pDBG, 2), "sc1")
I("s_mov_b32", s(sT2), "0x05040100"); I("s_mov_b32", s(sT3), "0x07060302")
a.label("L_kv")
for j in range(4):
    for ch in range(2):
        src = vSKR + 2 * ch + (j >> 1)
        if j & 1: I("v_and_b32", v(S + 2 * j + ch), "0xffff0000", v(src))
        else: I("v_lshlrev_b32", v(S + 2 * j + ch), "16", v(src))
for i in range(8): I("v_mov_b32", v(vSKR + i), v(vSKR + 4 + i))
a.wait_lgkm(0)
for i in range(11): unpack(KU + 2 * i, KR + i)
for t_ in range(8): unpack(224 + 2 * t_, VR + t_)
kv_reads()
for t_ in range(8):
    a.I("v_pk_mul_f32", v(P, 2), v(KU + 2 * t_, 2), v(S + 6, 2))
    for j in (2, 1, 0):
        a.I("v_pk_fma_f32", v(P, 2), v(KU + 2 * (t_ + 3 - j), 2), v(S + 2 * j, 2), v(P, 2))
    a.I("v_pk_mul_f32", v(P, 2), v(P, 2), v(224 + 2 * t_, 2))
    I("v_cvt_pk_bf16_f32", v(OUT + t_), v(P), v(P + 1))
for ch in range(2):
    for j in range(4):
        I("v_perm_b32", v(O2 + 4 * ch + j), v(OUT + 6 - 2 * j), v(OUT + 7 - 2 * j), s(sT2 + ch))
I("buffer_store_dwordx4", v(O2, 4), v(ad + 1), s(SWS, 4), s(sT4), "offen", "sc1", tag="pst")
I("buffer_store_dwordx4", v(O2 + 4, 4), v(ad + 2), s(SWS, 4), s(sT4), "offen", "sc1", tag="pst")
I("s_add_u32", s(sT4), s(sT4), str(128 * 4096))
I("s_sub_u32", s(sCNT), s(sCNT), "1"); I("s_cmp_lg_u32", s(sCNT), "0"); I("s_cbranch_scc1", "L_kv")
stamp(19)
a.wait_vm(n=0, lgkm=0)
I("v_cmp_eq_u32", "vcc", "0", v(vNC)); a.nop(1)
I("s_cbranch_vccz", "L_h_tag")
nonce_get()
a.label("L_h_tag")
I("v_lshlrev_b32", "v6", "10", v(vLANE))
I("s_mov_b64", "exec", s(sEX, 2))
I("buffer_store_dword", v(vNC), "v6", s(SWS, 4), s(sFLAG), "offen", "sc1", tag="flag")
I("s_mov_b64", "exec", "-1")
I("s_cmp_lt_u32", s(sWAVE), "5"); I("s_cbranch_scc1", "L_nofwf")
I("v_lshlrev_b32", "v6", "8", v(vLANE))
flag_store(6, sSTG, vNC, nlanes=2, zero=False)
a.label("L_nofwf")
stamp(5)
I("s_lshl_b32", s(sCH), s(sHID), "2"); I("s_add_u32", s(sCH), s(sCH), s(sCW))
I("s_cmp_lt_u32", s(sWAVE), "4"); I("s_cbranch_scc1", "L_nohh")
h_loads()
a.label("L_nohh")
a.barrier()
for w in range(4):
    I("s_cmp_eq_u32", s(sCW), str(w)); I("s_cselect_b32", s(sPRV), str(PRIV[w]), s(sPRV))
    I("s_cselect_b32", s(sCVB), str(CVH[w] if w < 2 else PRIV[w]), s(sCVB))
I("v_and_b32", "v14", "1", v(vLANE)); I("v_lshlrev_b32", "v14", "2", "v14"); I("v_add_u32", "v14", str(M_CD + 16), "v14")
I("s_cmp_ge_u32", s(sWAVE), "4"); I("s_cbranch_scc1", "L_conv")
I("v_min_u32", "v10", "47", v(vLANE)); I("v_lshlrev_b32", "v10", "2", "v10")
I("s_lshl_b32", s(sT5), s(sC2), "8"); I("s_add_u32", s(sT5), s(sT5), hex(FW))
I("v_mov_b32", "v7", str(MISC))
I("s_cmp_lg_u32", s(sWAVE), "0"); I("s_cbranch_scc1", "L_hfw")
poll(11, 10, sT5, vNC, sleep=16)
I("ds_write_b32", "v7", v(vNC), f"offset:{M_FWOK - MISC}")
a.label("L_hfw")
if DBG: I("s_mov_b32", "s60", "0"); I("s_mov_b32", "s61", "0")
lds_wait(8, 7, M_FWOK - MISC, "v_cmp_ne_u32", v(vNC), sleep=4)
I("s_branch", "L_fwok")

a.label("L_cv7")
a.vm = []
I("s_cmp_eq_u32", s(sXRF), "1"); I("s_cbranch_scc1", "L_havexr")
conv_fetch()
a.wait_vm(tag="xr")
a.label("L_havexr")
conv_xwrite()
I("s_lshl_b32", s(sT0), s(sPAIR), "3"); I("s_add_u32", s(sT0), s(sT0), str(M_CV)); I("v_mov_b32", "v7", s(sT0))
I("v_mov_b32", "v6", "1"); I("ds_write_b32", "v7", "v6")
I("s_mov_b32", s(sT5), "0")
I("s_branch", "L_cvgo")
a.label("L_cv6")
I("s_lshl_b32", s(sT0), s(sPAIR), "3"); I("s_add_u32", s(sT0), s(sT0), str(M_CV)); I("v_mov_b32", "v7", s(sT0))
lds_wait(6, 7, 0, "v_cmp_eq_u32", "0", sleep=1)
I("s_movk_i32", s(sT5), "256")
I("s_branch", "L_cvgo")
a.label("L_conv")
a.vm = []
I("s_setprio", str(knob("p1", 1)))
conv_fetch()
conv_hcopies()
a.wait_vm(tag="xr")
conv_xwrite()
I("s_mov_b32", s(sCNT), "4"); I("s_mov_b32", s(sT5), "0")
a.label("L_cvgo")
I("s_add_u32", s(sT5), s(sT5), s(sCVB))
YA = 16
vAA, vBA = 8, 9
I("v_lshl_add_u32", "v12", v(vKG), "3", v(vN)); I("v_add_u32", "v12", "1", "v12")
I("v_and_b32", "v11", "3", "v12"); I("v_sub_u32", "v12", "v12", "v11"); I("v_lshlrev_b32", "v12", "1", "v12")
I("v_mul_u32_u24", "v11", str(HCP), "v11"); I("v_add3_u32", v(vAA), "v12", "v11", s(sT5))
I("v_lshlrev_b32", "v12", "5", v(vN)); I("v_lshlrev_b32", "v11", "4", v(vKG)); I("v_sub_u32", "v12", "v11", "v12")
I("v_add_u32", "v12", str(XR + 480), "v12"); I("v_add_u32", v(vBA), s(sT5), "v12")
a.wait_lgkm(0)
for i in range(32): I("v_mov_b32", v(YA + i), "0")
stamp(3)
FA = [64, 128]; FB = [96, 160]
def cv_reads(st, extra):
    r = []
    for x in range(8):
        r.append(("ds_read_b64", v(FA[st] + 4 * x, 2), v(vAA), f"offset:{512*x + extra}"))
        r.append(("ds_read_b64", v(FA[st] + 4 * x + 2, 2), v(vAA), f"offset:{512*x + extra + 8}"))
        r.append(("ds_read_b128", v(FB[st] + 4 * x, 4), v(vBA), f"offset:{3584 - 512*x + extra}"))
    return r
def cv_mfmas(st):
    m = []
    for pa in range(8):
        for qa in range(8 - pa):
            d = v(YA + 4 * (pa + qa), 4)
            m.append(("v_mfma_f32_16x16x32_bf16", d, v(FA[st] + 4 * pa, 4), v(FB[st] + 4 * qa, 4), d))
    return m
for x in cv_reads(0, 0): I(*x)
a.wait_lgkm(0)
a.label("L_cv")
interleave(cv_reads(1, 64), cv_mfmas(0))
a.wait_lgkm(0)
interleave(cv_reads(0, 128), cv_mfmas(1))
I("v_add_u32", v(vAA), "128", v(vAA)); I("v_add_u32", v(vBA), "128", v(vBA))
I("s_sub_u32", s(sCNT), s(sCNT), "1"); I("s_cmp_lg_u32", s(sCNT), "0")
a.wait_lgkm(0)
I("s_cbranch_scc1", "L_cv")
I("s_setprio", "3")
stamp(4)
I("s_cmp_ge_u32", s(sSLOT), "24"); I("s_cbranch_scc1", "L_cvepi")
I("s_lshl_b32", s(sT0), s(sPAIR), "13"); I("s_add_u32", s(sT0), s(sT0), "86016"); I("v_add_u32", "v10", s(sT0), v(vL16))
I("s_and_b32", s(sT0), s(sWAVE), "1"); I("s_cmp_eq_u32", s(sT0), "1"); I("s_cbranch_scc1", "L_cvadd")
I("v_and_b32", "v11", "3", v(vLANE)); I("v_lshlrev_b32", "v11", "2", "v11"); I("v_add_u32", "v11", str(M_X), "v11")
lds_wait(6, 11, 0, "v_cmp_gt_u32", "2", sleep=0)
for a_ in range(8): I("ds_write_b128", "v10", v(YA + 4 * a_, 4), f"offset:{1024*a_}")
I("v_mov_b32", "v6", "1"); I("ds_write_b32", "v7", "v6", "offset:4")
I("s_branch", "L_preepi")
a.label("L_cvadd")
lds_wait(6, 7, 4, "v_cmp_eq_u32", "0", sleep=0)
for a_ in range(8): I("ds_read_b128", v(64 + 4 * a_, 4), "v10", f"offset:{1024*a_}")
a.wait_lgkm(0)
for i in range(32): I("v_add_f32", v(YA + i), v(YA + i), v(64 + i))
a.label("L_cvepi")
I("v_lshlrev_b32", "v10", "5", v(vN)); I("v_lshl_add_u32", "v10", v(vKG), "3", "v10")
I("v_sub_u32", "v11", str(XR + 4088 - 3584), "v10"); I("v_add_u32", "v11", s(sCVB), "v11")
I("v_add_u32", "v10", s(sCVB), "v10")
for a_ in range(8): I("ds_read_b64", v(64 + 2 * a_, 2), "v11", f"offset:{3584 - 512*a_}")
I("v_lshlrev_b32", "v12", "16", "v15"); I("v_mov_b32", "v13", "v12")
a.wait_lgkm(0)
for a_ in range(8):
    e = 64 + 2 * a_; y = YA + 4 * a_
    K0, K1 = 96, 98
    I("v_and_b32", v(K0), "0xffff0000", v(e + 1)); I("v_lshlrev_b32", v(K0 + 1), "16", v(e + 1))
    I("v_and_b32", v(K1), "0xffff0000", v(e)); I("v_lshlrev_b32", v(K1 + 1), "16", v(e))
    I("v_pk_fma_f32", v(y, 2), v(K0, 2), "v[12:13]", v(y, 2)); I("v_pk_fma_f32", v(y + 2, 2), v(K1, 2), "v[12:13]", v(y + 2, 2))
    I("v_cvt_pk_bf16_f32", v(e), v(y), v(y + 1)); I("v_cvt_pk_bf16_f32", v(e + 1), v(y + 2), v(y + 3))
    I("ds_write_b64", "v10", v(e, 2), f"offset:{512*a_}")
a.wait_lgkm(0)
I("v_add_u32", "v10", s(sCVB), v(vL16))
for blk in range(4): I("ds_read_b128", v(96 + 4 * blk, 4), "v10", f"offset:{1024*blk}")
I("s_lshl_b32", s(sT0), s(sCH), "12"); I("s_add_u32", s(sT0), s(sT0), hex(WS_YT))
a.wait_lgkm(0)
I("s_lshl_b32", s(sT1), s(sWAVE), "2"); I("s_add_u32", s(sT1), s(sT1), str(M_CD)); I("v_mov_b32", "v6", s(sT1)); I("v_mov_b32", "v7", "1")
I("ds_write_b32", "v6", "v7")
for blk in range(4):
    I("buffer_store_dwordx4", v(96 + 4 * blk, 4), v(vL16), s(SWS, 4), s(sT0), "offen", f"offset:{1024*blk}", "sc1", tag="yst")
I("s_mul_i32", s(sT0), s(sCH), "52429"); I("s_lshr_b32", s(sT0), s(sT0), "22")
I("s_mul_i32", s(sT1), s(sT0), "80"); I("s_sub_u32", s(sT1), s(sCH), s(sT1))
I("s_lshl_b32", s(sT0), s(sT0), "9"); I("s_lshl_b32", s(sT1), s(sT1), "2"); I("s_add_u32", s(sT0), s(sT0), s(sT1))
I("s_add_u32", s(sT0), s(sT0), hex(FY))
a.wait_vm(n=0)
flag_store(6, sT0, vNC)
stamp(12)
a.label("L_preepi")
a.vm = []
stamp(6)
I("v_lshlrev_b32", "v8", "2", v(vLANE)); I("v_add_u32", "v8", str(M_G), "v8"); I("v_mov_b32", "v9", str(M_YS))
I("s_cmp_lg_u32", s(sWAVE), "4"); I("s_cbranch_scc1", "L_yswait")
lds_wait(7, 14, 0, "v_cmp_eq_u32", "0", sleep=4)
lds_wait(7, 9, M_G2L - M_YS, "v_cmp_ne_u32", v(vNC), sleep=4)
I("v_min_u32", "v6", "39", v(vLANE)); I("v_lshlrev_b32", "v6", "3", "v6")
I("s_lshl_b32", s(sT1), s(sC2), "9"); I("s_add_u32", s(sT1), s(sT1), hex(FY))
I("v_lshlrev_b32", "v7", "3", v(vLANE))
I("s_lshl_b32", s(sT0), s(sR2), "9"); I("s_add_u32", s(sT0), s(sT0), hex(WS_G))
I("s_mov_b32", s(sPOLL), "1" if NOPOLL else "0x40000")
a.label("L_yp")
I("buffer_load_dwordx2", "v[18:19]", "v6", s(SWS, 4), s(sT1), "offen", "sc1")
I("buffer_load_dwordx2", "v[16:17]", "v7", s(SWS, 4), s(sT0), "offen", "sc1")
a.wait_vm(n=0)
I("v_xor_b32", "v18", "v18", v(vNC)); I("v_xor_b32", "v19", "v19", v(vNC)); I("v_xor_b32", "v17", "v17", v(vNC))
I("v_or3_b32", "v18", "v18", "v19", "v17")
I("v_cmp_ne_u32", "vcc", "0", "v18"); a.nop(1)
I("s_cbranch_vccz", "L_ypd")
I("s_sleep", str(YSL)); I("s_sub_u32", s(sPOLL), s(sPOLL), "1"); I("s_cmp_lg_u32", s(sPOLL), "0"); I("s_cbranch_scc1", "L_yp")
a.label("L_ypd")
I("ds_write_b32", "v8", "v16"); I("ds_write_b32", "v9", v(vNC))
a.label("L_yswait")
lds_wait(7, 9, 0, "v_cmp_ne_u32", v(vNC), sleep=4)
I("ds_read_b32", "v16", "v8")
I("s_lshl_b32", s(sT0), s(sC2), "2"); I("s_add_u32", s(sT0), s(sT0), s(sCW))
stamp(9)
I("s_mul_i32", s(sT0), s(sT0), str(20 * 4096)); I("s_lshl_b32", s(sT1), s(sR2), "7"); I("s_add_u32", s(sT0), s(sT0), s(sT1))
I("s_add_u32", s(sT0), s(sT0), hex(WS_YT))
I("v_lshlrev_b32", "v6", "12", v(vKG)); I("v_lshl_add_u32", "v6", v(vN), "3", "v6")
for i in range(5):
    I("buffer_load_dwordx2", v(64 + 2 * i, 2), "v6", s(SWS, 4), s(sT0), "offen", "sc1", tag="yl")
    if i < 4: I("s_add_u32", s(sT0), s(sT0), str(4 * 4096))
I("v_lshlrev_b32", "v6", "7", v(vKG)); I("v_lshl_add_u32", "v6", v(vN), "3", "v6"); I("v_add_u32", "v6", s(sPRV), "v6")
I("v_bfe_u32", "v7", v(vLANE), "2", "2"); I("v_lshlrev_b32", "v7", "7", "v7")
I("v_lshl_add_u32", "v7", v(vKG), "5", "v7"); I("v_and_b32", "v8", "3", v(vLANE)); I("v_lshl_add_u32", "v7", "v8", "3", "v7")
I("v_add_u32", "v7", s(sPRV), "v7")
I("v_mul_u32_u24", "v8", "40", v(vLANE)); I("v_add_u32", "v8", s(sPRV), "v8")
a.wait_vm(tag="yl", lgkm=0)
I("v_mov_b32", "v17", "v16")
for i in range(5): I("ds_write_b64", "v6", v(64 + 2 * i, 2), f"offset:{512*i}")
a.wait_lgkm(0)
for i in range(5): I("ds_read_b64_tr_b16", v(64 + 2 * i, 2), "v7", f"offset:{512*i}")
a.wait_lgkm(0)
for i in range(5):
    for h in range(2):
        Y = 96 + 2 * h
        unpack(Y, 64 + 2 * i + h)
        I("v_pk_mul_f32", v(Y, 2), v(Y, 2), "v[16:17]")
        I("v_cvt_pk_bf16_f32", v(80 + 2 * i + h), v(Y), v(Y + 1))
    I("ds_write_b64", "v8", v(80 + 2 * i, 2), f"offset:{GYO + 8*i}")
stamp(7)

a.label("L_final")
a.vm = []
srd(SO, pOUT, 2621440)
srd(SQ, pQ, 2621440)
I("s_mul_i32", s(sT0), s(sC2), "160"); I("s_add_u32", s(sT2), s(pB2), s(sT0)); I("s_addc_u32", s(sT3), s(pB2 + 1), "0")
I("s_lshl_b32", s(sT1), s(sR2), "6"); I("s_mul_i32", s(sT1), s(sT1), "1280"); I("s_add_u32", s(sT4), s(sT1), s(sT0))
def gy_addr(dst, quad, row, t0, t1):
    I("v_mul_u32_u24", v(t0), "13108", v(quad)); I("v_lshrrev_b32", v(t0), "16", v(t0))
    I("v_mul_u32_u24", v(t1), "5", v(t0)); I("v_sub_u32", v(t1), v(quad), v(t1))
    I("v_mul_u32_u24", v(dst), "40", v(row)); I("v_lshl_add_u32", v(dst), v(t1), "3", v(dst))
    I("v_mov_b32", v(t1), str(PRIV[0] + GYO))
    for b in range(1, 4):
        I("v_cmp_eq_u32", "vcc", str(b), v(t0)); I("v_mov_b32", v(t0 + 3), str(PRIV[b] + GYO))
        I("v_cndmask_b32", v(t1), v(t1), v(t0 + 3), "vcc")
    I("v_add_u32", v(dst), v(dst), v(t1))
def fin_setup(idreg, b):
    T = 124
    I("v_mul_u32_u24", v(b), "6554", v(idreg)); I("v_lshrrev_b32", v(b), "16", v(b))
    I("v_mul_u32_u24", v(b + 1), "10", v(b)); I("v_sub_u32", v(b + 1), v(idreg), v(b + 1))
    I("v_lshlrev_b32", v(b + 5), "4", v(b + 1))
    I("global_load_dwordx4", v(b + 8, 4), v(b + 5), s(sT2, 2), tag="b2")
    I("v_mul_u32_u24", v(b + 6), "1280", v(b)); I("v_add_u32", v(b + 5), v(b + 5), v(b + 6))
    I("buffer_load_dwordx4", v(b + 12, 4), v(b + 5), s(SQ, 4), s(sT4), "offen", tag="b2")
    I("v_mul_u32_u24", v(b + 2), str(REDP), v(b)); I("v_lshl_add_u32", v(b + 2), v(b + 1), "5", v(b + 2))
    I("v_lshlrev_b32", v(T + 2), "1", v(b + 1)); gy_addr(b + 3, T + 2, b, T, T + 1)
    I("v_add_u32", v(T + 2), "1", v(T + 2)); gy_addr(b + 7, T + 2, b, T, T + 1)
    I("v_lshlrev_b32", v(b + 4), "2", v(b)); I("v_add_u32", v(b + 4), str(M_G), v(b + 4))
def fin_item(b):
    P = 160
    for w in range(4):
        I("ds_read_b128", v(P + 8 * w, 4), v(b + 2), f"offset:{RED + w*REDW}")
        I("ds_read_b128", v(P + 8 * w + 4, 4), v(b + 2), f"offset:{RED + w*REDW + 16}")
    I("ds_read_b64", v(P + 32, 2), v(b + 3)); I("ds_read_b64", v(P + 34, 2), v(b + 7))
    I("ds_read_b32", v(P + 36), v(b + 4))
    a.wait_vm(tag="b2", lgkm=0)
    G1, Qq, B, GA = P + 38, P + 40, P + 42, P + 44
    I("v_sub_f32", v(G1), "1.0", v(P + 36)); I("v_mov_b32", v(G1 + 1), v(G1))
    for j in range(4):
        x = P + 2 * j
        unpack(B, b + 8 + j); unpack(GA, P + 32 + j); unpack(Qq, b + 12 + j)
        a.I("v_pk_add_f32", v(x, 2), v(x, 2), v(x + 8, 2)); a.I("v_pk_add_f32", v(x + 16, 2), v(x + 16, 2), v(x + 24, 2))
        a.I("v_pk_add_f32", v(x, 2), v(x, 2), v(B, 2))
        a.I("v_pk_mul_f32", v(GA, 2), v(GA, 2), v(Qq, 2))
        a.I("v_pk_add_f32", v(x, 2), v(x, 2), v(x + 16, 2))
        a.I("v_pk_fma_f32", v(x, 2), v(x, 2), v(G1, 2), v(GA, 2))
        I("v_cvt_pk_bf16_f32", v(P + 48 + j), v(x), v(x + 1))
    I("buffer_store_dwordx4", v(P + 48, 4), v(b + 5), s(SO, 4), s(sT4), "offen", tag="out")
fin_setup(0, 96)
I("v_add_u32", "v120", "256", "v0"); I("v_min_u32", "v120", "639", "v120")
fin_setup(120, 128)
a.wait_lgkm(0)
a.barrier()
stamp(10)
fin_item(96)
I("s_lshr_b32", s(sT0), s(sWAVE), "1"); I("s_cmp_lg_u32", s(sT0), "2"); I("s_cbranch_scc1", "L_fin_done")
a.nop(2)
fin_item(128)
a.label("L_fin_done")
stamp(8)
I("s_cmp_lg_u32", s(sWAVE), "0"); I("s_cbranch_scc1", "L_end")
dstamp(1, inv=True, reg=100); dstamp(7, reg=100); dstamp(2)
for k_, r_ in ((3, 60), (4, 61), (5, 62), (6, 63)): dstamp(k_, reg=r_)
stamp_flush()
a.label("L_end")
I("s_endpgm")
a.raw(f""".section .rodata,"a"
.p2align 6
.amdhsa_kernel {KNAME}
  .amdhsa_next_free_vgpr 256
  .amdhsa_next_free_sgpr 102
  .amdhsa_accum_offset 256
  .amdhsa_group_segment_fixed_size 0
  .amdhsa_kernarg_size 120
  .amdhsa_user_sgpr_count 2
  .amdhsa_user_sgpr_kernarg_segment_ptr 1
  .amdhsa_system_sgpr_workgroup_id_x 1
  .amdhsa_float_denorm_mode_32 3
.end_amdhsa_kernel
""")
out = [x for x in sys.argv[1:] if not x.startswith("--")]
import subprocess, re
txt = a.text()
open("_t.s", "w").write(txt.replace("CODE_KB", "100"))
subprocess.run(["clang", "-x", "assembler", "-target", "amdgcn-amd-amdhsa", "-mcpu=gfx950", "-c", "_t.s", "-o", "_t.o"], check=True)
sec = subprocess.run(["llvm-readelf", "-S", "_t.o"], capture_output=True, text=True).stdout
size = int(re.search(r"\.text\s+PROGBITS\s+\S+\s+\S+\s+(\S+)", sec).group(1), 16)
print("code bytes", size)
open(out[0] if out else "k.s", "w").write(txt.replace("CODE_KB", str((size >> 10) - 1)))
```

```python
import sys, struct
import re as _re
from asmlib import Asm, v, s

KNAME = "gated_mix__ssm_conv_h3__dense_activation_gelu__prompt_kernel"
STAMP = "--stamp" in sys.argv
def knob(name, default):
    for x in sys.argv:
        if x.startswith(f"--{name}="): return int(x.split("=")[1])
    return default
NOPOLL = knob("nopoll", 0)
PKG = knob("pkg", 1)
GL9 = knob("gl9", 1)
PFDEPTH = knob("pfd", 20)
LD = knob("ld", 3)
WPRE = knob("wpre", 4)
PSL = knob("psl", 16)
YSL = knob("ysl", 4)
YGO = knob("ygo", 6)
PFGATE = knob("pfgate", 0)

FK, FW, FH, FY = 0x0000, 0x2000, 0x3000, 0x5000
WS_G = 0x10000
WS_KVT = 0x100000
WS_W2F = 0x400000
WS_YT = 0x600000
WS_HF = 0x900000
WS_DBG = 0xF00000
WS_SIZE = 0x1000000
WOFF = 16384
SLOT = 16384 + 16384 + 256
NSLOT = 4
HCP = 4160
XR = 4 * HCP
CVSZ = 21248
MISC = 157184
M_NONCE, M_FWOK, M_CV, M_PS, M_PF, M_X, M_CD, M_G = MISC, MISC + 8, MISC + 16, MISC + 20, MISC + 32, MISC + 64, MISC + 96, MISC + 256
M_FHS = MISC + 12
M_HC = MISC + 4
M_YS = MISC + 36
M_G2L = MISC + 40
LG0 = 8
PRIV = [104448, 157696, 114688, 114688 + CVSZ]
CVH = [0, 43008]
GYO = 2560
RED = 0
REDW = 21504
REDP = 336
XCH = 2 * SLOT
KSUB = 17 * 1040
LDS_BYTES = 163840
NPF = 4
NREG = 4

sWAVE, sXCD, sSLOT, sRB, sC, sR2, sC2 = 3, 4, 5, 6, 7, 8, 9
sT0, sT1, sT2, sT3, sT4, sT5 = 10, 11, 12, 13, 14, 15
pQ, pK, pV, pSK, pH, pD, pBX, pW1, pB1, pW2, pB2, pGW, pOUT, pDBG, pWS = [16 + 2 * i for i in range(15)]
SQ, SW1, SWS, SA, SB, SH, SO = 48, 52, 56, 60, 64, 68, 72
sWBASE = 76
sCW = 77
sSOFFX, sSOFFW, sLSLOT, sCNT = 78, 79, 80, 81
sM0X, sM0W = 82, 83
sCH, sCVB = 84, 85
sEX = 86
sTM = 88
sU0, sU1 = 90, 91
sPOLL = 92
sFLAG = 93
sPC = 94
sSTG = 96
sHID = 97
sPRV = 98
sPAIR = 99

a = Asm()
def I(op, *args, **kw):
    if op.startswith("v_pk_") and op.endswith("_f32"):
        base = [int(_re.match(r"v\[(\d+):", x).group(1)) for x in args]
        sop = {"v_pk_mul_f32": "v_mul_f32", "v_pk_add_f32": "v_add_f32", "v_pk_fma_f32": "v_fma_f32"}[op]
        for h in range(2): a.I(sop, *[f"v{b+h}" for b in base])
        return
    a.I(op, *args, **kw)

def f32bits(x): return struct.unpack("<I", struct.pack("<f", x))[0]

def srd(d, p, nbytes):
    I("s_mov_b32", s(d), s(p)); I("s_mov_b32", s(d + 1), s(p + 1))
    I("s_mov_b32", s(d + 2), hex(nbytes)); I("s_mov_b32", s(d + 3), "0x20000")

vSTAMP = 255
def stamp(idx, real=False):
    if not STAMP: return
    I("s_memrealtime" if real else "s_memtime", s(sTM, 2)); a.wait_lgkm(0)
    I("v_writelane_b32", v(vSTAMP), s(sTM), str(idx))
def stamp_flush():
    if not STAMP: return
    stamp(62, real=True)
    I("s_lshl_b32", s(sT5), s(2), "3"); I("s_add_u32", s(sT5), s(sT5), s(sWAVE)); I("s_lshl_b32", s(sT5), s(sT5), "8")
    I("s_add_u32", s(sT5), s(sT5), hex(WS_DBG))
    I("v_lshlrev_b32", "v254", "2", v(1))
    I("buffer_store_dword", v(vSTAMP), "v254", s(SWS, 4), s(sT5), "offen", tag="stamp")

_lbl = [0]
def newlbl(p):
    _lbl[0] += 1; return f"L_{p}_{_lbl[0]}"

def poll(vtmp, voff, soff_reg, vnonce, wide=False, sleep=4):
    top = newlbl("poll"); done = newlbl("pdone")
    I("s_mov_b32", s(sPOLL), "1" if NOPOLL else "0x40000")
    a.label(top)
    if wide: I("buffer_load_dwordx2", v(vtmp, 2), v(voff), s(SWS, 4), s(soff_reg), "offen", "sc1")
    else: I("buffer_load_dword", v(vtmp), v(voff), s(SWS, 4), s(soff_reg), "offen", "sc1")
    a.wait_vm(n=0)
    I("v_cmp_ne_u32", "vcc", v(vtmp + (1 if wide else 0)), v(vnonce))
    a.nop(1)
    I("s_cbranch_vccz", done)
    I("s_sleep", str(sleep))
    I("s_sub_u32", s(sPOLL), s(sPOLL), "1")
    I("s_cmp_lg_u32", s(sPOLL), "0")
    I("s_cbranch_scc1", top)
    a.label(done)

def lds_wait(vtmp, vaddr, off, cmp_op, ref, sleep=1):
    top = newlbl("lw"); done = newlbl("lwd")
    I("s_mov_b32", s(sPOLL), "0x100000")
    a.label(top)
    I("ds_read_b32", v(vtmp), v(vaddr), f"offset:{off}"); a.wait_lgkm(0)
    I(cmp_op, "vcc", ref, v(vtmp)); a.nop(1)
    I("s_cbranch_vccz", done)
    if sleep: I("s_sleep", str(sleep))
    I("s_sub_u32", s(sPOLL), s(sPOLL), "1"); I("s_cmp_lg_u32", s(sPOLL), "0"); I("s_cbranch_scc1", top)
    a.label(done)

def flag_store(voff, soff_reg, vnonce, nlanes=1, zero=True):
    if zero: I("v_mov_b32", v(voff), "0")
    I("s_mov_b64", "exec", str((1 << nlanes) - 1))
    I("buffer_store_dword", v(vnonce), v(voff), s(SWS, 4), s(soff_reg), "offen", "sc1", tag="flag")
    I("s_mov_b64", "exec", "-1")

def h_publish():
    skip = newlbl("hp")
    I("v_mov_b32", "v6", str(M_HC)); I("v_mov_b32", "v8", "1")
    I("s_mov_b64", "exec", "1")
    I("ds_add_rtn_u32", "v8", "v6", "v8"); a.wait_lgkm(0)
    I("v_readfirstlane_b32", s(sT0), "v8")
    I("s_mov_b64", "exec", "-1")
    I("s_cmp_lg_u32", s(sT0), "7"); I("s_cbranch_scc1", skip)
    flag_store(6, sFLAG, vNC)
    a.label(skip)

def unpack(dlo, src):
    I("v_lshlrev_b32", v(dlo), "16", v(src)); I("v_and_b32", v(dlo + 1), "0xffff0000", v(src))

def interleave(r, m):
    n = max(len(r), len(m))
    for i in range(n):
        if i < len(r): I(*r[i])
        if i < len(m): I(*m[i])

LOG2E = 1.4426950408889634
C0 = -2.0 * LOG2E * 0.7978845608028654
C1 = C0 * 0.044715
vLANE, vN, vKG, vL16, vNC = 1, 2, 3, 4, 5
vHC, vHN = 128, 192

def nonce_get():
    top = newlbl("nct"); done = newlbl("ncd")
    I("s_mov_b32", s(sPOLL), "0x40000"); I("v_mov_b32", "v6", "0")
    a.label(top)
    I("global_load_dword", v(vNC), "v6", s(pDBG, 2), "sc1")
    a.wait_vm(n=0)
    I("v_cmp_eq_u32", "vcc", "0", v(vNC)); a.nop(1)
    I("s_cbranch_vccz", done)
    I("s_sleep", "2"); I("s_sub_u32", s(sPOLL), s(sPOLL), "1"); I("s_cmp_lg_u32", s(sPOLL), "0"); I("s_cbranch_scc1", top)
    a.label(done)

def h_loads():
    srd(SH, pH, 640 * 4096)
    I("s_lshl_b32", s(sT0), s(sCH), "12")
    for blk in range(4):
        I("buffer_load_dwordx4", v(vHC + blk * 4, 4), v(vL16), s(SH, 4), s(sT0), "offen", f"offset:{1024*blk}", tag="h")
        I("buffer_load_dwordx2", v(vHN + blk * 2, 2), v(vL16), s(SH, 4), s(sT0), "offen", f"offset:{1024*blk+16}", tag="h")
    I("s_lshl_b32", s(sT0), s(sCH), "1"); I("v_mov_b32", "v6", s(sT0))
    I("global_load_ushort", "v15", "v6", s(pD, 2), tag="h")

def gelu_store(src, rt, mid=None):
    c0, c1, T, O = 16, 18, 24, 40
    I("v_mov_b32", v(c0), hex(f32bits(C0))); I("v_mov_b32", v(c1), hex(f32bits(C1)))
    I("s_lshl_b32", s(sT0), s(sRB), "1"); I("s_lshr_b32", s(sT1), s(sCW), "1"); I("s_add_u32", s(sT0), s(sT0), s(sT1))
    I("s_and_b32", s(sT1), s(sCW), "1"); I("s_lshl_b32", s(sT1), s(sT1), "1"); I("s_add_u32", s(sT1), s(sT1), str(rt))
    I("s_mul_i32", s(sT2), s(sT0), "48"); I("s_lshl_b32", s(sT3), s(sC), "2"); I("s_add_u32", s(sT2), s(sT2), s(sT3))
    I("s_lshl_b32", s(sT2), s(sT2), "2"); I("s_add_u32", s(sT2), s(sT2), s(sT1)); I("s_lshl_b32", s(sT2), s(sT2), "10")
    I("s_add_u32", s(sT2), s(sT2), hex(WS_HF))
    I("s_lshl_b32", s(sT0), s(sRB), "8"); I("s_add_u32", s(sT0), s(sT0), s(sT3)); I("s_add_u32", s(sFLAG), s(sT0), hex(FH))
    I("v_mov_b32", v(c0 + 1), v(c0)); I("v_mov_b32", v(c1 + 1), v(c1)); I("v_mov_b32", v(20), "1.0"); I("v_mov_b32", v(21), "1.0")
    for up in range(4):
        X = [src + 8 * up + 2 * k for k in range(4)]
        E = a.I if PKG else I
        for k in range(4): E("v_pk_mul_f32", v(T + 2 * k, 2), v(X[k], 2), v(X[k], 2))
        for k in range(4): E("v_pk_fma_f32", v(T + 2 * k, 2), v(T + 2 * k, 2), v(c1, 2), v(c0, 2))
        for k in range(4): E("v_pk_mul_f32", v(T + 2 * k, 2), v(T + 2 * k, 2), v(X[k], 2))
        for k in range(8): I("v_exp_f32", v(T + k), v(T + k))
        for k in range(4): E("v_pk_add_f32", v(T + 2 * k, 2), v(T + 2 * k, 2), v(20, 2))
        for k in range(8): I("v_rcp_f32", v(T + k), v(T + k))
        for k in range(4): E("v_pk_mul_f32", v(T + 2 * k, 2), v(T + 2 * k, 2), v(X[k], 2))
        for k in range(4): I("v_cvt_pk_bf16_f32", v(O + 4 * up + k), v(T + 2 * k), v(T + 2 * k + 1))
        I("buffer_store_dwordx4", v(O + 4 * up, 4), v(vL16), s(SWS, 4), s(sT2), "offen", "sc1", tag="hst")
        if up < 3: I("s_add_u32", s(sT2), s(sT2), "4096")
        if up == 1 and mid: mid()


XRL = 96
def conv_fetch():
    I("v_and_b32", "v6", "31", v(vLANE)); I("v_lshlrev_b32", "v6", "2", "v6")
    I("s_lshr_b32", s(sT0), s(sCH), "4"); I("s_lshl_b32", s(sT0), s(sT0), "7"); I("s_add_u32", s(sT0), s(sT0), hex(FK))
    poll(7, 6, sT0, vNC)
    stamp(2)
    I("s_lshl_b32", s(sT0), s(sCH), "12"); I("s_add_u32", s(sT0), s(sT0), hex(WS_KVT))
    for blk in range(4):
        I("buffer_load_dwordx4", v(XRL + 4 * blk, 4), v(vL16), s(SWS, 4), s(sT0), "offen", f"offset:{1024*blk}", "sc1", tag="xr")
def conv_hcopies():
    I("v_add_u32", "v10", s(sCVB), v(vL16))
    for blk in range(4):
        d = [vHC + blk * 4 + k for k in range(4)] + [vHN + 2 * blk, vHN + 2 * blk + 1]
        for k in range(4):
            I("v_alignbit_b32", v(vHC + (4 + blk) * 4 + k), v(d[k + 1]), v(d[k]), "16")
            I("v_mov_b32", v(vHC + (8 + blk) * 4 + k), v(d[k + 1]))
            I("v_alignbit_b32", v(vHC + (12 + blk) * 4 + k), v(d[k + 2]), v(d[k + 1]), "16")
        for c in range(4):
            I("ds_write_b128", "v10", v(vHC + (c * 4 + blk) * 4, 4), f"offset:{c*HCP + 32 + 1024*blk}")
    for i in range(4): I("v_mov_b32", v(20 + i), "0")
    I("s_mov_b64", "exec", "0x3fffffff")
    I("ds_write_b128", "v10", v(20, 4), f"offset:{XR + 4096}")
    I("s_mov_b64", "exec", "3")
    for c in range(4): I("ds_write_b128", "v10", v(20, 4), f"offset:{c*HCP}")
    I("s_mov_b64", "exec", "1")
    I("v_lshlrev_b32", "v24", "16", v(vHC))
    I("ds_write_b32", "v10", "v24", f"offset:{1*HCP + 28}")
    I("ds_write_b32", "v10", v(vHC), f"offset:{2*HCP + 28}")
    I("ds_write_b32", "v10", "v24", f"offset:{3*HCP + 24}")
    I("ds_write_b32", "v10", v(vHC + 16), f"offset:{3*HCP + 28}")
    I("s_mov_b64", "exec", "-1")
def conv_xwrite():
    I("v_add_u32", "v10", s(sCVB), v(vL16))
    for blk in range(4): I("ds_write_b128", "v10", v(XRL + 4 * blk, 4), f"offset:{XR + 1024*blk}")

AC2 = 16
vL16b = 9
pool = [144 + 4 * i for i in range(27)] + [96 + 4 * i for i in range(12)]
Wf, Hf = {}, {}
def take(n):
    r = pool[:n]; del pool[:n]; return r
def w_loads(g):
    if g not in Wf: Wf[g] = take(5)
    I("s_add_u32", s(sT1), s(sU1), str(g * 4 * 5120))
    for ct in range(5):
        if ct < 4: I("buffer_load_dwordx4", v(Wf[g][ct], 4), v(vL16), s(SWS, 4), s(sT1), "offen", f"offset:{ct*1024}", "sc1", tag=f"w{g}")
        else: I("buffer_load_dwordx4", v(Wf[g][ct], 4), v(vL16b), s(SWS, 4), s(sT1), "offen", "sc1", tag=f"w{g}")
def w_lds(g):
    Wf[g] = take(5)
    for ct in range(5): I("ds_read_b128", v(Wf[g][ct], 4), "v7", f"offset:{RED + (g - LG0)*5120 + ct*1024}")
def h_loads2(g):
    Hf[g] = take(4)
    I("s_add_u32", s(sT2), s(sU0), str(g * 4 * 4096))
    for rt in range(4):
        I("buffer_load_dwordx4", v(Hf[g][rt], 4), v(vL16), s(SWS, 4), s(sT2), "offen", f"offset:{rt*1024}", "sc1", tag=f"h{g}")
def g2_setup():
    I("s_mul_i32", s(sU0), s(sR2), "48"); I("s_add_u32", s(sU0), s(sU0), s(sCW)); I("s_lshl_b32", s(sU0), s(sU0), "12")
    I("s_add_u32", s(sU0), s(sU0), hex(WS_HF))
    I("s_mul_i32", s(sU1), s(sC2), "48"); I("s_add_u32", s(sU1), s(sU1), s(sCW)); I("s_mul_i32", s(sU1), s(sU1), "5120")
    I("s_add_u32", s(sU1), s(sU1), hex(WS_W2F))
    I("v_add_u32", v(vL16b), "4096", v(vL16))
    for g in range(WPRE): w_loads(g)

hdr = open("cdna_kernels/" + KNAME[:-7] + ".s.ref").read().split("; Override")[0]
a.raw(hdr.rstrip())
a.raw(f"; @launch grid=(256,1,1) block=(512,1,1) lds={LDS_BYTES}")
a.raw('.amdgcn_target "amdgcn-amd-amdhsa--gfx950"\n.text')
a.raw(f".globl {KNAME}\n.p2align 8\n.type {KNAME},@function\n{KNAME}:")
I("s_cmp_ge_u32", "s2", "256"); I("s_cbranch_scc1", "L_end")
I("s_load_dwordx16", s(16, 16), "s[0:1]", "0")
I("s_load_dwordx8", s(32, 8), "s[0:1]", "64")
I("s_load_dwordx4", s(40, 4), "s[0:1]", "96")
I("s_load_dwordx2", s(44, 2), "s[0:1]", "112")
I("s_getpc_b64", s(sPC, 2))
I("v_and_b32", v(vLANE), "63", "v0")
I("v_lshrrev_b32", "v2", "6", "v0")
I("v_readfirstlane_b32", s(sWAVE), "v2")
I("s_and_b32", s(sXCD), "s2", "7"); I("s_lshr_b32", s(sSLOT), "s2", "3")
I("s_lshr_b32", s(sT0), s(sXCD), "1"); I("s_and_b32", s(sT1), s(sXCD), "1")
I("s_lshl_b32", s(sR2), s(sT0), "3"); I("s_lshr_b32", s(sT2), s(sSLOT), "2"); I("s_add_u32", s(sR2), s(sR2), s(sT2))
I("s_lshl_b32", s(sC2), s(sT1), "2"); I("s_and_b32", s(sT2), s(sSLOT), "3"); I("s_add_u32", s(sC2), s(sC2), s(sT2))
I("s_mul_i32", s(sT2), s(sSLOT), "43"); I("s_lshr_b32", s(sT2), s(sT2), "8"); I("s_mul_i32", s(sT3), s(sT2), "6"); I("s_sub_u32", s(sT3), s(sSLOT), s(sT3))
I("s_lshl_b32", s(sRB), s(sT0), "2"); I("s_add_u32", s(sRB), s(sRB), s(sT2))
I("s_mul_i32", s(sC), s(sT1), "6"); I("s_add_u32", s(sC), s(sC), s(sT3))
I("s_and_b32", s(sCW), s(sWAVE), "3")
I("v_and_b32", v(vN), "15", v(vLANE)); I("v_lshrrev_b32", v(vKG), "4", v(vLANE))
I("v_lshlrev_b32", v(vL16), "4", v(vLANE))
if STAMP: I("v_mov_b32", v(vSTAMP), "0")
I("s_cmp_ge_u32", s(sSLOT), "24"); I("s_cbranch_scc1", "L_H")
I("s_cmp_lt_u32", s(sWAVE), "4"); I("s_cbranch_scc1", "L_G")

vDX = 8
vDW = 12
sKST = sU0
I("s_mul_i32", s(sKST), s(sT3), "3"); I("s_mul_i32", s(sT2), s(sT2), "5"); I("s_lshr_b32", s(sT2), s(sT2), "1"); I("s_add_u32", s(sKST), s(sKST), s(sT2))
for _ in range(2):
    I("s_sub_u32", s(sT0), s(sKST), "10"); I("s_cmp_ge_u32", s(sKST), "10"); I("s_cselect_b32", s(sKST), s(sT0), s(sKST))
I("v_lshrrev_b32", "v6", "3", v(vLANE)); I("v_and_b32", "v7", "7", v(vLANE))
I("s_lshl_b32", s(sT0), s(sRB), "7"); I("s_lshl_b32", s(sT1), s(sCW), "5"); I("s_add_u32", s(sT0), s(sT0), s(sT1))
for jj in range(4):
    I("v_add_u32", "v16", str(8 * jj), "v6")
    I("v_bfe_u32", "v17", "v16", "1", "3"); I("v_xor_b32", "v17", "v17", "v7")
    I("v_add_u32", "v16", s(sT0), "v16"); I("v_mul_u32_u24", "v16", "1280", "v16")
    I("v_lshl_add_u32", "v16", "v17", "4", "v16")
    I("v_subrev_u32", v(vDX + jj), str(1024 * jj), "v16")
I("v_bfe_u32", "v16", v(vLANE), "3", "2"); I("v_mul_u32_u24", "v16", "3072", "v16")
I("v_lshrrev_b32", "v17", "5", v(vLANE)); I("v_lshl_add_u32", "v16", "v17", "7", "v16")
I("v_bfe_u32", "v17", v(vLANE), "4", "1"); I("v_lshlrev_b32", "v17", "2", "v17"); I("v_xor_b32", "v17", "v17", "v7")
I("v_lshl_add_u32", v(vDW), "v17", "4", "v16")
I("s_lshl_b32", s(sWBASE), s(sC), "8"); I("s_mul_i32", s(sT0), s(sCW), str(16 * 3072)); I("s_add_u32", s(sWBASE), s(sWBASE), s(sT0))
I("s_mov_b32", s(sSTG), "0"); I("s_mov_b32", s(sLSLOT), "0")
I("s_lshl_b32", s(sM0X), s(sCW), "12"); I("s_mul_i32", s(sM0W), s(sCW), str(4096 + 64)); I("s_add_u32", s(sM0W), s(sM0W), str(WOFF))
a.wait_lgkm(0)
srd(SQ, pQ, 2621440)
srd(SW1, pW1, 640 * 3072)
stamp(63, real=True); stamp(0)
def issue_stage():
    I("s_lshl_b32", s(sSOFFX), s(sKST), "7")
    I("s_mul_i32", s(sSOFFW), s(sKST), str(64 * 3072)); I("s_add_u32", s(sSOFFW), s(sSOFFW), s(sWBASE))
    I("s_add_u32", "m0", s(sLSLOT), s(sM0X)); I("s_add_u32", s(sT3), s(sLSLOT), s(sM0W))
    for jj in range(4):
        I("buffer_load_dwordx4", v(vDX + jj), s(SQ, 4), s(sSOFFX), "offen", f"offset:{1024*jj}", "lds", tag="st")
    for i in range(4):
        I("s_add_u32", "m0", s(sT3), str(1024 * i + 32 * (i >> 1)))
        I("buffer_load_dwordx4", v(vDW), s(SW1, 4), s(sSOFFW), "offen", "lds", tag="st")
        if i < 3: I("s_add_u32", s(sSOFFW), s(sSOFFW), str(4 * 3072))
    I("s_add_u32", s(sKST), s(sKST), "1"); I("s_cmp_eq_u32", s(sKST), "10"); I("s_cselect_b32", s(sKST), "0", s(sKST))
    I("s_add_u32", s(sLSLOT), s(sLSLOT), str(SLOT)); I("s_cmp_eq_u32", s(sLSLOT), str(NSLOT * SLOT)); I("s_cselect_b32", s(sLSLOT), "0", s(sLSLOT))
    I("s_add_u32", s(sSTG), s(sSTG), "1")
issue_stage()
I("s_mul_i32", s(sT0), s(sXCD), "24"); I("s_add_u32", s(sT0), s(sT0), s(sSLOT)); I("s_lshl_b32", s(sT0), s(sT0), "1")
I("s_lshr_b32", s(sPAIR), s(sCW), "1"); I("s_add_u32", s(sCH), s(sT0), s(sPAIR)); I("s_add_u32", s(sCH), s(sCH), "256")
I("s_mul_i32", s(sCVB), s(sPAIR), str(CVSZ)); I("s_add_u32", s(sCVB), s(sCVB), str(PRIV[2]))
issue_stage()
srd(SWS, pWS, WS_SIZE)
a.lines.append("  s_waitcnt vmcnt(8)")
a.barrier()
issue_stage(); issue_stage()
a.label("L_ld_loop")
a.vm = ["st"] * 24
a.wait_vm(n=16)
a.barrier()
issue_stage()
if STAMP:
    I("s_add_u32", "m0", s(sSTG), "28"); stamp("m0")
I("s_cmp_lt_u32", s(sSTG), "10"); I("s_cbranch_scc1", "L_ld_loop")
I("v_mov_b32", "v6", "0")
I("global_load_dword", v(vNC), "v6", s(pDBG, 2), "sc1", tag="nc")
h_loads()
vG, vGV = 20, 32
def gate_loads():
    I("s_min_u32", s(sT1), s(sC), "7"); I("s_lshl_b32", s(sT1), s(sT1), "4"); I("s_lshl_b32", s(sT0), s(sRB), "7"); I("s_add_u32", s(sT0), s(sT0), s(sT1))
    I("s_lshl_b32", s(sT1), s(sCW), "2"); I("s_add_u32", s(sT0), s(sT0), s(sT1))
    I("v_add_u32", v(vG), s(sT0), v(vKG))
    I("v_lshlrev_b32", v(vGV + 2), "3", v(vG))
    I("v_lshlrev_b32", v(vG + 1), "4", v(vN))
    I("v_mul_u32_u24", v(vG + 2), "1280", v(vG)); I("v_add_u32", v(vG + 2), v(vG + 2), v(vG + 1))
    for i in range(5):
        I("global_load_dwordx4", v(200 + 4 * i, 4), v(vG + 2), s(pQ, 2), f"offset:{256*i}", tag="g")
        I("global_load_dwordx4", v(220 + 4 * i, 4), v(vG + 1), s(pGW, 2), f"offset:{256*i}", tag="g")
if not GL9: gate_loads()
GX = 0 if GL9 else 10
for k in (2, 1, 0):
    a.wait_vm(n=8 * k + GX + (10 if k else 9))
    if k == 0:
        I("v_cmp_eq_u32", "vcc", "0", v(vNC)); a.nop(1)
        I("s_cbranch_vccz", "L_ld_tag")
        vm_ = list(a.vm)
        nonce_get()
        a.label("L_ld_tag")
        a.vm = vm_
        I("v_mov_b32", "v7", str(MISC)); I("ds_write_b32", "v7", v(vNC)); a.wait_lgkm(0)
    a.barrier()
stamp(5)
I("s_setprio", str(knob("p1", 1)))
def gate_compute():
    acc, x_, w_, t_ = vG + 4, vG + 6, vG + 8, vG + 10
    for i in range(20):
        unpack(x_, 200 + i); unpack(w_, 220 + i)
        if i == 0: I("v_pk_mul_f32", v(acc, 2), v(x_, 2), v(w_, 2))
        else: I("v_pk_fma_f32", v(acc, 2), v(x_, 2), v(w_, 2), v(acc, 2))
    I("v_add_f32", v(acc), v(acc), v(acc + 1))
    for off in (0x041F, 0x081F, 0x101F, 0x201F):
        I("ds_swizzle_b32", v(t_), v(acc), f"offset:{off}"); a.wait_lgkm(0)
        I("v_add_f32", v(acc), v(acc), v(t_))
    I("v_cvt_pk_bf16_f32", v(t_), v(acc), v(acc)); I("v_lshlrev_b32", v(acc), "16", v(t_))
    I("v_mul_f32", v(acc), hex(f32bits(-LOG2E)), v(acc))
    I("v_exp_f32", v(acc), v(acc)); I("v_add_f32", v(acc), "1.0", v(acc)); I("v_rcp_f32", v(acc), v(acc))
    I("v_cvt_pk_bf16_f32", v(t_), v(acc), v(acc)); I("v_lshlrev_b32", v(vGV), "16", v(t_))
    I("v_mov_b32", v(vGV + 1), v(vNC))
I("s_and_b32", s(sT0), s(sWAVE), "1"); I("s_cmp_eq_u32", s(sT0), "0"); I("s_cbranch_scc1", "L_nocp")
a.wait_vm(tag="h")
conv_hcopies()
a.label("L_nocp")
if GL9: gate_loads()
I("s_lshl_b32", s(sT0), s(sCW), "2"); I("s_add_u32", s(sT0), s(sT0), str(M_X)); I("v_mov_b32", "v6", s(sT0))
I("s_lshl_b32", s(sT0), s(sCW), "13"); I("s_add_u32", s(sT0), s(sT0), str(XCH)); I("v_add_u32", "v8", s(sT0), v(vL16))
lds_wait(9, 6, 0, "v_cmp_eq_u32", "0", sleep=0)
for ft in range(8): I("ds_read_b128", v(64 + 4 * ft, 4), "v8", f"offset:{1024*ft}")
I("v_mov_b32", "v9", "2")
a.wait_lgkm(0)
I("ds_write_b32", "v6", "v9")
a.vm = []
sXRF, sFKA = sSOFFX, sSOFFW
I("v_and_b32", "v10", "31", v(vLANE)); I("v_lshlrev_b32", "v10", "2", "v10")
I("s_lshr_b32", s(sFKA), s(sCH), "4"); I("s_lshl_b32", s(sFKA), s(sFKA), "7"); I("s_add_u32", s(sFKA), s(sFKA), hex(FK))
I("buffer_load_dword", "v11", "v10", s(SWS, 4), s(sFKA), "offen", "sc1", tag="fk")
I("s_mov_b32", s(sXRF), "0")
def early_xr():
    I("s_and_b32", s(sT0), s(sWAVE), "1"); I("s_cmp_eq_u32", s(sT0), "0"); I("s_cbranch_scc1", "L_noexr")
    vm = list(a.vm)
    a.wait_vm(tag="fk")
    I("v_cmp_ne_u32", "vcc", "v11", v(vNC)); a.nop(1)
    I("s_cbranch_vccnz", "L_noexr")
    I("s_lshl_b32", s(sT0), s(sCH), "12"); I("s_add_u32", s(sT0), s(sT0), hex(WS_KVT))
    for blk in range(4):
        I("buffer_load_dwordx4", v(XRL + 4 * blk, 4), v(vL16), s(SWS, 4), s(sT0), "offen", f"offset:{1024*blk}", "sc1")
    I("s_mov_b32", s(sXRF), "1")
    a.label("L_noexr")
    a.vm = vm
gelu_store(64, 1, early_xr)
a.wait_vm(n=0)
h_publish()
stamp(1)
I("s_cmp_ge_u32", s(sC), "8"); I("s_cbranch_scc1", "L_nogs")
gate_compute()
I("s_mov_b32", s(sT0), hex(WS_G))
I("s_mov_b32", s(sEX), "0x10001"); I("s_mov_b32", s(sEX + 1), "0x10001"); I("s_mov_b64", "exec", s(sEX, 2))
I("buffer_store_dwordx2", v(vGV, 2), v(vGV + 2), s(SWS, 4), s(sT0), "offen", "sc1", tag="gst")
I("s_mov_b64", "exec", "-1")
a.label("L_nogs")
I("s_sub_u32", s(sT0), s(sWAVE), "4")
for w in range(4):
    I("s_cmp_eq_u32", s(sT0), str(w)); I("s_cselect_b32", s(sPRV), str(PRIV[w]), s(sPRV))
I("v_and_b32", "v14", "1", v(vLANE)); I("v_lshlrev_b32", "v14", "3", "v14"); I("v_add_u32", "v14", str(M_CD + 20), "v14")
I("s_mov_b32", s(sCNT), "2")
I("s_and_b32", s(sT0), s(sWAVE), "1"); I("s_cmp_eq_u32", s(sT0), "0"); I("s_cbranch_scc1", "L_cv6")
I("s_branch", "L_cv7")

a.label("L_G")
a.vm = []
ACC = 64
XS = 128
WSR = 144
vXA0, vXA1, vWE, vWO = 8, 9, 10, 11
vCX0, vCX1, vCWE, vCWO = 12, 13, 14, 15
vBIAS = 208
vRA, vRV, vDNA, vDNV = 16, 17, 18, 19
def lds_init():
    I("v_lshlrev_b32", "v6", "2", v(vLANE)); I("v_add_u32", "v6", str(MISC), "v6"); I("v_mov_b32", "v7", "0")
    I("ds_write_b32", "v6", "v7")
def code_prefetch():
    I("s_and_b32", s(sT0), s(sSLOT), "7"); I("s_lshl_b32", s(sT0), s(sT0), "2"); I("s_add_u32", s(sT0), s(sT0), s(sCW))
    I("s_min_u32", s(sT0), s(sT0), "CODE_KB"); I("s_lshl_b32", s(sT0), s(sT0), "10")
    I("v_add_u32", "v6", s(sT0), v(vL16))
    I("global_load_dwordx4", v(244, 4), "v6", s(sPC, 2), tag="code")
lds_init()
a.wait_lgkm(0)
stamp(63, real=True); stamp(0)
srd(SWS, pWS, WS_SIZE)
I("s_add_u32", s(sT0), "s2", s(sWAVE)); I("s_cmp_lg_u32", s(sT0), "0"); I("s_cbranch_scc1", "L_nonce_skip")
I("s_memrealtime", s(sTM, 2)); a.wait_lgkm(0)
I("s_mul_i32", s(sT0), s(sTM), "0x9E3779B1"); I("s_xor_b32", s(sT0), s(sT0), s(sTM + 1)); I("s_or_b32", s(sT0), s(sT0), "1")
I("v_mov_b32", "v16", s(sT0)); I("v_mov_b32", "v17", "0")
a.lines.append("  global_store_dword v17, v16, s[42:43] sc1")
a.label("L_nonce_skip")
I("v_lshlrev_b32", "v6", "3", v(vKG))
I("s_lshl_b32", s(sT0), s(sC), "8")
I("s_add_u32", s(sT2), s(pB1), s(sT0)); I("s_addc_u32", s(sT3), s(pB1 + 1), "0")
for ft in range(8):
    I("global_load_dwordx2", v(vBIAS + 2 * ft, 2), "v6", s(sT2, 2), f"offset:{32*ft}", tag="bias1")
code_prefetch()
I("s_lshl_b32", s(sT0), s(sCW), "5")
I("v_add_u32", "v6", s(sT0), v(vN)); I("v_lshlrev_b32", "v6", "7", "v6")
I("v_lshrrev_b32", "v7", "1", v(vN)); I("v_xor_b32", "v7", "v7", v(vKG)); I("v_lshlrev_b32", "v7", "4", "v7")
I("v_add_u32", v(vXA0), "v6", "v7"); I("v_xor_b32", v(vXA1), "64", v(vXA0))
I("v_mul_u32_u24", "v6", "2080", v(vKG)); I("v_bfe_u32", "v7", v(vLANE), "2", "2"); I("v_lshl_add_u32", "v6", "v7", "7", "v6")
I("v_and_b32", "v7", "3", v(vLANE)); I("v_lshl_add_u32", "v6", "v7", "3", "v6"); I("v_add_u32", "v6", hex(WOFF), "v6")
I("v_bfe_u32", "v7", v(vLANE), "3", "1"); I("v_lshlrev_b32", "v7", "6", "v7")
I("v_add_u32", v(vWE), "v6", "v7"); I("v_sub_u32", v(vWO), "v6", "v7")
for i in range(8): I("v_mov_b32", v(XS + 8 + i), "0")
for i in range(32): I("v_mov_b32", v(WSR + 32 + i), "0")
I("s_mov_b32", s(sLSLOT), "0"); I("s_mov_b32", s(sCNT), "10")
for c_, l_ in ((vCX0, vXA0), (vCX1, vXA1), (vCWE, vWE), (vCWO, vWO)): I("v_mov_b32", v(c_), v(l_))
I("s_lshl_b32", s(sT0), s(sCW), "2"); I("s_add_u32", s(sT0), s(sT0), str(M_X)); I("v_mov_b32", v(vDNA), s(sT0))
a.wait_vm(tag="bias1")
for rt in range(2):
    for ft in range(8):
        for h in range(2): unpack(ACC + (rt * 8 + ft) * 4 + 2 * h, vBIAS + 2 * ft + h)
def g1_reads(st, ks):
    r = []
    for rt in range(2):
        r.append(("ds_read_b128", v(XS + (st * 2 + rt) * 4, 4), v(vCX1 if ks else vCX0), f"offset:{rt*2048}"))
    for ft in range(8):
        for hh in range(2):
            r.append(("ds_read_b64_tr_b16", v(WSR + (st * 8 + ft) * 4 + 2 * hh, 2), v(vCWO if ft & 2 else vCWE),
                      f"offset:{ks*8320 + hh*1024 + (ft >> 2)*512 + (ft & 3)*32}"))
    return r
def g1_mfmas(st):
    m = []
    for ft in range(8):
        for rt in range(2):
            d = v(ACC + (rt * 8 + ft) * 4, 4)
            m.append(("v_mfma_f32_16x16x32_bf16", d, v(WSR + (st * 8 + ft) * 4, 4), v(XS + (st * 2 + rt) * 4, 4), d))
    return m
def half(reads, mfmas, counted, sched):
    n_new = 0; ri = 0
    for k, m in enumerate(mfmas):
        if counted and k % 2 == 0:
            a.wait_lgkm(min(14, (14 - 2 * (k // 2)) + n_new))
        I(*m)
        for _ in range(sched[k]):
            I(*reads[ri]); ri += 1; n_new += 1
    assert ri == len(reads)
stamp(17)
a.label("L_g1")
a.barrier()
if STAMP:
    I("s_sub_u32", "m0", "30", s(sCNT)); stamp("m0")
half(g1_reads(0, 0), g1_mfmas(1), False, [2, 2] + [1] * 14)
half(g1_reads(1, 1), g1_mfmas(0), True, [0, 2, 1, 2, 1, 2, 1, 2, 1, 2, 2, 2, 0, 0, 0, 0])
I("s_add_u32", s(sLSLOT), s(sLSLOT), str(SLOT))
I("s_cmp_eq_u32", s(sLSLOT), str(NSLOT * SLOT)); I("s_cselect_b32", s(sLSLOT), "0", s(sLSLOT))
for c_, l_ in ((vCX0, vXA0), (vCX1, vXA1), (vCWE, vWE), (vCWO, vWO)): I("v_add_u32", v(c_), s(sLSLOT), v(l_))
I("s_sub_u32", s(sCNT), s(sCNT), "1"); I("s_cmp_lg_u32", s(sCNT), "0")
a.wait_lgkm(0)
I("s_cbranch_scc1", "L_g1")
m = g1_mfmas(1)
for x in m[1::2]: I(*x)
for x in m[0::2]: I(*x)
I("v_mov_b32", "v7", str(MISC)); I("ds_read_b32", v(vNC), "v7")
stamp(1)
I("s_lshl_b32", s(sT0), s(sCW), "13"); I("s_add_u32", s(sT0), s(sT0), str(XCH)); I("v_add_u32", "v8", s(sT0), v(vL16))
for ft in range(8): I("ds_write_b128", "v8", v(ACC + (8 + ft) * 4, 4), f"offset:{1024*ft}")
I("v_mov_b32", "v6", "1"); I("ds_write_b32", v(vDNA), "v6")
I("v_and_b32", "v14", "1", v(vLANE)); I("v_lshlrev_b32", "v14", "3", "v14"); I("v_add_u32", "v14", str(M_CD + 20), "v14")
a.vm = []
I("v_min_u32", "v10", "47", v(vLANE)); I("v_lshlrev_b32", "v10", "2", "v10")
I("s_lshl_b32", s(sT5), s(sC2), "8"); I("s_add_u32", s(sT5), s(sT5), hex(FW))
I("buffer_load_dword", "v11", "v10", s(SWS, 4), s(sT5), "offen", "sc1")
gelu_store(ACC, 0)
stamp(9)
a.wait_vm(n=0, lgkm=0)
h_publish()
stamp(2)
lds_wait(8, 7, M_HC - MISC, "v_cmp_ne_u32", "8", sleep=1)
I("v_cmp_ne_u32", "vcc", "v11", v(vNC)); a.nop(1)
I("s_cbranch_vccz", "L_fwok")
a.label("L_fwpoll")
poll(11, 10, sT5, vNC)
a.label("L_fwok")
g2_setup()

a.label("L_gemm2")
for i in range(80): I("v_mov_b32", v(AC2 + i), "0")
I("v_mov_b32", "v7", str(MISC))
I("s_cmp_lg_u32", s(sCW), "0"); I("s_cbranch_scc1", "L_fhwait")
I("v_min_u32", "v6", "11", v(vLANE)); I("v_lshlrev_b32", "v6", "2", "v6")
I("s_lshr_b32", s(sT0), s(sR2), "1"); I("s_lshl_b32", s(sT0), s(sT0), "8"); I("s_add_u32", s(sT0), s(sT0), hex(FH))
vmsave = list(a.vm)
poll(8, 6, sT0, vNC, sleep=PSL)
I("ds_write_b32", "v7", v(vNC), f"offset:{M_FHS - MISC}")
a.label("L_fhwait")
a.vm = vmsave
lds_wait(8, 7, M_FHS - MISC, "v_cmp_ne_u32", v(vNC), sleep=1)
stamp(3)
for g in range(4):
    h_loads2(g)
    if g >= WPRE: w_loads(g)
for g in range(12):
    a.wait_vm(tag=f"h{g}")
    a.wait_vm(tag=f"w{g}")
    for ct in range(5):
        for rt in range(4):
            d = v(AC2 + (rt * 5 + ct) * 4, 4)
            I("v_mfma_f32_16x16x32_bf16", d, v(Wf[g][ct], 4), v(Hf[g][rt], 4), d)
    pool.extend(Wf[g] + Hf[g])
    if g + 4 < 12: h_loads2(g + 4); w_loads(g + 4)
    if g == YGO: I("ds_write_b32", "v7", v(vNC), f"offset:{M_G2L - MISC}")
stamp(4)
lds_wait(8, 14, 0, "v_cmp_eq_u32", "0", sleep=1)
I("v_mul_u32_u24", "v6", str(REDP), v(vN)); I("v_lshl_add_u32", "v6", v(vKG), "4", "v6")
I("s_mul_i32", s(sT0), s(sCW), str(REDW)); I("v_add_u32", "v6", s(sT0), "v6")
a.nop(6)
for ct in range(5):
    for rt in range(4):
        I("ds_write_b128", "v6", v(AC2 + (rt * 5 + ct) * 4, 4), f"offset:{RED + rt*16*REDP + ct*64}")
I("s_branch", "L_final")


a.label("L_H")
a.vm = []
I("s_lshl_b32", s(sHID), s(sXCD), "3"); I("s_add_u32", s(sHID), s(sHID), s(sSLOT)); I("s_sub_u32", s(sHID), s(sHID), "24")
lds_init()
vG = 20
vGV = 216
def g_loads():
    I("s_lshl_b32", s(sT0), s(sHID), "5"); I("s_add_u32", s(sT0), s(sT0), s(sCNT))
    I("v_add_u32", v(vG), s(sT0), v(vKG))
    I("v_lshlrev_b32", v(vGV + 2), "3", v(vG))
    I("v_lshlrev_b32", v(vG + 1), "4", v(vN))
    I("v_mul_u32_u24", v(vG + 2), "1280", v(vG)); I("v_add_u32", v(vG + 2), v(vG + 2), v(vG + 1))
    for i in range(5):
        I("global_load_dwordx4", v(160 + 4 * i, 4), v(vG + 2), s(pQ, 2), f"offset:{256*i}", tag="g")
        I("global_load_dwordx4", v(180 + 4 * i, 4), v(vG + 1), s(pGW, 2), f"offset:{256*i}", tag="g")
sTT, sHF = sU0, sU1
I("s_lshr_b32", s(sTT), s(sHID), "1"); I("s_and_b32", s(sHF), s(sHID), "1")
I("v_lshrrev_b32", "v16", "3", v(vLANE)); I("v_mul_u32_u24", "v16", "1280", "v16")
I("v_and_b32", "v17", "7", v(vLANE)); I("v_lshl_add_u32", "v16", "v17", "4", "v16")
I("s_mul_i32", s(sT0), s(sTT), str(64 * 1280)); I("s_mul_i32", s(sT1), s(sHF), "640"); I("s_add_u32", s(sT0), s(sT0), s(sT1))
I("s_min_u32", s(sT3), s(sWAVE), "4"); I("s_lshl_b32", s(sT1), s(sT3), "7"); I("s_add_u32", s(sT1), s(sT1), s(sT0))
I("v_add_u32", "v17", s(sT1), "v16"); I("v_subrev_u32", "v17", str(8 * 1280), "v17")
I("s_mul_i32", s(sT1), s(sWAVE), str(8 * 1280)); I("s_add_u32", s(sT0), s(sT0), s(sT1))
I("v_add_u32", "v16", s(sT0), "v16")
I("s_mul_i32", s(sT3), s(sT3), str(KSUB))
I("s_mul_i32", s(sT2), s(sWAVE), "1040")
a.wait_lgkm(0)
stamp(63, real=True); stamp(0)
srd(SA, pK, 2621440); srd(SB, pV, 2621440)
for b in range(5):
    I("s_movk_i32", s(sT1), str(128 * b))
    I("s_add_u32", "m0", s(sT2), str(b * KSUB + 1040))
    I("buffer_load_dwordx4", "v16", s(SA, 4), s(sT1), "offen", "lds", tag="kv")
    I("s_add_u32", "m0", s(sT2), str(b * KSUB + 1040 * 9))
    I("buffer_load_dwordx4", "v16", s(SB, 4), s(sT1), "offen", "lds", tag="kv")
I("s_mov_b32", "m0", s(sT3))
I("buffer_load_dwordx4", "v17", s(SA, 4), "0", "offen", "lds", tag="kv")
vSKR = 48
srd(SB, pSK, 5120)
I("v_lshrrev_b32", "v16", "3", v(vLANE)); I("v_lshlrev_b32", "v16", "4", "v16")
I("s_mul_i32", s(sT0), s(sHF), "2560"); I("s_lshl_b32", s(sT1), s(sWAVE), "7"); I("s_add_u32", s(sT0), s(sT0), s(sT1))
for j in range(3):
    I("buffer_load_dwordx4", v(vSKR + 4 * j, 4), "v16", s(SB, 4), s(sT0), "offen", f"offset:{1024*j}", tag="sk")
sUU, sC2W = sM0X, sM0W
I("s_mul_i32", s(sT0), s(sHID), "3"); I("s_add_u32", s(sT0), s(sT0), s(sWAVE)); I("s_sub_u32", s(sT0), s(sT0), "5")
I("s_lshr_b32", s(sUU), s(sT0), "2"); I("s_and_b32", s(sT0), s(sT0), "3"); I("s_lshl_b32", s(sC2W), s(sT0), "1")
I("s_mul_i32", s(sWBASE), s(sWAVE), "10240"); I("s_add_u32", s(sWBASE), s(sWBASE), str(5 * KSUB - 5 * 10240))
I("s_cmp_lt_u32", s(sWAVE), "5"); I("s_cbranch_scc1", "L_now2")
srd(SA, pW2, 1536 * 1280)
I("s_mul_i32", s(sT2), s(sUU), str(32 * 1280)); I("s_mul_i32", s(sT3), s(sC2W), "160"); I("s_add_u32", s(sT2), s(sT2), s(sT3))
I("s_add_u32", s(sT3), s(sT2), "160")
for i in range(5):
    I("v_add_u32", "v24", str(64 * i), v(vLANE))
    I("v_mul_u32_u24", "v25", "6554", "v24"); I("v_lshrrev_b32", "v25", "16", "v25")
    I("v_mul_u32_u24", "v26", "10", "v25"); I("v_sub_u32", "v26", "v24", "v26")
    I("v_mul_u32_u24", "v25", "1280", "v25"); I("v_lshl_add_u32", "v25", "v26", "4", "v25")
    for hf in range(2):
        I("s_add_u32", "m0", s(sWBASE), str(1024 * i + 5120 * hf))
        I("buffer_load_dwordx4", "v25", s(SA, 4), s(sT2 + hf), "offen", "lds", tag="sk")
a.label("L_now2")
srd(SWS, pWS, WS_SIZE)
ad = 16
I("v_and_b32", v(ad), "7", v(vLANE)); I("v_mul_u32_u24", v(ad), "1040", v(ad))
I("v_lshrrev_b32", v(ad + 1), "3", v(vLANE)); I("v_lshl_add_u32", v(ad), v(ad + 1), "2", v(ad))
I("s_lshr_b32", s(sT0), s(sWAVE), "2"); I("s_mul_i32", s(sT0), s(sT0), str(KSUB)); I("s_lshl_b32", s(sT1), s(sCW), "5"); I("s_add_u32", s(sT0), s(sT0), s(sT1))
I("v_add_u32", v(ad), s(sT0), v(ad))
I("v_lshlrev_b32", v(ad + 1), "13", v(ad + 1))
I("v_and_b32", v(ad + 2), "7", v(vLANE)); I("v_lshlrev_b32", v(ad + 2), "4", v(ad + 2))
I("v_sub_u32", v(ad + 1), v(ad + 1), v(ad + 2)); I("v_add_u32", v(ad + 1), "112", v(ad + 1))
I("v_add_u32", v(ad + 2), "4096", v(ad + 1))
I("s_mul_i32", s(sT0), s(sHF), "20"); I("s_add_u32", s(sT0), s(sT0), s(sWAVE))
I("s_lshl_b32", s(sT1), s(sT0), "7"); I("s_lshl_b32", s(sT2), s(sTT), "2"); I("s_add_u32", s(sT1), s(sT1), s(sT2)); I("s_add_u32", s(sFLAG), s(sT1), hex(FK))
I("s_lshl_b32", s(sT0), s(sT0), "16")
I("s_lshl_b32", s(sT1), s(sTT), "7"); I("s_sub_u32", s(sT0), s(sT0), s(sT1)); I("s_add_u32", s(sT4), s(sT0), hex(WS_KVT + 4080 - 112))
KR, VR, KU, S, P, OUT, O2 = 64, 76, 96, 118, 126, 132, 140
def kv_reads():
    for i in range(11):
        r_ = 5 + i
        I("ds_read_b32", v(KR + i), v(ad), f"offset:{(r_ >> 3)*1040 + (r_ & 7)*128}")
    for i in range(8): I("ds_read_b32", v(VR + i), v(ad), f"offset:{9*1040 + i*128}")
    I("v_add_u32", v(ad), str(2 * KSUB), v(ad))
I("s_cmp_lt_u32", s(sWAVE), "4"); I("s_cselect_b32", s(sCNT), "3", "2"); I("s_cselect_b32", s(sEX), "7", "3"); I("s_mov_b32", s(sEX + 1), "0")
a.wait_vm(tag="sk")
a.barrier()
stamp(18)
kv_reads()
I("s_cmp_lt_u32", s(sWAVE), "5"); I("s_cbranch_scc1", "L_now2b")
I("v_lshrrev_b32", "v24", "2", v(vLANE)); I("v_mul_u32_u24", "v24", "160", "v24")
I("v_and_b32", "v25", "3", v(vLANE)); I("v_lshl_add_u32", "v24", "v25", "3", "v24")
I("v_add_u32", "v24", s(sWBASE), "v24")
for hf in range(2):
    for ct in range(5):
        for hh in range(2):
            I("ds_read_b64_tr_b16", v(160 + 20 * hf + 4 * ct + 2 * hh, 2), "v24", f"offset:{5120*hf + 32*ct + hh*16*160}")
I("s_lshl_b32", s(sT0), s(sC2W), "8"); I("s_lshl_b32", s(sT1), s(sUU), "2"); I("s_add_u32", s(sT0), s(sT0), s(sT1))
I("s_add_u32", s(sSTG), s(sT0), hex(FW))
I("s_mul_i32", s(sT0), s(sC2W), "48"); I("s_add_u32", s(sT0), s(sT0), s(sUU)); I("s_mul_i32", s(sT0), s(sT0), "5120")
I("s_add_u32", s(sT2), s(sT0), hex(WS_W2F))
I("v_add_u32", "v25", "4096", v(vL16))
a.wait_lgkm(0)
for hf in range(2):
    for ct in range(5):
        if ct < 4: I("buffer_store_dwordx4", v(160 + 20 * hf + 4 * ct, 4), v(vL16), s(SWS, 4), s(sT2), "offen", f"offset:{1024*ct}", "sc1", tag="pst")
        else: I("buffer_store_dwordx4", v(160 + 20 * hf + 4 * ct, 4), "v25", s(SWS, 4), s(sT2), "offen", "sc1", tag="pst")
    if hf == 0: I("s_add_u32", s(sT2), s(sT2), str(48 * 5120))
a.label("L_now2b")
I("v_mov_b32", "v6", "0")
I("global_load_dword", v(vNC), "v6", s(pDBG, 2), "sc1")
I("s_mov_b32", s(sT2), "0x05040100"); I("s_mov_b32", s(sT3), "0x07060302")
a.label("L_kv")
for j in range(4):
    for ch in range(2):
        src = vSKR + 2 * ch + (j >> 1)
        if j & 1: I("v_and_b32", v(S + 2 * j + ch), "0xffff0000", v(src))
        else: I("v_lshlrev_b32", v(S + 2 * j + ch), "16", v(src))
for i in range(8): I("v_mov_b32", v(vSKR + i), v(vSKR + 4 + i))
a.wait_lgkm(0)
for i in range(11): unpack(KU + 2 * i, KR + i)
for t_ in range(8): unpack(224 + 2 * t_, VR + t_)
kv_reads()
for t_ in range(8):
    a.I("v_pk_mul_f32", v(P, 2), v(KU + 2 * t_, 2), v(S + 6, 2))
    for j in (2, 1, 0):
        a.I("v_pk_fma_f32", v(P, 2), v(KU + 2 * (t_ + 3 - j), 2), v(S + 2 * j, 2), v(P, 2))
    a.I("v_pk_mul_f32", v(P, 2), v(P, 2), v(224 + 2 * t_, 2))
    I("v_cvt_pk_bf16_f32", v(OUT + t_), v(P), v(P + 1))
for ch in range(2):
    for j in range(4):
        I("v_perm_b32", v(O2 + 4 * ch + j), v(OUT + 6 - 2 * j), v(OUT + 7 - 2 * j), s(sT2 + ch))
I("buffer_store_dwordx4", v(O2, 4), v(ad + 1), s(SWS, 4), s(sT4), "offen", "sc1", tag="pst")
I("buffer_store_dwordx4", v(O2 + 4, 4), v(ad + 2), s(SWS, 4), s(sT4), "offen", "sc1", tag="pst")
I("s_add_u32", s(sT4), s(sT4), str(128 * 4096))
I("s_sub_u32", s(sCNT), s(sCNT), "1"); I("s_cmp_lg_u32", s(sCNT), "0"); I("s_cbranch_scc1", "L_kv")
stamp(19)
a.wait_vm(n=0, lgkm=0)
I("v_cmp_eq_u32", "vcc", "0", v(vNC)); a.nop(1)
I("s_cbranch_vccz", "L_h_tag")
nonce_get()
a.label("L_h_tag")
I("v_lshlrev_b32", "v6", "10", v(vLANE))
I("s_mov_b64", "exec", s(sEX, 2))
I("buffer_store_dword", v(vNC), "v6", s(SWS, 4), s(sFLAG), "offen", "sc1", tag="flag")
I("s_mov_b64", "exec", "-1")
I("s_cmp_lt_u32", s(sWAVE), "5"); I("s_cbranch_scc1", "L_nofwf")
I("v_lshlrev_b32", "v6", "8", v(vLANE))
flag_store(6, sSTG, vNC, nlanes=2, zero=False)
a.label("L_nofwf")
stamp(5)
I("s_lshl_b32", s(sCH), s(sHID), "2"); I("s_add_u32", s(sCH), s(sCH), s(sCW))
I("s_cmp_lt_u32", s(sWAVE), "4"); I("s_cbranch_scc1", "L_nohh")
h_loads()
a.label("L_nohh")
a.barrier()
for w in range(4):
    I("s_cmp_eq_u32", s(sCW), str(w)); I("s_cselect_b32", s(sPRV), str(PRIV[w]), s(sPRV))
    I("s_cselect_b32", s(sCVB), str(CVH[w] if w < 2 else PRIV[w]), s(sCVB))
I("v_and_b32", "v14", "1", v(vLANE)); I("v_lshlrev_b32", "v14", "2", "v14"); I("v_add_u32", "v14", str(M_CD + 16), "v14")
I("s_cmp_ge_u32", s(sWAVE), "4"); I("s_cbranch_scc1", "L_conv")
I("v_min_u32", "v10", "47", v(vLANE)); I("v_lshlrev_b32", "v10", "2", "v10")
I("s_lshl_b32", s(sT5), s(sC2), "8"); I("s_add_u32", s(sT5), s(sT5), hex(FW))
I("v_mov_b32", "v7", str(MISC))
I("s_cmp_lg_u32", s(sWAVE), "0"); I("s_cbranch_scc1", "L_hfw")
poll(11, 10, sT5, vNC, sleep=16)
I("ds_write_b32", "v7", v(vNC), f"offset:{M_FWOK - MISC}")
a.label("L_hfw")
lds_wait(8, 7, M_FWOK - MISC, "v_cmp_ne_u32", v(vNC), sleep=4)
I("s_branch", "L_fwok")

a.label("L_cv7")
a.vm = []
I("s_cmp_eq_u32", s(sXRF), "1"); I("s_cbranch_scc1", "L_havexr")
conv_fetch()
a.wait_vm(tag="xr")
a.label("L_havexr")
conv_xwrite()
I("s_lshl_b32", s(sT0), s(sPAIR), "3"); I("s_add_u32", s(sT0), s(sT0), str(M_CV)); I("v_mov_b32", "v7", s(sT0))
I("v_mov_b32", "v6", "1"); I("ds_write_b32", "v7", "v6")
I("s_mov_b32", s(sT5), "0")
I("s_branch", "L_cvgo")
a.label("L_cv6")
I("s_lshl_b32", s(sT0), s(sPAIR), "3"); I("s_add_u32", s(sT0), s(sT0), str(M_CV)); I("v_mov_b32", "v7", s(sT0))
lds_wait(6, 7, 0, "v_cmp_eq_u32", "0", sleep=1)
I("s_movk_i32", s(sT5), "256")
I("s_branch", "L_cvgo")
a.label("L_conv")
a.vm = []
I("s_setprio", str(knob("p1", 1)))
conv_fetch()
conv_hcopies()
a.wait_vm(tag="xr")
conv_xwrite()
I("s_mov_b32", s(sCNT), "4"); I("s_mov_b32", s(sT5), "0")
a.label("L_cvgo")
I("s_add_u32", s(sT5), s(sT5), s(sCVB))
YA = 16
vAA, vBA = 8, 9
I("v_lshl_add_u32", "v12", v(vKG), "3", v(vN)); I("v_add_u32", "v12", "1", "v12")
I("v_and_b32", "v11", "3", "v12"); I("v_sub_u32", "v12", "v12", "v11"); I("v_lshlrev_b32", "v12", "1", "v12")
I("v_mul_u32_u24", "v11", str(HCP), "v11"); I("v_add3_u32", v(vAA), "v12", "v11", s(sT5))
I("v_lshlrev_b32", "v12", "5", v(vN)); I("v_lshlrev_b32", "v11", "4", v(vKG)); I("v_sub_u32", "v12", "v11", "v12")
I("v_add_u32", "v12", str(XR + 480), "v12"); I("v_add_u32", v(vBA), s(sT5), "v12")
a.wait_lgkm(0)
for i in range(32): I("v_mov_b32", v(YA + i), "0")
stamp(3)
FA = [64, 128]; FB = [96, 160]
def cv_reads(st, extra):
    r = []
    for x in range(8):
        r.append(("ds_read_b64", v(FA[st] + 4 * x, 2), v(vAA), f"offset:{512*x + extra}"))
        r.append(("ds_read_b64", v(FA[st] + 4 * x + 2, 2), v(vAA), f"offset:{512*x + extra + 8}"))
        r.append(("ds_read_b128", v(FB[st] + 4 * x, 4), v(vBA), f"offset:{3584 - 512*x + extra}"))
    return r
def cv_mfmas(st):
    m = []
    for pa in range(8):
        for qa in range(8 - pa):
            d = v(YA + 4 * (pa + qa), 4)
            m.append(("v_mfma_f32_16x16x32_bf16", d, v(FA[st] + 4 * pa, 4), v(FB[st] + 4 * qa, 4), d))
    return m
for x in cv_reads(0, 0): I(*x)
a.wait_lgkm(0)
a.label("L_cv")
interleave(cv_reads(1, 64), cv_mfmas(0))
a.wait_lgkm(0)
interleave(cv_reads(0, 128), cv_mfmas(1))
I("v_add_u32", v(vAA), "128", v(vAA)); I("v_add_u32", v(vBA), "128", v(vBA))
I("s_sub_u32", s(sCNT), s(sCNT), "1"); I("s_cmp_lg_u32", s(sCNT), "0")
a.wait_lgkm(0)
I("s_cbranch_scc1", "L_cv")
I("s_setprio", "3")
stamp(4)
I("s_cmp_ge_u32", s(sSLOT), "24"); I("s_cbranch_scc1", "L_cvepi")
I("s_lshl_b32", s(sT0), s(sPAIR), "13"); I("s_add_u32", s(sT0), s(sT0), "86016"); I("v_add_u32", "v10", s(sT0), v(vL16))
I("s_and_b32", s(sT0), s(sWAVE), "1"); I("s_cmp_eq_u32", s(sT0), "1"); I("s_cbranch_scc1", "L_cvadd")
I("v_and_b32", "v11", "3", v(vLANE)); I("v_lshlrev_b32", "v11", "2", "v11"); I("v_add_u32", "v11", str(M_X), "v11")
lds_wait(6, 11, 0, "v_cmp_gt_u32", "2", sleep=0)
for a_ in range(8): I("ds_write_b128", "v10", v(YA + 4 * a_, 4), f"offset:{1024*a_}")
I("v_mov_b32", "v6", "1"); I("ds_write_b32", "v7", "v6", "offset:4")
I("s_branch", "L_preepi")
a.label("L_cvadd")
lds_wait(6, 7, 4, "v_cmp_eq_u32", "0", sleep=0)
for a_ in range(8): I("ds_read_b128", v(64 + 4 * a_, 4), "v10", f"offset:{1024*a_}")
a.wait_lgkm(0)
for i in range(32): I("v_add_f32", v(YA + i), v(YA + i), v(64 + i))
a.label("L_cvepi")
I("v_lshlrev_b32", "v10", "5", v(vN)); I("v_lshl_add_u32", "v10", v(vKG), "3", "v10")
I("v_sub_u32", "v11", str(XR + 4088 - 3584), "v10"); I("v_add_u32", "v11", s(sCVB), "v11")
I("v_add_u32", "v10", s(sCVB), "v10")
for a_ in range(8): I("ds_read_b64", v(64 + 2 * a_, 2), "v11", f"offset:{3584 - 512*a_}")
I("v_lshlrev_b32", "v12", "16", "v15"); I("v_mov_b32", "v13", "v12")
a.wait_lgkm(0)
for a_ in range(8):
    e = 64 + 2 * a_; y = YA + 4 * a_
    K0, K1 = 96, 98
    I("v_and_b32", v(K0), "0xffff0000", v(e + 1)); I("v_lshlrev_b32", v(K0 + 1), "16", v(e + 1))
    I("v_and_b32", v(K1), "0xffff0000", v(e)); I("v_lshlrev_b32", v(K1 + 1), "16", v(e))
    I("v_pk_fma_f32", v(y, 2), v(K0, 2), "v[12:13]", v(y, 2)); I("v_pk_fma_f32", v(y + 2, 2), v(K1, 2), "v[12:13]", v(y + 2, 2))
    I("v_cvt_pk_bf16_f32", v(e), v(y), v(y + 1)); I("v_cvt_pk_bf16_f32", v(e + 1), v(y + 2), v(y + 3))
    I("ds_write_b64", "v10", v(e, 2), f"offset:{512*a_}")
a.wait_lgkm(0)
I("v_add_u32", "v10", s(sCVB), v(vL16))
for blk in range(4): I("ds_read_b128", v(96 + 4 * blk, 4), "v10", f"offset:{1024*blk}")
I("s_lshl_b32", s(sT0), s(sCH), "12"); I("s_add_u32", s(sT0), s(sT0), hex(WS_YT))
a.wait_lgkm(0)
I("s_lshl_b32", s(sT1), s(sWAVE), "2"); I("s_add_u32", s(sT1), s(sT1), str(M_CD)); I("v_mov_b32", "v6", s(sT1)); I("v_mov_b32", "v7", "1")
I("ds_write_b32", "v6", "v7")
for blk in range(4):
    I("buffer_store_dwordx4", v(96 + 4 * blk, 4), v(vL16), s(SWS, 4), s(sT0), "offen", f"offset:{1024*blk}", "sc1", tag="yst")
I("s_mul_i32", s(sT0), s(sCH), "52429"); I("s_lshr_b32", s(sT0), s(sT0), "22")
I("s_mul_i32", s(sT1), s(sT0), "80"); I("s_sub_u32", s(sT1), s(sCH), s(sT1))
I("s_lshl_b32", s(sT0), s(sT0), "9"); I("s_lshl_b32", s(sT1), s(sT1), "2"); I("s_add_u32", s(sT0), s(sT0), s(sT1))
I("s_add_u32", s(sT0), s(sT0), hex(FY))
a.wait_vm(n=0)
flag_store(6, sT0, vNC)
stamp(12)
a.label("L_preepi")
a.vm = []
stamp(6)
I("v_lshlrev_b32", "v8", "2", v(vLANE)); I("v_add_u32", "v8", str(M_G), "v8"); I("v_mov_b32", "v9", str(M_YS))
I("s_cmp_lg_u32", s(sWAVE), "4"); I("s_cbranch_scc1", "L_yswait")
lds_wait(7, 14, 0, "v_cmp_eq_u32", "0", sleep=4)
lds_wait(7, 9, M_G2L - M_YS, "v_cmp_ne_u32", v(vNC), sleep=4)
I("v_min_u32", "v6", "39", v(vLANE)); I("v_lshlrev_b32", "v6", "3", "v6")
I("s_lshl_b32", s(sT1), s(sC2), "9"); I("s_add_u32", s(sT1), s(sT1), hex(FY))
I("v_lshlrev_b32", "v7", "3", v(vLANE))
I("s_lshl_b32", s(sT0), s(sR2), "9"); I("s_add_u32", s(sT0), s(sT0), hex(WS_G))
I("s_mov_b32", s(sPOLL), "1" if NOPOLL else "0x40000")
a.label("L_yp")
I("buffer_load_dwordx2", "v[18:19]", "v6", s(SWS, 4), s(sT1), "offen", "sc1")
I("buffer_load_dwordx2", "v[16:17]", "v7", s(SWS, 4), s(sT0), "offen", "sc1")
a.wait_vm(n=0)
I("v_xor_b32", "v18", "v18", v(vNC)); I("v_xor_b32", "v19", "v19", v(vNC)); I("v_xor_b32", "v17", "v17", v(vNC))
I("v_or3_b32", "v18", "v18", "v19", "v17")
I("v_cmp_ne_u32", "vcc", "0", "v18"); a.nop(1)
I("s_cbranch_vccz", "L_ypd")
I("s_sleep", str(YSL)); I("s_sub_u32", s(sPOLL), s(sPOLL), "1"); I("s_cmp_lg_u32", s(sPOLL), "0"); I("s_cbranch_scc1", "L_yp")
a.label("L_ypd")
I("ds_write_b32", "v8", "v16"); I("ds_write_b32", "v9", v(vNC))
a.label("L_yswait")
lds_wait(7, 9, 0, "v_cmp_ne_u32", v(vNC), sleep=4)
I("ds_read_b32", "v16", "v8")
I("s_lshl_b32", s(sT0), s(sC2), "2"); I("s_add_u32", s(sT0), s(sT0), s(sCW))
stamp(9)
I("s_mul_i32", s(sT0), s(sT0), str(20 * 4096)); I("s_lshl_b32", s(sT1), s(sR2), "7"); I("s_add_u32", s(sT0), s(sT0), s(sT1))
I("s_add_u32", s(sT0), s(sT0), hex(WS_YT))
I("v_lshlrev_b32", "v6", "12", v(vKG)); I("v_lshl_add_u32", "v6", v(vN), "3", "v6")
for i in range(5):
    I("buffer_load_dwordx2", v(64 + 2 * i, 2), "v6", s(SWS, 4), s(sT0), "offen", "sc1", tag="yl")
    if i < 4: I("s_add_u32", s(sT0), s(sT0), str(4 * 4096))
I("v_lshlrev_b32", "v6", "7", v(vKG)); I("v_lshl_add_u32", "v6", v(vN), "3", "v6"); I("v_add_u32", "v6", s(sPRV), "v6")
I("v_bfe_u32", "v7", v(vLANE), "2", "2"); I("v_lshlrev_b32", "v7", "7", "v7")
I("v_lshl_add_u32", "v7", v(vKG), "5", "v7"); I("v_and_b32", "v8", "3", v(vLANE)); I("v_lshl_add_u32", "v7", "v8", "3", "v7")
I("v_add_u32", "v7", s(sPRV), "v7")
I("v_mul_u32_u24", "v8", "40", v(vLANE)); I("v_add_u32", "v8", s(sPRV), "v8")
a.wait_vm(tag="yl", lgkm=0)
I("v_mov_b32", "v17", "v16")
for i in range(5): I("ds_write_b64", "v6", v(64 + 2 * i, 2), f"offset:{512*i}")
a.wait_lgkm(0)
for i in range(5): I("ds_read_b64_tr_b16", v(64 + 2 * i, 2), "v7", f"offset:{512*i}")
a.wait_lgkm(0)
for i in range(5):
    for h in range(2):
        Y = 96 + 2 * h
        unpack(Y, 64 + 2 * i + h)
        I("v_pk_mul_f32", v(Y, 2), v(Y, 2), "v[16:17]")
        I("v_cvt_pk_bf16_f32", v(80 + 2 * i + h), v(Y), v(Y + 1))
    I("ds_write_b64", "v8", v(80 + 2 * i, 2), f"offset:{GYO + 8*i}")
stamp(7)

a.label("L_final")
a.vm = []
srd(SO, pOUT, 2621440)
srd(SQ, pQ, 2621440)
I("s_mul_i32", s(sT0), s(sC2), "160"); I("s_add_u32", s(sT2), s(pB2), s(sT0)); I("s_addc_u32", s(sT3), s(pB2 + 1), "0")
I("s_lshl_b32", s(sT1), s(sR2), "6"); I("s_mul_i32", s(sT1), s(sT1), "1280"); I("s_add_u32", s(sT4), s(sT1), s(sT0))
def gy_addr(dst, quad, row, t0, t1):
    I("v_mul_u32_u24", v(t0), "13108", v(quad)); I("v_lshrrev_b32", v(t0), "16", v(t0))
    I("v_mul_u32_u24", v(t1), "5", v(t0)); I("v_sub_u32", v(t1), v(quad), v(t1))
    I("v_mul_u32_u24", v(dst), "40", v(row)); I("v_lshl_add_u32", v(dst), v(t1), "3", v(dst))
    I("v_mov_b32", v(t1), str(PRIV[0] + GYO))
    for b in range(1, 4):
        I("v_cmp_eq_u32", "vcc", str(b), v(t0)); I("v_mov_b32", v(t0 + 3), str(PRIV[b] + GYO))
        I("v_cndmask_b32", v(t1), v(t1), v(t0 + 3), "vcc")
    I("v_add_u32", v(dst), v(dst), v(t1))
def fin_setup(idreg, b):
    T = 124
    I("v_mul_u32_u24", v(b), "6554", v(idreg)); I("v_lshrrev_b32", v(b), "16", v(b))
    I("v_mul_u32_u24", v(b + 1), "10", v(b)); I("v_sub_u32", v(b + 1), v(idreg), v(b + 1))
    I("v_lshlrev_b32", v(b + 5), "4", v(b + 1))
    I("global_load_dwordx4", v(b + 8, 4), v(b + 5), s(sT2, 2), tag="b2")
    I("v_mul_u32_u24", v(b + 6), "1280", v(b)); I("v_add_u32", v(b + 5), v(b + 5), v(b + 6))
    I("buffer_load_dwordx4", v(b + 12, 4), v(b + 5), s(SQ, 4), s(sT4), "offen", tag="b2")
    I("v_mul_u32_u24", v(b + 2), str(REDP), v(b)); I("v_lshl_add_u32", v(b + 2), v(b + 1), "5", v(b + 2))
    I("v_lshlrev_b32", v(T + 2), "1", v(b + 1)); gy_addr(b + 3, T + 2, b, T, T + 1)
    I("v_add_u32", v(T + 2), "1", v(T + 2)); gy_addr(b + 7, T + 2, b, T, T + 1)
    I("v_lshlrev_b32", v(b + 4), "2", v(b)); I("v_add_u32", v(b + 4), str(M_G), v(b + 4))
def fin_item(b):
    P = 160
    for w in range(4):
        I("ds_read_b128", v(P + 8 * w, 4), v(b + 2), f"offset:{RED + w*REDW}")
        I("ds_read_b128", v(P + 8 * w + 4, 4), v(b + 2), f"offset:{RED + w*REDW + 16}")
    I("ds_read_b64", v(P + 32, 2), v(b + 3)); I("ds_read_b64", v(P + 34, 2), v(b + 7))
    I("ds_read_b32", v(P + 36), v(b + 4))
    a.wait_vm(tag="b2", lgkm=0)
    G1, Qq, B, GA = P + 38, P + 40, P + 42, P + 44
    I("v_sub_f32", v(G1), "1.0", v(P + 36)); I("v_mov_b32", v(G1 + 1), v(G1))
    for j in range(4):
        x = P + 2 * j
        unpack(B, b + 8 + j); unpack(GA, P + 32 + j); unpack(Qq, b + 12 + j)
        a.I("v_pk_add_f32", v(x, 2), v(x, 2), v(x + 8, 2)); a.I("v_pk_add_f32", v(x + 16, 2), v(x + 16, 2), v(x + 24, 2))
        a.I("v_pk_add_f32", v(x, 2), v(x, 2), v(B, 2))
        a.I("v_pk_mul_f32", v(GA, 2), v(GA, 2), v(Qq, 2))
        a.I("v_pk_add_f32", v(x, 2), v(x, 2), v(x + 16, 2))
        a.I("v_pk_fma_f32", v(x, 2), v(x, 2), v(G1, 2), v(GA, 2))
        I("v_cvt_pk_bf16_f32", v(P + 48 + j), v(x), v(x + 1))
    I("buffer_store_dwordx4", v(P + 48, 4), v(b + 5), s(SO, 4), s(sT4), "offen", tag="out")
fin_setup(0, 96)
I("v_add_u32", "v120", "256", "v0"); I("v_min_u32", "v120", "639", "v120")
fin_setup(120, 128)
a.wait_lgkm(0)
a.barrier()
stamp(10)
fin_item(96)
I("s_lshr_b32", s(sT0), s(sWAVE), "1"); I("s_cmp_lg_u32", s(sT0), "2"); I("s_cbranch_scc1", "L_fin_done")
a.nop(2)
fin_item(128)
a.label("L_fin_done")
stamp(8)
stamp_flush()
a.label("L_end")
I("s_endpgm")
a.raw(f""".section .rodata,"a"
.p2align 6
.amdhsa_kernel {KNAME}
  .amdhsa_next_free_vgpr 256
  .amdhsa_next_free_sgpr 102
  .amdhsa_accum_offset 256
  .amdhsa_group_segment_fixed_size 0
  .amdhsa_kernarg_size 120
  .amdhsa_user_sgpr_count 2
  .amdhsa_user_sgpr_kernarg_segment_ptr 1
  .amdhsa_system_sgpr_workgroup_id_x 1
  .amdhsa_float_denorm_mode_32 3
.end_amdhsa_kernel
""")
out = [x for x in sys.argv[1:] if not x.startswith("--")]
import subprocess, re
txt = a.text()
open("_t.s", "w").write(txt.replace("CODE_KB", "100"))
subprocess.run(["clang", "-x", "assembler", "-target", "amdgcn-amd-amdhsa", "-mcpu=gfx950", "-c", "_t.s", "-o", "_t.o"], check=True)
sec = subprocess.run(["llvm-readelf", "-S", "_t.o"], capture_output=True, text=True).stdout
size = int(re.search(r"\.text\s+PROGBITS\s+\S+\s+\S+\s+(\S+)", sec).group(1), 16)
print("code bytes", size)
open(out[0] if out else "k.s", "w").write(txt.replace("CODE_KB", str((size >> 10) - 1)))
```

```python
import sys, struct
import re as _re
from asmlib import Asm, v, s

KNAME = "gated_mix__ssm_conv_h3__dense_activation_gelu__prompt_kernel"
STAMP = "--stamp" in sys.argv
def knob(name, default):
    for x in sys.argv:
        if x.startswith(f"--{name}="): return int(x.split("=")[1])
    return default
NOPOLL = knob("nopoll", 0)
RAMP = knob("ramp", 4)
PFDEPTH = knob("pfd", 20)
LD = knob("ld", 3)
WPRE = knob("wpre", 4)
PSL = knob("psl", 16)
YSL = knob("ysl", 4)
YGO = knob("ygo", 6)
PFGATE = knob("pfgate", 0)

FK, FW, FH, FY = 0x0000, 0x2000, 0x3000, 0x5000
WS_G = 0x10000
WS_KVT = 0x100000
WS_W2F = 0x400000
WS_YT = 0x600000
WS_HF = 0x900000
WS_DBG = 0xF00000
WS_SIZE = 0x1000000
WOFF = 16384
SLOT = 16384 + 16384 + 256
NSLOT = 4
HCP = 4160
XR = 4 * HCP
CVSZ = 21248
MISC = 157184
M_NONCE, M_FWOK, M_CV, M_PS, M_PF, M_X, M_CD, M_G = MISC, MISC + 8, MISC + 16, MISC + 20, MISC + 32, MISC + 64, MISC + 96, MISC + 256
M_FHS = MISC + 12
M_HC = MISC + 4
M_YS = MISC + 36
M_G2L = MISC + 40
LG0 = 8
PRIV = [104448, 157696, 114688, 114688 + CVSZ]
CVH = [0, 43008]
GYO = 2560
RED = 0
REDW = 21504
REDP = 336
XCH = 2 * SLOT
KSUB = 17 * 1040
LDS_BYTES = 163840
NPF = 4
NREG = 4

sWAVE, sXCD, sSLOT, sRB, sC, sR2, sC2 = 3, 4, 5, 6, 7, 8, 9
sT0, sT1, sT2, sT3, sT4, sT5 = 10, 11, 12, 13, 14, 15
pQ, pK, pV, pSK, pH, pD, pBX, pW1, pB1, pW2, pB2, pGW, pOUT, pDBG, pWS = [16 + 2 * i for i in range(15)]
SQ, SW1, SWS, SA, SB, SH, SO = 48, 52, 56, 60, 64, 68, 72
sWBASE = 76
sCW = 77
sSOFFX, sSOFFW, sLSLOT, sCNT = 78, 79, 80, 81
sM0X, sM0W = 82, 83
sCH, sCVB = 84, 85
sEX = 86
sTM = 88
sU0, sU1 = 90, 91
sPOLL = 92
sFLAG = 93
sPC = 94
sSTG = 96
sHID = 97
sPRV = 98
sPAIR = 99

a = Asm()
def I(op, *args, **kw):
    if op.startswith("v_pk_") and op.endswith("_f32"):
        base = [int(_re.match(r"v\[(\d+):", x).group(1)) for x in args]
        sop = {"v_pk_mul_f32": "v_mul_f32", "v_pk_add_f32": "v_add_f32", "v_pk_fma_f32": "v_fma_f32"}[op]
        for h in range(2): a.I(sop, *[f"v{b+h}" for b in base])
        return
    a.I(op, *args, **kw)

def f32bits(x): return struct.unpack("<I", struct.pack("<f", x))[0]

def srd(d, p, nbytes):
    I("s_mov_b32", s(d), s(p)); I("s_mov_b32", s(d + 1), s(p + 1))
    I("s_mov_b32", s(d + 2), hex(nbytes)); I("s_mov_b32", s(d + 3), "0x20000")

vSTAMP = 255
def stamp(idx, real=False):
    if not STAMP: return
    I("s_memrealtime" if real else "s_memtime", s(sTM, 2)); a.wait_lgkm(0)
    I("v_writelane_b32", v(vSTAMP), s(sTM), str(idx))
def stamp_flush():
    if not STAMP: return
    stamp(62, real=True)
    I("s_lshl_b32", s(sT5), s(2), "3"); I("s_add_u32", s(sT5), s(sT5), s(sWAVE)); I("s_lshl_b32", s(sT5), s(sT5), "8")
    I("s_add_u32", s(sT5), s(sT5), hex(WS_DBG))
    I("v_lshlrev_b32", "v254", "2", v(1))
    I("buffer_store_dword", v(vSTAMP), "v254", s(SWS, 4), s(sT5), "offen", tag="stamp")

_lbl = [0]
def newlbl(p):
    _lbl[0] += 1; return f"L_{p}_{_lbl[0]}"

def poll(vtmp, voff, soff_reg, vnonce, wide=False, sleep=4):
    top = newlbl("poll"); done = newlbl("pdone")
    I("s_mov_b32", s(sPOLL), "1" if NOPOLL else "0x40000")
    a.label(top)
    if wide: I("buffer_load_dwordx2", v(vtmp, 2), v(voff), s(SWS, 4), s(soff_reg), "offen", "sc1")
    else: I("buffer_load_dword", v(vtmp), v(voff), s(SWS, 4), s(soff_reg), "offen", "sc1")
    a.wait_vm(n=0)
    I("v_cmp_ne_u32", "vcc", v(vtmp + (1 if wide else 0)), v(vnonce))
    a.nop(1)
    I("s_cbranch_vccz", done)
    I("s_sleep", str(sleep))
    I("s_sub_u32", s(sPOLL), s(sPOLL), "1")
    I("s_cmp_lg_u32", s(sPOLL), "0")
    I("s_cbranch_scc1", top)
    a.label(done)

def lds_wait(vtmp, vaddr, off, cmp_op, ref, sleep=1):
    top = newlbl("lw"); done = newlbl("lwd")
    I("s_mov_b32", s(sPOLL), "0x100000")
    a.label(top)
    I("ds_read_b32", v(vtmp), v(vaddr), f"offset:{off}"); a.wait_lgkm(0)
    I(cmp_op, "vcc", ref, v(vtmp)); a.nop(1)
    I("s_cbranch_vccz", done)
    if sleep: I("s_sleep", str(sleep))
    I("s_sub_u32", s(sPOLL), s(sPOLL), "1"); I("s_cmp_lg_u32", s(sPOLL), "0"); I("s_cbranch_scc1", top)
    a.label(done)

def flag_store(voff, soff_reg, vnonce, nlanes=1, zero=True):
    if zero: I("v_mov_b32", v(voff), "0")
    I("s_mov_b64", "exec", str((1 << nlanes) - 1))
    I("buffer_store_dword", v(vnonce), v(voff), s(SWS, 4), s(soff_reg), "offen", "sc1", tag="flag")
    I("s_mov_b64", "exec", "-1")

def h_publish():
    skip = newlbl("hp")
    I("v_mov_b32", "v6", str(M_HC)); I("v_mov_b32", "v8", "1")
    I("s_mov_b64", "exec", "1")
    I("ds_add_rtn_u32", "v8", "v6", "v8"); a.wait_lgkm(0)
    I("v_readfirstlane_b32", s(sT0), "v8")
    I("s_mov_b64", "exec", "-1")
    I("s_cmp_lg_u32", s(sT0), "7"); I("s_cbranch_scc1", skip)
    flag_store(6, sFLAG, vNC)
    a.label(skip)

def unpack(dlo, src):
    I("v_lshlrev_b32", v(dlo), "16", v(src)); I("v_and_b32", v(dlo + 1), "0xffff0000", v(src))

def interleave(r, m):
    n = max(len(r), len(m))
    for i in range(n):
        if i < len(r): I(*r[i])
        if i < len(m): I(*m[i])

LOG2E = 1.4426950408889634
C0 = -2.0 * LOG2E * 0.7978845608028654
C1 = C0 * 0.044715
vLANE, vN, vKG, vL16, vNC = 1, 2, 3, 4, 5
vHC, vHN = 128, 192

def nonce_get():
    top = newlbl("nct"); done = newlbl("ncd")
    I("s_mov_b32", s(sPOLL), "0x40000"); I("v_mov_b32", "v6", "0")
    a.label(top)
    I("global_load_dword", v(vNC), "v6", s(pDBG, 2), "sc1")
    a.wait_vm(n=0)
    I("v_cmp_eq_u32", "vcc", "0", v(vNC)); a.nop(1)
    I("s_cbranch_vccz", done)
    I("s_sleep", "2"); I("s_sub_u32", s(sPOLL), s(sPOLL), "1"); I("s_cmp_lg_u32", s(sPOLL), "0"); I("s_cbranch_scc1", top)
    a.label(done)

def h_loads():
    srd(SH, pH, 640 * 4096)
    I("s_lshl_b32", s(sT0), s(sCH), "12")
    for blk in range(4):
        I("buffer_load_dwordx4", v(vHC + blk * 4, 4), v(vL16), s(SH, 4), s(sT0), "offen", f"offset:{1024*blk}", tag="h")
        I("buffer_load_dwordx2", v(vHN + blk * 2, 2), v(vL16), s(SH, 4), s(sT0), "offen", f"offset:{1024*blk+16}", tag="h")
    I("s_lshl_b32", s(sT0), s(sCH), "1"); I("v_mov_b32", "v6", s(sT0))
    I("global_load_ushort", "v15", "v6", s(pD, 2), tag="h")

def gelu_store(src, rt, mid=None):
    c0, c1, T, O = 16, 17, 24, 40
    I("v_mov_b32", v(c0), hex(f32bits(C0))); I("v_mov_b32", v(c1), hex(f32bits(C1)))
    I("s_lshl_b32", s(sT0), s(sRB), "1"); I("s_lshr_b32", s(sT1), s(sCW), "1"); I("s_add_u32", s(sT0), s(sT0), s(sT1))
    I("s_and_b32", s(sT1), s(sCW), "1"); I("s_lshl_b32", s(sT1), s(sT1), "1"); I("s_add_u32", s(sT1), s(sT1), str(rt))
    I("s_mul_i32", s(sT2), s(sT0), "48"); I("s_lshl_b32", s(sT3), s(sC), "2"); I("s_add_u32", s(sT2), s(sT2), s(sT3))
    I("s_lshl_b32", s(sT2), s(sT2), "2"); I("s_add_u32", s(sT2), s(sT2), s(sT1)); I("s_lshl_b32", s(sT2), s(sT2), "10")
    I("s_add_u32", s(sT2), s(sT2), hex(WS_HF))
    I("s_lshl_b32", s(sT0), s(sRB), "8"); I("s_add_u32", s(sT0), s(sT0), s(sT3)); I("s_add_u32", s(sFLAG), s(sT0), hex(FH))
    for up in range(4):
        X = [src + 8 * up + k for k in range(8)]
        for k in range(8): I("v_mul_f32", v(T + k), v(X[k]), v(X[k]))
        for k in range(8): I("v_fma_f32", v(T + k), v(T + k), v(c1), v(c0))
        for k in range(8): I("v_mul_f32", v(T + k), v(T + k), v(X[k]))
        for k in range(8): I("v_exp_f32", v(T + k), v(T + k))
        for k in range(8): I("v_add_f32", v(T + k), "1.0", v(T + k))
        for k in range(8): I("v_rcp_f32", v(T + k), v(T + k))
        for k in range(8): I("v_mul_f32", v(T + k), v(T + k), v(X[k]))
        for k in range(4): I("v_cvt_pk_bf16_f32", v(O + 4 * up + k), v(T + 2 * k), v(T + 2 * k + 1))
        I("buffer_store_dwordx4", v(O + 4 * up, 4), v(vL16), s(SWS, 4), s(sT2), "offen", "sc1", tag="hst")
        if up < 3: I("s_add_u32", s(sT2), s(sT2), "4096")
        if up == 1 and mid: mid()


XRL = 96
def conv_fetch():
    I("v_and_b32", "v6", "31", v(vLANE)); I("v_lshlrev_b32", "v6", "2", "v6")
    I("s_lshr_b32", s(sT0), s(sCH), "4"); I("s_lshl_b32", s(sT0), s(sT0), "7"); I("s_add_u32", s(sT0), s(sT0), hex(FK))
    poll(7, 6, sT0, vNC)
    stamp(2)
    I("s_lshl_b32", s(sT0), s(sCH), "12"); I("s_add_u32", s(sT0), s(sT0), hex(WS_KVT))
    for blk in range(4):
        I("buffer_load_dwordx4", v(XRL + 4 * blk, 4), v(vL16), s(SWS, 4), s(sT0), "offen", f"offset:{1024*blk}", "sc1", tag="xr")
def conv_hcopies():
    I("v_add_u32", "v10", s(sCVB), v(vL16))
    for blk in range(4):
        d = [vHC + blk * 4 + k for k in range(4)] + [vHN + 2 * blk, vHN + 2 * blk + 1]
        for k in range(4):
            I("v_alignbit_b32", v(vHC + (4 + blk) * 4 + k), v(d[k + 1]), v(d[k]), "16")
            I("v_mov_b32", v(vHC + (8 + blk) * 4 + k), v(d[k + 1]))
            I("v_alignbit_b32", v(vHC + (12 + blk) * 4 + k), v(d[k + 2]), v(d[k + 1]), "16")
        for c in range(4):
            I("ds_write_b128", "v10", v(vHC + (c * 4 + blk) * 4, 4), f"offset:{c*HCP + 32 + 1024*blk}")
    for i in range(4): I("v_mov_b32", v(20 + i), "0")
    I("s_mov_b64", "exec", "0x3fffffff")
    I("ds_write_b128", "v10", v(20, 4), f"offset:{XR + 4096}")
    I("s_mov_b64", "exec", "3")
    for c in range(4): I("ds_write_b128", "v10", v(20, 4), f"offset:{c*HCP}")
    I("s_mov_b64", "exec", "1")
    I("v_lshlrev_b32", "v24", "16", v(vHC))
    I("ds_write_b32", "v10", "v24", f"offset:{1*HCP + 28}")
    I("ds_write_b32", "v10", v(vHC), f"offset:{2*HCP + 28}")
    I("ds_write_b32", "v10", "v24", f"offset:{3*HCP + 24}")
    I("ds_write_b32", "v10", v(vHC + 16), f"offset:{3*HCP + 28}")
    I("s_mov_b64", "exec", "-1")
def conv_xwrite():
    I("v_add_u32", "v10", s(sCVB), v(vL16))
    for blk in range(4): I("ds_write_b128", "v10", v(XRL + 4 * blk, 4), f"offset:{XR + 1024*blk}")

AC2 = 16
vL16b = 9
pool = [144 + 4 * i for i in range(27)] + [96 + 4 * i for i in range(12)]
Wf, Hf = {}, {}
def take(n):
    r = pool[:n]; del pool[:n]; return r
def w_loads(g):
    if g not in Wf: Wf[g] = take(5)
    I("s_add_u32", s(sT1), s(sU1), str(g * 4 * 5120))
    for ct in range(5):
        if ct < 4: I("buffer_load_dwordx4", v(Wf[g][ct], 4), v(vL16), s(SWS, 4), s(sT1), "offen", f"offset:{ct*1024}", "sc1", tag=f"w{g}")
        else: I("buffer_load_dwordx4", v(Wf[g][ct], 4), v(vL16b), s(SWS, 4), s(sT1), "offen", "sc1", tag=f"w{g}")
def w_lds(g):
    Wf[g] = take(5)
    for ct in range(5): I("ds_read_b128", v(Wf[g][ct], 4), "v7", f"offset:{RED + (g - LG0)*5120 + ct*1024}")
def h_loads2(g):
    Hf[g] = take(4)
    I("s_add_u32", s(sT2), s(sU0), str(g * 4 * 4096))
    for rt in range(4):
        I("buffer_load_dwordx4", v(Hf[g][rt], 4), v(vL16), s(SWS, 4), s(sT2), "offen", f"offset:{rt*1024}", "sc1", tag=f"h{g}")
def g2_setup():
    I("s_mul_i32", s(sU0), s(sR2), "48"); I("s_add_u32", s(sU0), s(sU0), s(sCW)); I("s_lshl_b32", s(sU0), s(sU0), "12")
    I("s_add_u32", s(sU0), s(sU0), hex(WS_HF))
    I("s_mul_i32", s(sU1), s(sC2), "48"); I("s_add_u32", s(sU1), s(sU1), s(sCW)); I("s_mul_i32", s(sU1), s(sU1), "5120")
    I("s_add_u32", s(sU1), s(sU1), hex(WS_W2F))
    I("v_add_u32", v(vL16b), "4096", v(vL16))
    for g in range(WPRE): w_loads(g)

hdr = open("cdna_kernels/" + KNAME[:-7] + ".s.ref").read().split("; Override")[0]
a.raw(hdr.rstrip())
a.raw(f"; @launch grid=(256,1,1) block=(512,1,1) lds={LDS_BYTES}")
a.raw('.amdgcn_target "amdgcn-amd-amdhsa--gfx950"\n.text')
a.raw(f".globl {KNAME}\n.p2align 8\n.type {KNAME},@function\n{KNAME}:")
I("s_cmp_ge_u32", "s2", "256"); I("s_cbranch_scc1", "L_end")
I("s_load_dwordx16", s(16, 16), "s[0:1]", "0")
I("s_load_dwordx8", s(32, 8), "s[0:1]", "64")
I("s_load_dwordx4", s(40, 4), "s[0:1]", "96")
I("s_load_dwordx2", s(44, 2), "s[0:1]", "112")
I("s_getpc_b64", s(sPC, 2))
I("v_and_b32", v(vLANE), "63", "v0")
I("v_lshrrev_b32", "v2", "6", "v0")
I("v_readfirstlane_b32", s(sWAVE), "v2")
I("s_and_b32", s(sXCD), "s2", "7"); I("s_lshr_b32", s(sSLOT), "s2", "3")
I("s_lshr_b32", s(sT0), s(sXCD), "1"); I("s_and_b32", s(sT1), s(sXCD), "1")
I("s_lshl_b32", s(sR2), s(sT0), "3"); I("s_lshr_b32", s(sT2), s(sSLOT), "2"); I("s_add_u32", s(sR2), s(sR2), s(sT2))
I("s_lshl_b32", s(sC2), s(sT1), "2"); I("s_and_b32", s(sT2), s(sSLOT), "3"); I("s_add_u32", s(sC2), s(sC2), s(sT2))
I("s_mul_i32", s(sT2), s(sSLOT), "43"); I("s_lshr_b32", s(sT2), s(sT2), "8"); I("s_mul_i32", s(sT3), s(sT2), "6"); I("s_sub_u32", s(sT3), s(sSLOT), s(sT3))
I("s_lshl_b32", s(sRB), s(sT0), "2"); I("s_add_u32", s(sRB), s(sRB), s(sT2))
I("s_mul_i32", s(sC), s(sT1), "6"); I("s_add_u32", s(sC), s(sC), s(sT3))
I("s_and_b32", s(sCW), s(sWAVE), "3")
I("v_and_b32", v(vN), "15", v(vLANE)); I("v_lshrrev_b32", v(vKG), "4", v(vLANE))
I("v_lshlrev_b32", v(vL16), "4", v(vLANE))
if STAMP: I("v_mov_b32", v(vSTAMP), "0")
I("s_cmp_ge_u32", s(sSLOT), "24"); I("s_cbranch_scc1", "L_H")
I("s_cmp_lt_u32", s(sWAVE), "4"); I("s_cbranch_scc1", "L_G")

vDX = 8
vDW = 12
sKST = sU0
I("s_mul_i32", s(sKST), s(sT3), "3"); I("s_mul_i32", s(sT2), s(sT2), "5"); I("s_lshr_b32", s(sT2), s(sT2), "1"); I("s_add_u32", s(sKST), s(sKST), s(sT2))
for _ in range(2):
    I("s_sub_u32", s(sT0), s(sKST), "10"); I("s_cmp_ge_u32", s(sKST), "10"); I("s_cselect_b32", s(sKST), s(sT0), s(sKST))
I("v_lshrrev_b32", "v6", "3", v(vLANE)); I("v_and_b32", "v7", "7", v(vLANE))
I("s_lshl_b32", s(sT0), s(sRB), "7"); I("s_lshl_b32", s(sT1), s(sCW), "5"); I("s_add_u32", s(sT0), s(sT0), s(sT1))
for jj in range(4):
    I("v_add_u32", "v16", str(8 * jj), "v6")
    I("v_bfe_u32", "v17", "v16", "1", "3"); I("v_xor_b32", "v17", "v17", "v7")
    I("v_add_u32", "v16", s(sT0), "v16"); I("v_mul_u32_u24", "v16", "1280", "v16")
    I("v_lshl_add_u32", "v16", "v17", "4", "v16")
    I("v_subrev_u32", v(vDX + jj), str(1024 * jj), "v16")
I("v_bfe_u32", "v16", v(vLANE), "3", "2"); I("v_mul_u32_u24", "v16", "3072", "v16")
I("v_lshrrev_b32", "v17", "5", v(vLANE)); I("v_lshl_add_u32", "v16", "v17", "7", "v16")
I("v_bfe_u32", "v17", v(vLANE), "4", "1"); I("v_lshlrev_b32", "v17", "2", "v17"); I("v_xor_b32", "v17", "v17", "v7")
I("v_lshl_add_u32", v(vDW), "v17", "4", "v16")
I("s_lshl_b32", s(sWBASE), s(sC), "8"); I("s_mul_i32", s(sT0), s(sCW), str(16 * 3072)); I("s_add_u32", s(sWBASE), s(sWBASE), s(sT0))
I("s_mov_b32", s(sSTG), "0"); I("s_mov_b32", s(sLSLOT), "0")
I("s_lshl_b32", s(sM0X), s(sCW), "12"); I("s_mul_i32", s(sM0W), s(sCW), str(4096 + 64)); I("s_add_u32", s(sM0W), s(sM0W), str(WOFF))
a.wait_lgkm(0)
srd(SQ, pQ, 2621440)
srd(SW1, pW1, 640 * 3072)
stamp(63, real=True); stamp(0)
def issue_stage():
    I("s_lshl_b32", s(sSOFFX), s(sKST), "7")
    I("s_mul_i32", s(sSOFFW), s(sKST), str(64 * 3072)); I("s_add_u32", s(sSOFFW), s(sSOFFW), s(sWBASE))
    I("s_add_u32", "m0", s(sLSLOT), s(sM0X)); I("s_add_u32", s(sT3), s(sLSLOT), s(sM0W))
    for jj in range(4):
        I("buffer_load_dwordx4", v(vDX + jj), s(SQ, 4), s(sSOFFX), "offen", f"offset:{1024*jj}", "lds", tag="st")
    for i in range(4):
        I("s_add_u32", "m0", s(sT3), str(1024 * i + 32 * (i >> 1)))
        I("buffer_load_dwordx4", v(vDW), s(SW1, 4), s(sSOFFW), "offen", "lds", tag="st")
        if i < 3: I("s_add_u32", s(sSOFFW), s(sSOFFW), str(4 * 3072))
    I("s_add_u32", s(sKST), s(sKST), "1"); I("s_cmp_eq_u32", s(sKST), "10"); I("s_cselect_b32", s(sKST), "0", s(sKST))
    I("s_add_u32", s(sLSLOT), s(sLSLOT), str(SLOT)); I("s_cmp_eq_u32", s(sLSLOT), str(NSLOT * SLOT)); I("s_cselect_b32", s(sLSLOT), "0", s(sLSLOT))
    I("s_add_u32", s(sSTG), s(sSTG), "1")
issue_stage()
I("s_mul_i32", s(sT0), s(sXCD), "24"); I("s_add_u32", s(sT0), s(sT0), s(sSLOT)); I("s_lshl_b32", s(sT0), s(sT0), "1")
I("s_lshr_b32", s(sPAIR), s(sCW), "1"); I("s_add_u32", s(sCH), s(sT0), s(sPAIR)); I("s_add_u32", s(sCH), s(sCH), "256")
I("s_mul_i32", s(sCVB), s(sPAIR), str(CVSZ)); I("s_add_u32", s(sCVB), s(sCVB), str(PRIV[2]))
issue_stage()
srd(SWS, pWS, WS_SIZE)
a.lines.append("  s_waitcnt vmcnt(8)")
a.barrier()
a.label("L_ld_ramp")
issue_stage()
a.lines.append("  s_waitcnt vmcnt(8)")
a.barrier()
I("s_cmp_lt_u32", s(sSTG), str(RAMP)); I("s_cbranch_scc1", "L_ld_ramp")
issue_stage(); issue_stage()
a.label("L_ld_loop")
a.vm = ["st"] * 24
a.wait_vm(n=16)
a.barrier()
issue_stage()
if STAMP:
    I("s_add_u32", "m0", s(sSTG), "28"); stamp("m0")
I("s_cmp_lt_u32", s(sSTG), "10"); I("s_cbranch_scc1", "L_ld_loop")
I("v_mov_b32", "v6", "0")
I("global_load_dword", v(vNC), "v6", s(pDBG, 2), "sc1", tag="nc")
h_loads()
vG, vGV = 20, 32
I("s_min_u32", s(sT1), s(sC), "7"); I("s_lshl_b32", s(sT1), s(sT1), "4"); I("s_lshl_b32", s(sT0), s(sRB), "7"); I("s_add_u32", s(sT0), s(sT0), s(sT1))
I("s_lshl_b32", s(sT1), s(sCW), "2"); I("s_add_u32", s(sT0), s(sT0), s(sT1))
I("v_add_u32", v(vG), s(sT0), v(vKG))
I("v_lshlrev_b32", v(vGV + 2), "3", v(vG))
I("v_lshlrev_b32", v(vG + 1), "4", v(vN))
I("v_mul_u32_u24", v(vG + 2), "1280", v(vG)); I("v_add_u32", v(vG + 2), v(vG + 2), v(vG + 1))
for i in range(5):
    I("global_load_dwordx4", v(200 + 4 * i, 4), v(vG + 2), s(pQ, 2), f"offset:{256*i}", tag="g")
    I("global_load_dwordx4", v(220 + 4 * i, 4), v(vG + 1), s(pGW, 2), f"offset:{256*i}", tag="g")
for k in (2, 1, 0):
    a.wait_vm(n=8 * k + (20 if k else 19))
    if k == 0:
        I("v_cmp_eq_u32", "vcc", "0", v(vNC)); a.nop(1)
        I("s_cbranch_vccz", "L_ld_tag")
        vm_ = list(a.vm)
        nonce_get()
        a.label("L_ld_tag")
        a.vm = vm_
        I("v_mov_b32", "v7", str(MISC)); I("ds_write_b32", "v7", v(vNC)); a.wait_lgkm(0)
    a.barrier()
stamp(5)
I("s_setprio", str(knob("p1", 1)))
def gate_compute():
    acc, x_, w_, t_ = vG + 4, vG + 6, vG + 8, vG + 10
    for i in range(20):
        unpack(x_, 200 + i); unpack(w_, 220 + i)
        if i == 0: I("v_pk_mul_f32", v(acc, 2), v(x_, 2), v(w_, 2))
        else: I("v_pk_fma_f32", v(acc, 2), v(x_, 2), v(w_, 2), v(acc, 2))
    I("v_add_f32", v(acc), v(acc), v(acc + 1))
    for off in (0x041F, 0x081F, 0x101F, 0x201F):
        I("ds_swizzle_b32", v(t_), v(acc), f"offset:{off}"); a.wait_lgkm(0)
        I("v_add_f32", v(acc), v(acc), v(t_))
    I("v_cvt_pk_bf16_f32", v(t_), v(acc), v(acc)); I("v_lshlrev_b32", v(acc), "16", v(t_))
    I("v_mul_f32", v(acc), hex(f32bits(-LOG2E)), v(acc))
    I("v_exp_f32", v(acc), v(acc)); I("v_add_f32", v(acc), "1.0", v(acc)); I("v_rcp_f32", v(acc), v(acc))
    I("v_cvt_pk_bf16_f32", v(t_), v(acc), v(acc)); I("v_lshlrev_b32", v(vGV), "16", v(t_))
    I("v_mov_b32", v(vGV + 1), v(vNC))
I("s_and_b32", s(sT0), s(sWAVE), "1"); I("s_cmp_eq_u32", s(sT0), "0"); I("s_cbranch_scc1", "L_nocp")
a.wait_vm(tag="h")
conv_hcopies()
a.label("L_nocp")
I("s_lshl_b32", s(sT0), s(sCW), "2"); I("s_add_u32", s(sT0), s(sT0), str(M_X)); I("v_mov_b32", "v6", s(sT0))
I("s_lshl_b32", s(sT0), s(sCW), "13"); I("s_add_u32", s(sT0), s(sT0), str(XCH)); I("v_add_u32", "v8", s(sT0), v(vL16))
lds_wait(9, 6, 0, "v_cmp_eq_u32", "0", sleep=0)
for ft in range(8): I("ds_read_b128", v(64 + 4 * ft, 4), "v8", f"offset:{1024*ft}")
I("v_mov_b32", "v9", "2")
a.wait_lgkm(0)
I("ds_write_b32", "v6", "v9")
a.vm = []
sXRF, sFKA = sSOFFX, sSOFFW
I("v_and_b32", "v10", "31", v(vLANE)); I("v_lshlrev_b32", "v10", "2", "v10")
I("s_lshr_b32", s(sFKA), s(sCH), "4"); I("s_lshl_b32", s(sFKA), s(sFKA), "7"); I("s_add_u32", s(sFKA), s(sFKA), hex(FK))
I("buffer_load_dword", "v11", "v10", s(SWS, 4), s(sFKA), "offen", "sc1", tag="fk")
I("s_mov_b32", s(sXRF), "0")
def early_xr():
    I("s_and_b32", s(sT0), s(sWAVE), "1"); I("s_cmp_eq_u32", s(sT0), "0"); I("s_cbranch_scc1", "L_noexr")
    vm = list(a.vm)
    a.wait_vm(tag="fk")
    I("v_cmp_ne_u32", "vcc", "v11", v(vNC)); a.nop(1)
    I("s_cbranch_vccnz", "L_noexr")
    I("s_lshl_b32", s(sT0), s(sCH), "12"); I("s_add_u32", s(sT0), s(sT0), hex(WS_KVT))
    for blk in range(4):
        I("buffer_load_dwordx4", v(XRL + 4 * blk, 4), v(vL16), s(SWS, 4), s(sT0), "offen", f"offset:{1024*blk}", "sc1")
    I("s_mov_b32", s(sXRF), "1")
    a.label("L_noexr")
    a.vm = vm
gelu_store(64, 1, early_xr)
a.wait_vm(n=0)
h_publish()
stamp(1)
I("s_cmp_ge_u32", s(sC), "8"); I("s_cbranch_scc1", "L_nogs")
gate_compute()
I("s_mov_b32", s(sT0), hex(WS_G))
I("s_mov_b32", s(sEX), "0x10001"); I("s_mov_b32", s(sEX + 1), "0x10001"); I("s_mov_b64", "exec", s(sEX, 2))
I("buffer_store_dwordx2", v(vGV, 2), v(vGV + 2), s(SWS, 4), s(sT0), "offen", "sc1", tag="gst")
I("s_mov_b64", "exec", "-1")
a.label("L_nogs")
I("s_sub_u32", s(sT0), s(sWAVE), "4")
for w in range(4):
    I("s_cmp_eq_u32", s(sT0), str(w)); I("s_cselect_b32", s(sPRV), str(PRIV[w]), s(sPRV))
I("v_and_b32", "v14", "1", v(vLANE)); I("v_lshlrev_b32", "v14", "3", "v14"); I("v_add_u32", "v14", str(M_CD + 20), "v14")
I("s_mov_b32", s(sCNT), "2")
I("s_and_b32", s(sT0), s(sWAVE), "1"); I("s_cmp_eq_u32", s(sT0), "0"); I("s_cbranch_scc1", "L_cv6")
I("s_branch", "L_cv7")

a.label("L_G")
a.vm = []
ACC = 64
XS = 128
WSR = 144
vXA0, vXA1, vWE, vWO = 8, 9, 10, 11
vCX0, vCX1, vCWE, vCWO = 12, 13, 14, 15
vBIAS = 208
vRA, vRV, vDNA, vDNV = 16, 17, 18, 19
def lds_init():
    I("v_lshlrev_b32", "v6", "2", v(vLANE)); I("v_add_u32", "v6", str(MISC), "v6"); I("v_mov_b32", "v7", "0")
    I("ds_write_b32", "v6", "v7")
def code_prefetch():
    I("s_and_b32", s(sT0), s(sSLOT), "7"); I("s_lshl_b32", s(sT0), s(sT0), "2"); I("s_add_u32", s(sT0), s(sT0), s(sCW))
    I("s_min_u32", s(sT0), s(sT0), "CODE_KB"); I("s_lshl_b32", s(sT0), s(sT0), "10")
    I("v_add_u32", "v6", s(sT0), v(vL16))
    I("global_load_dwordx4", v(244, 4), "v6", s(sPC, 2), tag="code")
lds_init()
a.wait_lgkm(0)
stamp(63, real=True); stamp(0)
srd(SWS, pWS, WS_SIZE)
I("s_add_u32", s(sT0), "s2", s(sWAVE)); I("s_cmp_lg_u32", s(sT0), "0"); I("s_cbranch_scc1", "L_nonce_skip")
I("s_memrealtime", s(sTM, 2)); a.wait_lgkm(0)
I("s_mul_i32", s(sT0), s(sTM), "0x9E3779B1"); I("s_xor_b32", s(sT0), s(sT0), s(sTM + 1)); I("s_or_b32", s(sT0), s(sT0), "1")
I("v_mov_b32", "v16", s(sT0)); I("v_mov_b32", "v17", "0")
a.lines.append("  global_store_dword v17, v16, s[42:43] sc1")
a.label("L_nonce_skip")
I("v_lshlrev_b32", "v6", "3", v(vKG))
I("s_lshl_b32", s(sT0), s(sC), "8")
I("s_add_u32", s(sT2), s(pB1), s(sT0)); I("s_addc_u32", s(sT3), s(pB1 + 1), "0")
for ft in range(8):
    I("global_load_dwordx2", v(vBIAS + 2 * ft, 2), "v6", s(sT2, 2), f"offset:{32*ft}", tag="bias1")
code_prefetch()
I("s_lshl_b32", s(sT0), s(sCW), "5")
I("v_add_u32", "v6", s(sT0), v(vN)); I("v_lshlrev_b32", "v6", "7", "v6")
I("v_lshrrev_b32", "v7", "1", v(vN)); I("v_xor_b32", "v7", "v7", v(vKG)); I("v_lshlrev_b32", "v7", "4", "v7")
I("v_add_u32", v(vXA0), "v6", "v7"); I("v_xor_b32", v(vXA1), "64", v(vXA0))
I("v_mul_u32_u24", "v6", "2080", v(vKG)); I("v_bfe_u32", "v7", v(vLANE), "2", "2"); I("v_lshl_add_u32", "v6", "v7", "7", "v6")
I("v_and_b32", "v7", "3", v(vLANE)); I("v_lshl_add_u32", "v6", "v7", "3", "v6"); I("v_add_u32", "v6", hex(WOFF), "v6")
I("v_bfe_u32", "v7", v(vLANE), "3", "1"); I("v_lshlrev_b32", "v7", "6", "v7")
I("v_add_u32", v(vWE), "v6", "v7"); I("v_sub_u32", v(vWO), "v6", "v7")
for i in range(8): I("v_mov_b32", v(XS + 8 + i), "0")
for i in range(32): I("v_mov_b32", v(WSR + 32 + i), "0")
I("s_mov_b32", s(sLSLOT), "0"); I("s_mov_b32", s(sCNT), "10")
for c_, l_ in ((vCX0, vXA0), (vCX1, vXA1), (vCWE, vWE), (vCWO, vWO)): I("v_mov_b32", v(c_), v(l_))
I("s_lshl_b32", s(sT0), s(sCW), "2"); I("s_add_u32", s(sT0), s(sT0), str(M_X)); I("v_mov_b32", v(vDNA), s(sT0))
a.wait_vm(tag="bias1")
for rt in range(2):
    for ft in range(8):
        for h in range(2): unpack(ACC + (rt * 8 + ft) * 4 + 2 * h, vBIAS + 2 * ft + h)
def g1_reads(st, ks):
    r = []
    for rt in range(2):
        r.append(("ds_read_b128", v(XS + (st * 2 + rt) * 4, 4), v(vCX1 if ks else vCX0), f"offset:{rt*2048}"))
    for ft in range(8):
        for hh in range(2):
            r.append(("ds_read_b64_tr_b16", v(WSR + (st * 8 + ft) * 4 + 2 * hh, 2), v(vCWO if ft & 2 else vCWE),
                      f"offset:{ks*8320 + hh*1024 + (ft >> 2)*512 + (ft & 3)*32}"))
    return r
def g1_mfmas(st):
    m = []
    for ft in range(8):
        for rt in range(2):
            d = v(ACC + (rt * 8 + ft) * 4, 4)
            m.append(("v_mfma_f32_16x16x32_bf16", d, v(WSR + (st * 8 + ft) * 4, 4), v(XS + (st * 2 + rt) * 4, 4), d))
    return m
def half(reads, mfmas, counted, sched):
    n_new = 0; ri = 0
    for k, m in enumerate(mfmas):
        if counted and k % 2 == 0:
            a.wait_lgkm(min(14, (14 - 2 * (k // 2)) + n_new))
        I(*m)
        for _ in range(sched[k]):
            I(*reads[ri]); ri += 1; n_new += 1
    assert ri == len(reads)
stamp(17)
a.label("L_g1")
a.barrier()
if STAMP:
    I("s_sub_u32", "m0", "30", s(sCNT)); stamp("m0")
half(g1_reads(0, 0), g1_mfmas(1), False, [2, 2] + [1] * 14)
half(g1_reads(1, 1), g1_mfmas(0), True, [0, 2, 1, 2, 1, 2, 1, 2, 1, 2, 2, 2, 0, 0, 0, 0])
I("s_add_u32", s(sLSLOT), s(sLSLOT), str(SLOT))
I("s_cmp_eq_u32", s(sLSLOT), str(NSLOT * SLOT)); I("s_cselect_b32", s(sLSLOT), "0", s(sLSLOT))
for c_, l_ in ((vCX0, vXA0), (vCX1, vXA1), (vCWE, vWE), (vCWO, vWO)): I("v_add_u32", v(c_), s(sLSLOT), v(l_))
I("s_sub_u32", s(sCNT), s(sCNT), "1"); I("s_cmp_lg_u32", s(sCNT), "0")
a.wait_lgkm(0)
I("s_cbranch_scc1", "L_g1")
m = g1_mfmas(1)
for x in m[1::2]: I(*x)
for x in m[0::2]: I(*x)
I("v_mov_b32", "v7", str(MISC)); I("ds_read_b32", v(vNC), "v7")
stamp(1)
I("s_lshl_b32", s(sT0), s(sCW), "13"); I("s_add_u32", s(sT0), s(sT0), str(XCH)); I("v_add_u32", "v8", s(sT0), v(vL16))
for ft in range(8): I("ds_write_b128", "v8", v(ACC + (8 + ft) * 4, 4), f"offset:{1024*ft}")
I("v_mov_b32", "v6", "1"); I("ds_write_b32", v(vDNA), "v6")
I("v_and_b32", "v14", "1", v(vLANE)); I("v_lshlrev_b32", "v14", "3", "v14"); I("v_add_u32", "v14", str(M_CD + 20), "v14")
a.vm = []
I("v_min_u32", "v10", "47", v(vLANE)); I("v_lshlrev_b32", "v10", "2", "v10")
I("s_lshl_b32", s(sT5), s(sC2), "8"); I("s_add_u32", s(sT5), s(sT5), hex(FW))
I("buffer_load_dword", "v11", "v10", s(SWS, 4), s(sT5), "offen", "sc1")
gelu_store(ACC, 0)
stamp(9)
a.wait_vm(n=0, lgkm=0)
h_publish()
stamp(2)
lds_wait(8, 7, M_HC - MISC, "v_cmp_ne_u32", "8", sleep=1)
I("v_cmp_ne_u32", "vcc", "v11", v(vNC)); a.nop(1)
I("s_cbranch_vccz", "L_fwok")
a.label("L_fwpoll")
poll(11, 10, sT5, vNC)
a.label("L_fwok")
g2_setup()

a.label("L_gemm2")
for i in range(80): I("v_mov_b32", v(AC2 + i), "0")
I("v_mov_b32", "v7", str(MISC))
I("s_cmp_lg_u32", s(sCW), "0"); I("s_cbranch_scc1", "L_fhwait")
I("v_min_u32", "v6", "11", v(vLANE)); I("v_lshlrev_b32", "v6", "2", "v6")
I("s_lshr_b32", s(sT0), s(sR2), "1"); I("s_lshl_b32", s(sT0), s(sT0), "8"); I("s_add_u32", s(sT0), s(sT0), hex(FH))
vmsave = list(a.vm)
poll(8, 6, sT0, vNC, sleep=PSL)
I("ds_write_b32", "v7", v(vNC), f"offset:{M_FHS - MISC}")
a.label("L_fhwait")
a.vm = vmsave
lds_wait(8, 7, M_FHS - MISC, "v_cmp_ne_u32", v(vNC), sleep=1)
stamp(3)
for g in range(4):
    h_loads2(g)
    if g >= WPRE: w_loads(g)
for g in range(12):
    a.wait_vm(tag=f"h{g}")
    a.wait_vm(tag=f"w{g}")
    for ct in range(5):
        for rt in range(4):
            d = v(AC2 + (rt * 5 + ct) * 4, 4)
            I("v_mfma_f32_16x16x32_bf16", d, v(Wf[g][ct], 4), v(Hf[g][rt], 4), d)
    pool.extend(Wf[g] + Hf[g])
    if g + 4 < 12: h_loads2(g + 4); w_loads(g + 4)
    if g == YGO: I("ds_write_b32", "v7", v(vNC), f"offset:{M_G2L - MISC}")
stamp(4)
lds_wait(8, 14, 0, "v_cmp_eq_u32", "0", sleep=1)
I("v_mul_u32_u24", "v6", str(REDP), v(vN)); I("v_lshl_add_u32", "v6", v(vKG), "4", "v6")
I("s_mul_i32", s(sT0), s(sCW), str(REDW)); I("v_add_u32", "v6", s(sT0), "v6")
a.nop(6)
for ct in range(5):
    for rt in range(4):
        I("ds_write_b128", "v6", v(AC2 + (rt * 5 + ct) * 4, 4), f"offset:{RED + rt*16*REDP + ct*64}")
I("s_branch", "L_final")


a.label("L_H")
a.vm = []
I("s_lshl_b32", s(sHID), s(sXCD), "3"); I("s_add_u32", s(sHID), s(sHID), s(sSLOT)); I("s_sub_u32", s(sHID), s(sHID), "24")
lds_init()
vG = 20
vGV = 216
def g_loads():
    I("s_lshl_b32", s(sT0), s(sHID), "5"); I("s_add_u32", s(sT0), s(sT0), s(sCNT))
    I("v_add_u32", v(vG), s(sT0), v(vKG))
    I("v_lshlrev_b32", v(vGV + 2), "3", v(vG))
    I("v_lshlrev_b32", v(vG + 1), "4", v(vN))
    I("v_mul_u32_u24", v(vG + 2), "1280", v(vG)); I("v_add_u32", v(vG + 2), v(vG + 2), v(vG + 1))
    for i in range(5):
        I("global_load_dwordx4", v(160 + 4 * i, 4), v(vG + 2), s(pQ, 2), f"offset:{256*i}", tag="g")
        I("global_load_dwordx4", v(180 + 4 * i, 4), v(vG + 1), s(pGW, 2), f"offset:{256*i}", tag="g")
sTT, sHF = sU0, sU1
I("s_lshr_b32", s(sTT), s(sHID), "1"); I("s_and_b32", s(sHF), s(sHID), "1")
I("v_lshrrev_b32", "v16", "3", v(vLANE)); I("v_mul_u32_u24", "v16", "1280", "v16")
I("v_and_b32", "v17", "7", v(vLANE)); I("v_lshl_add_u32", "v16", "v17", "4", "v16")
I("s_mul_i32", s(sT0), s(sTT), str(64 * 1280)); I("s_mul_i32", s(sT1), s(sHF), "640"); I("s_add_u32", s(sT0), s(sT0), s(sT1))
I("s_min_u32", s(sT3), s(sWAVE), "4"); I("s_lshl_b32", s(sT1), s(sT3), "7"); I("s_add_u32", s(sT1), s(sT1), s(sT0))
I("v_add_u32", "v17", s(sT1), "v16"); I("v_subrev_u32", "v17", str(8 * 1280), "v17")
I("s_mul_i32", s(sT1), s(sWAVE), str(8 * 1280)); I("s_add_u32", s(sT0), s(sT0), s(sT1))
I("v_add_u32", "v16", s(sT0), "v16")
I("s_mul_i32", s(sT3), s(sT3), str(KSUB))
I("s_mul_i32", s(sT2), s(sWAVE), "1040")
a.wait_lgkm(0)
stamp(63, real=True); stamp(0)
srd(SA, pK, 2621440); srd(SB, pV, 2621440)
for b in range(5):
    I("s_movk_i32", s(sT1), str(128 * b))
    I("s_add_u32", "m0", s(sT2), str(b * KSUB + 1040))
    I("buffer_load_dwordx4", "v16", s(SA, 4), s(sT1), "offen", "lds", tag="kv")
    I("s_add_u32", "m0", s(sT2), str(b * KSUB + 1040 * 9))
    I("buffer_load_dwordx4", "v16", s(SB, 4), s(sT1), "offen", "lds", tag="kv")
I("s_mov_b32", "m0", s(sT3))
I("buffer_load_dwordx4", "v17", s(SA, 4), "0", "offen", "lds", tag="kv")
vSKR = 48
srd(SB, pSK, 5120)
I("v_lshrrev_b32", "v16", "3", v(vLANE)); I("v_lshlrev_b32", "v16", "4", "v16")
I("s_mul_i32", s(sT0), s(sHF), "2560"); I("s_lshl_b32", s(sT1), s(sWAVE), "7"); I("s_add_u32", s(sT0), s(sT0), s(sT1))
for j in range(3):
    I("buffer_load_dwordx4", v(vSKR + 4 * j, 4), "v16", s(SB, 4), s(sT0), "offen", f"offset:{1024*j}", tag="sk")
sUU, sC2W = sM0X, sM0W
I("s_mul_i32", s(sT0), s(sHID), "3"); I("s_add_u32", s(sT0), s(sT0), s(sWAVE)); I("s_sub_u32", s(sT0), s(sT0), "5")
I("s_lshr_b32", s(sUU), s(sT0), "2"); I("s_and_b32", s(sT0), s(sT0), "3"); I("s_lshl_b32", s(sC2W), s(sT0), "1")
I("s_mul_i32", s(sWBASE), s(sWAVE), "10240"); I("s_add_u32", s(sWBASE), s(sWBASE), str(5 * KSUB - 5 * 10240))
I("s_cmp_lt_u32", s(sWAVE), "5"); I("s_cbranch_scc1", "L_now2")
srd(SA, pW2, 1536 * 1280)
I("s_mul_i32", s(sT2), s(sUU), str(32 * 1280)); I("s_mul_i32", s(sT3), s(sC2W), "160"); I("s_add_u32", s(sT2), s(sT2), s(sT3))
I("s_add_u32", s(sT3), s(sT2), "160")
for i in range(5):
    I("v_add_u32", "v24", str(64 * i), v(vLANE))
    I("v_mul_u32_u24", "v25", "6554", "v24"); I("v_lshrrev_b32", "v25", "16", "v25")
    I("v_mul_u32_u24", "v26", "10", "v25"); I("v_sub_u32", "v26", "v24", "v26")
    I("v_mul_u32_u24", "v25", "1280", "v25"); I("v_lshl_add_u32", "v25", "v26", "4", "v25")
    for hf in range(2):
        I("s_add_u32", "m0", s(sWBASE), str(1024 * i + 5120 * hf))
        I("buffer_load_dwordx4", "v25", s(SA, 4), s(sT2 + hf), "offen", "lds", tag="sk")
a.label("L_now2")
srd(SWS, pWS, WS_SIZE)
ad = 16
I("v_and_b32", v(ad), "7", v(vLANE)); I("v_mul_u32_u24", v(ad), "1040", v(ad))
I("v_lshrrev_b32", v(ad + 1), "3", v(vLANE)); I("v_lshl_add_u32", v(ad), v(ad + 1), "2", v(ad))
I("s_lshr_b32", s(sT0), s(sWAVE), "2"); I("s_mul_i32", s(sT0), s(sT0), str(KSUB)); I("s_lshl_b32", s(sT1), s(sCW), "5"); I("s_add_u32", s(sT0), s(sT0), s(sT1))
I("v_add_u32", v(ad), s(sT0), v(ad))
I("v_lshlrev_b32", v(ad + 1), "13", v(ad + 1))
I("v_and_b32", v(ad + 2), "7", v(vLANE)); I("v_lshlrev_b32", v(ad + 2), "4", v(ad + 2))
I("v_sub_u32", v(ad + 1), v(ad + 1), v(ad + 2)); I("v_add_u32", v(ad + 1), "112", v(ad + 1))
I("v_add_u32", v(ad + 2), "4096", v(ad + 1))
I("s_mul_i32", s(sT0), s(sHF), "20"); I("s_add_u32", s(sT0), s(sT0), s(sWAVE))
I("s_lshl_b32", s(sT1), s(sT0), "7"); I("s_lshl_b32", s(sT2), s(sTT), "2"); I("s_add_u32", s(sT1), s(sT1), s(sT2)); I("s_add_u32", s(sFLAG), s(sT1), hex(FK))
I("s_lshl_b32", s(sT0), s(sT0), "16")
I("s_lshl_b32", s(sT1), s(sTT), "7"); I("s_sub_u32", s(sT0), s(sT0), s(sT1)); I("s_add_u32", s(sT4), s(sT0), hex(WS_KVT + 4080 - 112))
KR, VR, KU, S, P, OUT, O2 = 64, 76, 96, 118, 126, 132, 140
def kv_reads():
    for i in range(11):
        r_ = 5 + i
        I("ds_read_b32", v(KR + i), v(ad), f"offset:{(r_ >> 3)*1040 + (r_ & 7)*128}")
    for i in range(8): I("ds_read_b32", v(VR + i), v(ad), f"offset:{9*1040 + i*128}")
    I("v_add_u32", v(ad), str(2 * KSUB), v(ad))
I("s_cmp_lt_u32", s(sWAVE), "4"); I("s_cselect_b32", s(sCNT), "3", "2"); I("s_cselect_b32", s(sEX), "7", "3"); I("s_mov_b32", s(sEX + 1), "0")
a.wait_vm(tag="sk")
a.barrier()
stamp(18)
kv_reads()
I("s_cmp_lt_u32", s(sWAVE), "5"); I("s_cbranch_scc1", "L_now2b")
I("v_lshrrev_b32", "v24", "2", v(vLANE)); I("v_mul_u32_u24", "v24", "160", "v24")
I("v_and_b32", "v25", "3", v(vLANE)); I("v_lshl_add_u32", "v24", "v25", "3", "v24")
I("v_add_u32", "v24", s(sWBASE), "v24")
for hf in range(2):
    for ct in range(5):
        for hh in range(2):
            I("ds_read_b64_tr_b16", v(160 + 20 * hf + 4 * ct + 2 * hh, 2), "v24", f"offset:{5120*hf + 32*ct + hh*16*160}")
I("s_lshl_b32", s(sT0), s(sC2W), "8"); I("s_lshl_b32", s(sT1), s(sUU), "2"); I("s_add_u32", s(sT0), s(sT0), s(sT1))
I("s_add_u32", s(sSTG), s(sT0), hex(FW))
I("s_mul_i32", s(sT0), s(sC2W), "48"); I("s_add_u32", s(sT0), s(sT0), s(sUU)); I("s_mul_i32", s(sT0), s(sT0), "5120")
I("s_add_u32", s(sT2), s(sT0), hex(WS_W2F))
I("v_add_u32", "v25", "4096", v(vL16))
a.wait_lgkm(0)
for hf in range(2):
    for ct in range(5):
        if ct < 4: I("buffer_store_dwordx4", v(160 + 20 * hf + 4 * ct, 4), v(vL16), s(SWS, 4), s(sT2), "offen", f"offset:{1024*ct}", "sc1", tag="pst")
        else: I("buffer_store_dwordx4", v(160 + 20 * hf + 4 * ct, 4), "v25", s(SWS, 4), s(sT2), "offen", "sc1", tag="pst")
    if hf == 0: I("s_add_u32", s(sT2), s(sT2), str(48 * 5120))
a.label("L_now2b")
I("v_mov_b32", "v6", "0")
I("global_load_dword", v(vNC), "v6", s(pDBG, 2), "sc1")
I("s_mov_b32", s(sT2), "0x05040100"); I("s_mov_b32", s(sT3), "0x07060302")
a.label("L_kv")
for j in range(4):
    for ch in range(2):
        src = vSKR + 2 * ch + (j >> 1)
        if j & 1: I("v_and_b32", v(S + 2 * j + ch), "0xffff0000", v(src))
        else: I("v_lshlrev_b32", v(S + 2 * j + ch), "16", v(src))
for i in range(8): I("v_mov_b32", v(vSKR + i), v(vSKR + 4 + i))
a.wait_lgkm(0)
for i in range(11): unpack(KU + 2 * i, KR + i)
for t_ in range(8): unpack(224 + 2 * t_, VR + t_)
kv_reads()
for t_ in range(8):
    a.I("v_pk_mul_f32", v(P, 2), v(KU + 2 * t_, 2), v(S + 6, 2))
    for j in (2, 1, 0):
        a.I("v_pk_fma_f32", v(P, 2), v(KU + 2 * (t_ + 3 - j), 2), v(S + 2 * j, 2), v(P, 2))
    a.I("v_pk_mul_f32", v(P, 2), v(P, 2), v(224 + 2 * t_, 2))
    I("v_cvt_pk_bf16_f32", v(OUT + t_), v(P), v(P + 1))
for ch in range(2):
    for j in range(4):
        I("v_perm_b32", v(O2 + 4 * ch + j), v(OUT + 6 - 2 * j), v(OUT + 7 - 2 * j), s(sT2 + ch))
I("buffer_store_dwordx4", v(O2, 4), v(ad + 1), s(SWS, 4), s(sT4), "offen", "sc1", tag="pst")
I("buffer_store_dwordx4", v(O2 + 4, 4), v(ad + 2), s(SWS, 4), s(sT4), "offen", "sc1", tag="pst")
I("s_add_u32", s(sT4), s(sT4), str(128 * 4096))
I("s_sub_u32", s(sCNT), s(sCNT), "1"); I("s_cmp_lg_u32", s(sCNT), "0"); I("s_cbranch_scc1", "L_kv")
stamp(19)
a.wait_vm(n=0, lgkm=0)
I("v_cmp_eq_u32", "vcc", "0", v(vNC)); a.nop(1)
I("s_cbranch_vccz", "L_h_tag")
nonce_get()
a.label("L_h_tag")
I("v_lshlrev_b32", "v6", "10", v(vLANE))
I("s_mov_b64", "exec", s(sEX, 2))
I("buffer_store_dword", v(vNC), "v6", s(SWS, 4), s(sFLAG), "offen", "sc1", tag="flag")
I("s_mov_b64", "exec", "-1")
I("s_cmp_lt_u32", s(sWAVE), "5"); I("s_cbranch_scc1", "L_nofwf")
I("v_lshlrev_b32", "v6", "8", v(vLANE))
flag_store(6, sSTG, vNC, nlanes=2, zero=False)
a.label("L_nofwf")
stamp(5)
I("s_lshl_b32", s(sCH), s(sHID), "2"); I("s_add_u32", s(sCH), s(sCH), s(sCW))
I("s_cmp_lt_u32", s(sWAVE), "4"); I("s_cbranch_scc1", "L_nohh")
h_loads()
a.label("L_nohh")
a.barrier()
for w in range(4):
    I("s_cmp_eq_u32", s(sCW), str(w)); I("s_cselect_b32", s(sPRV), str(PRIV[w]), s(sPRV))
    I("s_cselect_b32", s(sCVB), str(CVH[w] if w < 2 else PRIV[w]), s(sCVB))
I("v_and_b32", "v14", "1", v(vLANE)); I("v_lshlrev_b32", "v14", "2", "v14"); I("v_add_u32", "v14", str(M_CD + 16), "v14")
I("s_cmp_ge_u32", s(sWAVE), "4"); I("s_cbranch_scc1", "L_conv")
I("v_min_u32", "v10", "47", v(vLANE)); I("v_lshlrev_b32", "v10", "2", "v10")
I("s_lshl_b32", s(sT5), s(sC2), "8"); I("s_add_u32", s(sT5), s(sT5), hex(FW))
I("v_mov_b32", "v7", str(MISC))
I("s_cmp_lg_u32", s(sWAVE), "0"); I("s_cbranch_scc1", "L_hfw")
poll(11, 10, sT5, vNC, sleep=16)
I("ds_write_b32", "v7", v(vNC), f"offset:{M_FWOK - MISC}")
a.label("L_hfw")
lds_wait(8, 7, M_FWOK - MISC, "v_cmp_ne_u32", v(vNC), sleep=4)
I("s_branch", "L_fwok")

a.label("L_cv7")
a.vm = []
I("s_cmp_eq_u32", s(sXRF), "1"); I("s_cbranch_scc1", "L_havexr")
conv_fetch()
a.wait_vm(tag="xr")
a.label("L_havexr")
conv_xwrite()
I("s_lshl_b32", s(sT0), s(sPAIR), "3"); I("s_add_u32", s(sT0), s(sT0), str(M_CV)); I("v_mov_b32", "v7", s(sT0))
I("v_mov_b32", "v6", "1"); I("ds_write_b32", "v7", "v6")
I("s_mov_b32", s(sT5), "0")
I("s_branch", "L_cvgo")
a.label("L_cv6")
I("s_lshl_b32", s(sT0), s(sPAIR), "3"); I("s_add_u32", s(sT0), s(sT0), str(M_CV)); I("v_mov_b32", "v7", s(sT0))
lds_wait(6, 7, 0, "v_cmp_eq_u32", "0", sleep=1)
I("s_movk_i32", s(sT5), "256")
I("s_branch", "L_cvgo")
a.label("L_conv")
a.vm = []
I("s_setprio", str(knob("p1", 1)))
conv_fetch()
conv_hcopies()
a.wait_vm(tag="xr")
conv_xwrite()
I("s_mov_b32", s(sCNT), "4"); I("s_mov_b32", s(sT5), "0")
a.label("L_cvgo")
I("s_add_u32", s(sT5), s(sT5), s(sCVB))
YA = 16
vAA, vBA = 8, 9
I("v_lshl_add_u32", "v12", v(vKG), "3", v(vN)); I("v_add_u32", "v12", "1", "v12")
I("v_and_b32", "v11", "3", "v12"); I("v_sub_u32", "v12", "v12", "v11"); I("v_lshlrev_b32", "v12", "1", "v12")
I("v_mul_u32_u24", "v11", str(HCP), "v11"); I("v_add3_u32", v(vAA), "v12", "v11", s(sT5))
I("v_lshlrev_b32", "v12", "5", v(vN)); I("v_lshlrev_b32", "v11", "4", v(vKG)); I("v_sub_u32", "v12", "v11", "v12")
I("v_add_u32", "v12", str(XR + 480), "v12"); I("v_add_u32", v(vBA), s(sT5), "v12")
a.wait_lgkm(0)
for i in range(32): I("v_mov_b32", v(YA + i), "0")
stamp(3)
FA = [64, 128]; FB = [96, 160]
def cv_reads(st, extra):
    r = []
    for x in range(8):
        r.append(("ds_read_b64", v(FA[st] + 4 * x, 2), v(vAA), f"offset:{512*x + extra}"))
        r.append(("ds_read_b64", v(FA[st] + 4 * x + 2, 2), v(vAA), f"offset:{512*x + extra + 8}"))
        r.append(("ds_read_b128", v(FB[st] + 4 * x, 4), v(vBA), f"offset:{3584 - 512*x + extra}"))
    return r
def cv_mfmas(st):
    m = []
    for pa in range(8):
        for qa in range(8 - pa):
            d = v(YA + 4 * (pa + qa), 4)
            m.append(("v_mfma_f32_16x16x32_bf16", d, v(FA[st] + 4 * pa, 4), v(FB[st] + 4 * qa, 4), d))
    return m
for x in cv_reads(0, 0): I(*x)
a.wait_lgkm(0)
a.label("L_cv")
interleave(cv_reads(1, 64), cv_mfmas(0))
a.wait_lgkm(0)
interleave(cv_reads(0, 128), cv_mfmas(1))
I("v_add_u32", v(vAA), "128", v(vAA)); I("v_add_u32", v(vBA), "128", v(vBA))
I("s_sub_u32", s(sCNT), s(sCNT), "1"); I("s_cmp_lg_u32", s(sCNT), "0")
a.wait_lgkm(0)
I("s_cbranch_scc1", "L_cv")
I("s_setprio", "3")
stamp(4)
I("s_cmp_ge_u32", s(sSLOT), "24"); I("s_cbranch_scc1", "L_cvepi")
I("s_lshl_b32", s(sT0), s(sPAIR), "13"); I("s_add_u32", s(sT0), s(sT0), "86016"); I("v_add_u32", "v10", s(sT0), v(vL16))
I("s_and_b32", s(sT0), s(sWAVE), "1"); I("s_cmp_eq_u32", s(sT0), "1"); I("s_cbranch_scc1", "L_cvadd")
I("v_and_b32", "v11", "3", v(vLANE)); I("v_lshlrev_b32", "v11", "2", "v11"); I("v_add_u32", "v11", str(M_X), "v11")
lds_wait(6, 11, 0, "v_cmp_gt_u32", "2", sleep=0)
for a_ in range(8): I("ds_write_b128", "v10", v(YA + 4 * a_, 4), f"offset:{1024*a_}")
I("v_mov_b32", "v6", "1"); I("ds_write_b32", "v7", "v6", "offset:4")
I("s_branch", "L_preepi")
a.label("L_cvadd")
lds_wait(6, 7, 4, "v_cmp_eq_u32", "0", sleep=0)
for a_ in range(8): I("ds_read_b128", v(64 + 4 * a_, 4), "v10", f"offset:{1024*a_}")
a.wait_lgkm(0)
for i in range(32): I("v_add_f32", v(YA + i), v(YA + i), v(64 + i))
a.label("L_cvepi")
I("v_lshlrev_b32", "v10", "5", v(vN)); I("v_lshl_add_u32", "v10", v(vKG), "3", "v10")
I("v_sub_u32", "v11", str(XR + 4088 - 3584), "v10"); I("v_add_u32", "v11", s(sCVB), "v11")
I("v_add_u32", "v10", s(sCVB), "v10")
for a_ in range(8): I("ds_read_b64", v(64 + 2 * a_, 2), "v11", f"offset:{3584 - 512*a_}")
I("v_lshlrev_b32", "v12", "16", "v15"); I("v_mov_b32", "v13", "v12")
a.wait_lgkm(0)
for a_ in range(8):
    e = 64 + 2 * a_; y = YA + 4 * a_
    K0, K1 = 96, 98
    I("v_and_b32", v(K0), "0xffff0000", v(e + 1)); I("v_lshlrev_b32", v(K0 + 1), "16", v(e + 1))
    I("v_and_b32", v(K1), "0xffff0000", v(e)); I("v_lshlrev_b32", v(K1 + 1), "16", v(e))
    I("v_pk_fma_f32", v(y, 2), v(K0, 2), "v[12:13]", v(y, 2)); I("v_pk_fma_f32", v(y + 2, 2), v(K1, 2), "v[12:13]", v(y + 2, 2))
    I("v_cvt_pk_bf16_f32", v(e), v(y), v(y + 1)); I("v_cvt_pk_bf16_f32", v(e + 1), v(y + 2), v(y + 3))
    I("ds_write_b64", "v10", v(e, 2), f"offset:{512*a_}")
a.wait_lgkm(0)
I("v_add_u32", "v10", s(sCVB), v(vL16))
for blk in range(4): I("ds_read_b128", v(96 + 4 * blk, 4), "v10", f"offset:{1024*blk}")
I("s_lshl_b32", s(sT0), s(sCH), "12"); I("s_add_u32", s(sT0), s(sT0), hex(WS_YT))
a.wait_lgkm(0)
I("s_lshl_b32", s(sT1), s(sWAVE), "2"); I("s_add_u32", s(sT1), s(sT1), str(M_CD)); I("v_mov_b32", "v6", s(sT1)); I("v_mov_b32", "v7", "1")
I("ds_write_b32", "v6", "v7")
for blk in range(4):
    I("buffer_store_dwordx4", v(96 + 4 * blk, 4), v(vL16), s(SWS, 4), s(sT0), "offen", f"offset:{1024*blk}", "sc1", tag="yst")
I("s_mul_i32", s(sT0), s(sCH), "52429"); I("s_lshr_b32", s(sT0), s(sT0), "22")
I("s_mul_i32", s(sT1), s(sT0), "80"); I("s_sub_u32", s(sT1), s(sCH), s(sT1))
I("s_lshl_b32", s(sT0), s(sT0), "9"); I("s_lshl_b32", s(sT1), s(sT1), "2"); I("s_add_u32", s(sT0), s(sT0), s(sT1))
I("s_add_u32", s(sT0), s(sT0), hex(FY))
a.wait_vm(n=0)
flag_store(6, sT0, vNC)
stamp(12)
a.label("L_preepi")
a.vm = []
stamp(6)
I("v_lshlrev_b32", "v8", "2", v(vLANE)); I("v_add_u32", "v8", str(M_G), "v8"); I("v_mov_b32", "v9", str(M_YS))
I("s_cmp_lg_u32", s(sWAVE), "4"); I("s_cbranch_scc1", "L_yswait")
lds_wait(7, 14, 0, "v_cmp_eq_u32", "0", sleep=4)
lds_wait(7, 9, M_G2L - M_YS, "v_cmp_ne_u32", v(vNC), sleep=4)
I("v_min_u32", "v6", "39", v(vLANE)); I("v_lshlrev_b32", "v6", "3", "v6")
I("s_lshl_b32", s(sT1), s(sC2), "9"); I("s_add_u32", s(sT1), s(sT1), hex(FY))
I("v_lshlrev_b32", "v7", "3", v(vLANE))
I("s_lshl_b32", s(sT0), s(sR2), "9"); I("s_add_u32", s(sT0), s(sT0), hex(WS_G))
I("s_mov_b32", s(sPOLL), "1" if NOPOLL else "0x40000")
a.label("L_yp")
I("buffer_load_dwordx2", "v[18:19]", "v6", s(SWS, 4), s(sT1), "offen", "sc1")
I("buffer_load_dwordx2", "v[16:17]", "v7", s(SWS, 4), s(sT0), "offen", "sc1")
a.wait_vm(n=0)
I("v_xor_b32", "v18", "v18", v(vNC)); I("v_xor_b32", "v19", "v19", v(vNC)); I("v_xor_b32", "v17", "v17", v(vNC))
I("v_or3_b32", "v18", "v18", "v19", "v17")
I("v_cmp_ne_u32", "vcc", "0", "v18"); a.nop(1)
I("s_cbranch_vccz", "L_ypd")
I("s_sleep", str(YSL)); I("s_sub_u32", s(sPOLL), s(sPOLL), "1"); I("s_cmp_lg_u32", s(sPOLL), "0"); I("s_cbranch_scc1", "L_yp")
a.label("L_ypd")
I("ds_write_b32", "v8", "v16"); I("ds_write_b32", "v9", v(vNC))
a.label("L_yswait")
lds_wait(7, 9, 0, "v_cmp_ne_u32", v(vNC), sleep=4)
I("ds_read_b32", "v16", "v8")
I("s_lshl_b32", s(sT0), s(sC2), "2"); I("s_add_u32", s(sT0), s(sT0), s(sCW))
stamp(9)
I("s_mul_i32", s(sT0), s(sT0), str(20 * 4096)); I("s_lshl_b32", s(sT1), s(sR2), "7"); I("s_add_u32", s(sT0), s(sT0), s(sT1))
I("s_add_u32", s(sT0), s(sT0), hex(WS_YT))
I("v_lshlrev_b32", "v6", "12", v(vKG)); I("v_lshl_add_u32", "v6", v(vN), "3", "v6")
for i in range(5):
    I("buffer_load_dwordx2", v(64 + 2 * i, 2), "v6", s(SWS, 4), s(sT0), "offen", "sc1", tag="yl")
    if i < 4: I("s_add_u32", s(sT0), s(sT0), str(4 * 4096))
I("v_lshlrev_b32", "v6", "7", v(vKG)); I("v_lshl_add_u32", "v6", v(vN), "3", "v6"); I("v_add_u32", "v6", s(sPRV), "v6")
I("v_bfe_u32", "v7", v(vLANE), "2", "2"); I("v_lshlrev_b32", "v7", "7", "v7")
I("v_lshl_add_u32", "v7", v(vKG), "5", "v7"); I("v_and_b32", "v8", "3", v(vLANE)); I("v_lshl_add_u32", "v7", "v8", "3", "v7")
I("v_add_u32", "v7", s(sPRV), "v7")
I("v_mul_u32_u24", "v8", "40", v(vLANE)); I("v_add_u32", "v8", s(sPRV), "v8")
a.wait_vm(tag="yl", lgkm=0)
I("v_mov_b32", "v17", "v16")
for i in range(5): I("ds_write_b64", "v6", v(64 + 2 * i, 2), f"offset:{512*i}")
a.wait_lgkm(0)
for i in range(5): I("ds_read_b64_tr_b16", v(64 + 2 * i, 2), "v7", f"offset:{512*i}")
a.wait_lgkm(0)
for i in range(5):
    for h in range(2):
        Y = 96 + 2 * h
        unpack(Y, 64 + 2 * i + h)
        I("v_pk_mul_f32", v(Y, 2), v(Y, 2), "v[16:17]")
        I("v_cvt_pk_bf16_f32", v(80 + 2 * i + h), v(Y), v(Y + 1))
    I("ds_write_b64", "v8", v(80 + 2 * i, 2), f"offset:{GYO + 8*i}")
stamp(7)

a.label("L_final")
a.vm = []
srd(SO, pOUT, 2621440)
srd(SQ, pQ, 2621440)
I("s_mul_i32", s(sT0), s(sC2), "160"); I("s_add_u32", s(sT2), s(pB2), s(sT0)); I("s_addc_u32", s(sT3), s(pB2 + 1), "0")
I("s_lshl_b32", s(sT1), s(sR2), "6"); I("s_mul_i32", s(sT1), s(sT1), "1280"); I("s_add_u32", s(sT4), s(sT1), s(sT0))
def gy_addr(dst, quad, row, t0, t1):
    I("v_mul_u32_u24", v(t0), "13108", v(quad)); I("v_lshrrev_b32", v(t0), "16", v(t0))
    I("v_mul_u32_u24", v(t1), "5", v(t0)); I("v_sub_u32", v(t1), v(quad), v(t1))
    I("v_mul_u32_u24", v(dst), "40", v(row)); I("v_lshl_add_u32", v(dst), v(t1), "3", v(dst))
    I("v_mov_b32", v(t1), str(PRIV[0] + GYO))
    for b in range(1, 4):
        I("v_cmp_eq_u32", "vcc", str(b), v(t0)); I("v_mov_b32", v(t0 + 3), str(PRIV[b] + GYO))
        I("v_cndmask_b32", v(t1), v(t1), v(t0 + 3), "vcc")
    I("v_add_u32", v(dst), v(dst), v(t1))
def fin_setup(idreg, b):
    T = 124
    I("v_mul_u32_u24", v(b), "6554", v(idreg)); I("v_lshrrev_b32", v(b), "16", v(b))
    I("v_mul_u32_u24", v(b + 1), "10", v(b)); I("v_sub_u32", v(b + 1), v(idreg), v(b + 1))
    I("v_lshlrev_b32", v(b + 5), "4", v(b + 1))
    I("global_load_dwordx4", v(b + 8, 4), v(b + 5), s(sT2, 2), tag="b2")
    I("v_mul_u32_u24", v(b + 6), "1280", v(b)); I("v_add_u32", v(b + 5), v(b + 5), v(b + 6))
    I("buffer_load_dwordx4", v(b + 12, 4), v(b + 5), s(SQ, 4), s(sT4), "offen", tag="b2")
    I("v_mul_u32_u24", v(b + 2), str(REDP), v(b)); I("v_lshl_add_u32", v(b + 2), v(b + 1), "5", v(b + 2))
    I("v_lshlrev_b32", v(T + 2), "1", v(b + 1)); gy_addr(b + 3, T + 2, b, T, T + 1)
    I("v_add_u32", v(T + 2), "1", v(T + 2)); gy_addr(b + 7, T + 2, b, T, T + 1)
    I("v_lshlrev_b32", v(b + 4), "2", v(b)); I("v_add_u32", v(b + 4), str(M_G), v(b + 4))
def fin_item(b):
    P = 160
    for w in range(4):
        I("ds_read_b128", v(P + 8 * w, 4), v(b + 2), f"offset:{RED + w*REDW}")
        I("ds_read_b128", v(P + 8 * w + 4, 4), v(b + 2), f"offset:{RED + w*REDW + 16}")
    I("ds_read_b64", v(P + 32, 2), v(b + 3)); I("ds_read_b64", v(P + 34, 2), v(b + 7))
    I("ds_read_b32", v(P + 36), v(b + 4))
    a.wait_vm(tag="b2", lgkm=0)
    G1, Qq, B, GA = P + 38, P + 40, P + 42, P + 44
    I("v_sub_f32", v(G1), "1.0", v(P + 36)); I("v_mov_b32", v(G1 + 1), v(G1))
    for j in range(4):
        x = P + 2 * j
        unpack(B, b + 8 + j); unpack(GA, P + 32 + j); unpack(Qq, b + 12 + j)
        a.I("v_pk_add_f32", v(x, 2), v(x, 2), v(x + 8, 2)); a.I("v_pk_add_f32", v(x + 16, 2), v(x + 16, 2), v(x + 24, 2))
        a.I("v_pk_add_f32", v(x, 2), v(x, 2), v(B, 2))
        a.I("v_pk_mul_f32", v(GA, 2), v(GA, 2), v(Qq, 2))
        a.I("v_pk_add_f32", v(x, 2), v(x, 2), v(x + 16, 2))
        a.I("v_pk_fma_f32", v(x, 2), v(x, 2), v(G1, 2), v(GA, 2))
        I("v_cvt_pk_bf16_f32", v(P + 48 + j), v(x), v(x + 1))
    I("buffer_store_dwordx4", v(P + 48, 4), v(b + 5), s(SO, 4), s(sT4), "offen", tag="out")
fin_setup(0, 96)
I("v_add_u32", "v120", "256", "v0"); I("v_min_u32", "v120", "639", "v120")
fin_setup(120, 128)
a.wait_lgkm(0)
a.barrier()
stamp(10)
fin_item(96)
I("s_lshr_b32", s(sT0), s(sWAVE), "1"); I("s_cmp_lg_u32", s(sT0), "2"); I("s_cbranch_scc1", "L_fin_done")
a.nop(2)
fin_item(128)
a.label("L_fin_done")
stamp(8)
stamp_flush()
a.label("L_end")
I("s_endpgm")
a.raw(f""".section .rodata,"a"
.p2align 6
.amdhsa_kernel {KNAME}
  .amdhsa_next_free_vgpr 256
  .amdhsa_next_free_sgpr 102
  .amdhsa_accum_offset 256
  .amdhsa_group_segment_fixed_size 0
  .amdhsa_kernarg_size 120
  .amdhsa_user_sgpr_count 2
  .amdhsa_user_sgpr_kernarg_segment_ptr 1
  .amdhsa_system_sgpr_workgroup_id_x 1
  .amdhsa_float_denorm_mode_32 3
.end_amdhsa_kernel
""")
out = [x for x in sys.argv[1:] if not x.startswith("--")]
import subprocess, re
txt = a.text()
open("_t.s", "w").write(txt.replace("CODE_KB", "100"))
subprocess.run(["clang", "-x", "assembler", "-target", "amdgcn-amd-amdhsa", "-mcpu=gfx950", "-c", "_t.s", "-o", "_t.o"], check=True)
sec = subprocess.run(["llvm-readelf", "-S", "_t.o"], capture_output=True, text=True).stdout
size = int(re.search(r"\.text\s+PROGBITS\s+\S+\s+\S+\s+(\S+)", sec).group(1), 16)
print("code bytes", size)
open(out[0] if out else "k.s", "w").write(txt.replace("CODE_KB", str((size >> 10) - 1)))
```
